```python
import torch

def _softmax(x, axis=-1):
    return torch.softmax(x, dim=axis)

def _gelu(x):
    return torch.nn.functional.gelu(x, approximate='tanh')

def _silu(x):
    return torch.nn.functional.silu(x)

def _sigmoid(x):
    return torch.sigmoid(x)

def _layernorm(x, axis=-1, eps=1e-05):
    m = x.mean(dim=axis, keepdim=True)
    v = x.var(dim=axis, keepdim=True, unbiased=False)
    return (x - m) / torch.sqrt(v + eps)

def _scatter_add(tgt, idx, src, axis=0):
    return tgt.clone().index_add_(axis, idx, src)

def _segment_sum(src, seg, n):
    out = torch.zeros((n,) + src.shape[1:], dtype=src.dtype)
    return out.index_add_(0, seg, src)

def _pad(x, pw):
    flat = tuple((v for pair in reversed(pw) for v in pair))
    return torch.nn.functional.pad(x, flat)
kernel_name = 'adaLN_cond__gqa_block_cached__moe_arch_mod__prompt'

def setup_inputs():

    _w = lambda a: (lambda t: t.to(torch.bfloat16) if t.is_floating_point() else t)(torch.as_tensor(a))

    def _A_setup():
        B, Sq, D = (1, 2048, 576)
        Hq, Hkv, Sk, Dh = (32, 16, 2048, 128)
        assert Hq % Hkv == 0, (Hq, Hkv)
        return {'x': _w((lambda *s: torch.randn(*s, dtype=torch.bfloat16) * 0.05)(B, Sq, D)), 'k_cache': _w((lambda *s: torch.randn(*s, dtype=torch.bfloat16) * 3.2)(B, Hkv, Sk, Dh)), 'v_cache': _w((lambda *s: torch.randn(*s, dtype=torch.bfloat16) * 0.4)(B, Hkv, Sk, Dh)), 'wq': _w((lambda *s: torch.randn(*s, dtype=torch.bfloat16) * 3.2)(D, Hq * Dh) * D ** (-0.5)), 'wo': _w((lambda *s: torch.randn(*s, dtype=torch.bfloat16) * 0.4)(Hq * Dh, D) * (Hq * Dh) ** (-0.5))}
    _A_in = _A_setup()

    def _B_setup():
        B, S, D, F, C = (1, 2048, 576, 4608, 8)
        return {'x': _w((lambda *s: torch.randn(*s, dtype=torch.bfloat16) * 0.05)(B, S, D)), 'w_r': _w((lambda *s: torch.randn(*s, dtype=torch.bfloat16) * 0.05)(D)), 'w_gate': _w((lambda *s: torch.randn(*s, dtype=torch.bfloat16) * 0.05)(D, F)), 'w_up': _w((lambda *s: torch.randn(*s, dtype=torch.bfloat16) * 0.05)(D, F)), 'w_down': _w((lambda *s: torch.randn(*s, dtype=torch.bfloat16) * 0.05)(F, D))}
    _B_in = _B_setup()
    return {'A_x': _A_in['x'], 'A_k_cache': _A_in['k_cache'], 'A_v_cache': _A_in['v_cache'], 'A_wq': _A_in['wq'], 'A_wo': _A_in['wo'], 'B_x': _B_in['x'], 'B_w_r': _B_in['w_r'], 'B_w_gate': _B_in['w_gate'], 'B_w_up': _B_in['w_up'], 'B_w_down': _B_in['w_down'], 'c': _w((lambda *s: torch.randn(*s, dtype=torch.bfloat16) * 0.1)(1, 576) * 8.0), 'w_mod': _w((lambda *s: torch.randn(*s, dtype=torch.bfloat16) * 0.1)(576, 6 * 576) * 576 ** (-0.5) * 8.0)}

def reference(A_x, A_k_cache, A_v_cache, A_wq, A_wo, B_x, B_w_r, B_w_gate, B_w_up, B_w_down, c, w_mod):

    def _A_ref(x, k_cache, v_cache, wq, wo):
        B, Sq, D = x.shape
        Hq, Dh = (32, 128)
        Hkv = k_cache.shape[1]
        rep = Hq // Hkv
        q = (lambda x, *d: x.permute(*d))((x @ wq).reshape(B, Sq, Hq, Dh), 0, 2, 1, 3)
        k = (lambda x, n, axis: torch.repeat_interleave(x, n, dim=axis))(k_cache, rep, axis=1)
        v = (lambda x, n, axis: torch.repeat_interleave(x, n, dim=axis))(v_cache, rep, axis=1)
        scores = torch.einsum('bhqd,bhkd->bhqk', q, k) * Dh ** (-0.5)
        p = _softmax(scores, axis=-1)
        o = torch.einsum('bhqk,bhkd->bhqd', p, v)
        return (lambda x, *d: x.permute(*d))(o, 0, 2, 1, 3).reshape(B, Sq, Hq * Dh) @ wo

    def _B_ref(x, w_r, w_gate, w_up, w_down):
        B, S, D = x.shape
        C = 8
        r = x @ w_r
        idx = torch.argsort(-r, axis=-1)[:, :C]
        idx_e = (lambda x, n, axis: torch.repeat_interleave(x, n, dim=axis))(idx.reshape(B, C, 1), D, axis=2)
        x_sel = (lambda x, i, axis: torch.take_along_dim(x, i, dim=axis))(x, idx_e, axis=1)
        g = _silu(x_sel @ w_gate)
        u = x_sel @ w_up
        y = g * u @ w_down
        r_sel = _sigmoid((lambda x, i, axis: torch.take_along_dim(x, i, dim=axis))(r, idx, axis=1))
        y = y * r_sel.reshape(B, C, 1)
        b_off = (torch.arange(B) * S).reshape(B, 1)
        flat_idx = (idx + b_off).reshape(B * C)
        zero = (x * 0.0).reshape(B * S, D)
        upd = _scatter_add(zero, flat_idx, y.reshape(B * C, D), axis=0)
        return x + upd.reshape(B, S, D)
    x = A_x
    mod = (_silu(c) @ w_mod).reshape(c.shape[0], 6, 1, -1)
    sa, ca, ga, sb, cb, gb = (mod[:, 0].clone(), mod[:, 1].clone(), mod[:, 2].clone(), mod[:, 3].clone(), mod[:, 4].clone(), mod[:, 5].clone())
    h = _layernorm(x, axis=-1) * (1 + ca) + sa
    x = x + ga * _A_ref(h, A_k_cache, A_v_cache, A_wq, A_wo)
    h = _layernorm(x, axis=-1) * (1 + cb) + sb
    x = x + gb * _B_ref(h, B_w_r, B_w_gate, B_w_up, B_w_down)
    return x
```

```python
from lib import *
from small import *

MF = 'v_mfma_f32_16x16x32_bf16'
SCALE = 128 ** -0.5


def q4(t, r):
    return f'{t}[{r}:{r+3}]'


def q2(t, r):
    return f'{t}[{r}:{r+1}]'


def gen_oproj():
    k = K('oproj_kernel', 256, 256, 147456, nvgpr=200, nagpr=72)
    k('s_cmp_ge_u32 s2, 256')
    k('s_cbranch_scc1 L_oproj_end')
    k(f's_load_dwordx2 s[4:5], s[0:1], {ARG["wo"]}')
    k(f's_load_dwordx2 s[6:7], s[0:1], {ARG["ws"]}')
    k('v_lshrrev_b32 v1, 6, v0')
    k('v_and_b32 v2, 63, v0')
    k('v_readfirstlane_b32 s33, v1')
    k('s_and_b32 s3, s2, 7')
    k('s_lshr_b32 s34, s3, 1')
    k('s_and_b32 s3, s3, 1')
    k('s_lshl_b32 s3, s3, 3')
    k('s_lshr_b32 s35, s2, 5')
    k('s_add_u32 s35, s35, s3')
    k('s_bfe_u32 s36, s2, 0x20003')
    k('s_mul_i32 s3, s33, 576')
    k('v_add_u32 v3, s3, v2')
    k(f's_mov_b32 s37, {hx((1 << 32) // 18 + 1)}')
    for i in range(9):
        k(f'v_add_u32 v4, {64*i}, v3')
        k('v_mul_hi_u32 v5, v4, s37')
        k('v_mul_u32_u24 v6, 18, v5')
        k('v_sub_u32 v6, v4, v6')
        k('v_mul_u32_u24 v5, 1152, v5')
        k(f'v_lshl_add_u32 v{8+i}, v6, 4, v5')
    k('v_lshlrev_b32 v17, 4, v2')
    k(f'v_add_u32 v18, {128*1024}, v17')
    k('v_lshrrev_b32 v4, 2, v2')
    k('v_mul_u32_u24 v4, 288, v4')
    k('v_and_b32 v5, 3, v2')
    k('v_lshl_add_u32 v20, v5, 3, v4')
    for s in range(1, 4):
        k(f'v_add_u32 v{20+s}, {36864*s}, v20')
    k('v_and_b32 v4, 15, v2')
    k('v_mul_u32_u24 v4, 2304, v4')
    k('v_lshrrev_b32 v5, 4, v2')
    k('v_lshl_add_u32 v24, v5, 4, v4')
    k(f'v_add_u32 v25, {16*2304}, v24')
    k('s_waitcnt lgkmcnt(0)')
    k(f's_mul_i32 s38, s34, {1024*1152}')
    k('s_mul_i32 s39, s36, 288')
    k('s_add_u32 s38, s38, s39')
    k(f's_sub_u32 s39, {hx(4096*1152)}, s38')
    k.srd_off(8, 's4', 's5', 's38', 's39')
    k('s_lshl_b32 s38, s35, 3')
    k('s_lshl_b32 s39, s33, 1')
    k('s_add_u32 s38, s38, s39')
    k('s_lshl_b32 s40, s38, 17')
    k('s_lshl_b32 s39, s34, 15')
    k('s_add_u32 s40, s40, s39')
    k(f's_sub_u32 s39, {hx(16777216)}, s40')
    k(f's_add_u32 s40, s40, {hx(WS_O)}')
    k.srd_off(12, 's6', 's7', 's40', 's39')
    k(f's_mul_i32 s40, s34, {4718592}')
    k(f's_mul_i32 s39, s38, {16*2304}')
    k('s_add_u32 s40, s40, s39')
    k('s_mul_i32 s39, s36, 576')
    k('s_add_u32 s40, s40, s39')
    k(f's_sub_u32 s39, {hx(4*4718592)}, s40')
    k(f's_add_u32 s40, s40, {hx(WS_PART)}')
    k.srd_off(16, 's6', 's7', 's40', 's39')
    k('s_mul_i32 s41, s33, 9216')
    BR = 64
    AR = 32

    def group(t):
        g = []
        g.append((f's_mov_b32 s42, {hx(t*128*1152)}', 1))
        g.append((f's_mov_b32 s43, {hx(t*4096)}', 1))
        for i in range(9):
            g.append((f's_add_u32 m0, s41, {(t % 4)*36864 + 1024*i}', 1))
            if i < 8:
                ks, qb = i // 2, i % 2
                r = BR + (t % 4) * 32 + ks * 8 + qb * 4
                g.append((f'buffer_load_dwordx4 {q4("v", r)}, v{17+qb}, s[12:15], s43 offen offset:{1024*ks}', 1))
            else:
                g.append(('s_nop 0', 1))
            g.append((f'buffer_load_dwordx4 v{8+i}, s[8:11], s42 offen lds', 1))
        return g
    for t in range(3):
        for ins, _ in group(t):
            k(ins)
    k('s_waitcnt vmcnt(34)')
    k('s_barrier')
    LA = 6
    NF = 8 * 36

    def rd(f):
        t, ks, nb = f // 36, (f % 36) // 9, f % 9
        r = AR + 4 * (f % 8)
        off = ks * 9216 + nb * 32
        return [(f'ds_read_b64_tr_b16 {q2("v", r)}, v{20 + t % 4} offset:{off}', 1),
                (f'ds_read_b64_tr_b16 {q2("v", r+2)}, v{20 + t % 4} offset:{off + 4608}', 1)]
    lines = []
    for f in range(LA):
        lines += [x[0] for x in rd(f)]
    pend = []
    for f in range(NF):
        t, ks, nb = f // 36, (f % 36) // 9, f % 9
        fill = []
        if (f + LA) % 36 == 0 and f + LA < NF:
            n = 17 if t + 2 < 8 else 0
            lines.append(f's_waitcnt vmcnt({n})')
            lines.append('s_barrier')
            if t + 3 < 8:
                pend = group(t + 3)
        if f + LA < NF:
            fill += rd(f + LA)
        take = pend[:3]
        pend = pend[3:]
        mf = []
        for qb in range(2):
            acc = (qb * 9 + nb) * 4
            b = BR + (t % 4) * 32 + ks * 8 + qb * 4
            c = '0' if f < 9 else q4('a', acc)
            mf.append(f'{MF} {q4("a", acc)}, {q4("v", AR + 4*(f % 8))}, {q4("v", b)}, {c}')
        lines += place(mf, fill + take)
    lines, _ = insert_lgkm(lines)
    for ln in lines:
        k(ln)
    k('s_nop 7')
    for qb in range(2):
        for nb in range(9):
            k(f'buffer_store_dwordx4 {q4("a", (qb*9+nb)*4)}, v{24+qb}, s[16:19], 0 offen offset:{64*nb}')
    k('L_oproj_end:')
    k('s_endpgm')
    return k


def gen_attn(mimic=False):
    k = K('attn_kernel', 256, 256, 131072 + 64, nvgpr=256, nagpr=256)
    O, Q, KF, VF = 0, 128, 192, 224
    KA, VA, DK, DV = 8, 12, 20, 24
    OST = 26
    MX = 28
    TMP = 32
    ONE = 40
    NM = 44
    L = 60
    P = 76
    S = 108
    WA, DW, HOFF, HR = 172, 180, 184, 188
    k('s_cmp_ge_u32 s2, 256')
    k('s_cbranch_scc1 L_attn_end')
    k(f's_load_dwordx4 s[4:7], s[0:1], {ARG["k"]}')
    k(f's_load_dwordx2 s[28:29], s[0:1], {ARG["wq"]}')
    k(f's_load_dwordx2 s[30:31], s[0:1], {ARG["ws"]}')
    k('v_lshrrev_b32 v1, 6, v0')
    k('v_and_b32 v2, 63, v0')
    k('v_readfirstlane_b32 s33, v1')
    k('s_and_b32 s34, s2, 7')
    k('s_lshl_b32 s34, s34, 1')
    k('s_bfe_u32 s3, s2, 0x10003')
    k('s_add_u32 s34, s34, s3')
    k('s_lshr_b32 s35, s2, 4')
    k('v_lshrrev_b32 v3, 5, v2')
    k('s_lshl_b32 s3, s33, 3')
    k('v_add_u32 v3, s3, v3')
    k('v_and_b32 v4, 31, v2')
    for i in range(4):
        k(f'v_add_u32 v5, {2*i}, v3')
        k('v_and_b32 v6, 3, v5')
        k('v_lshrrev_b32 v7, 1, v5')
        k('v_and_b32 v7, 4, v7')
        k('v_or_b32 v6, v6, v7')
        k('v_lshlrev_b32 v6, 1, v6')
        k('v_xor_b32 v6, v6, v4')
        k('v_lshlrev_b32 v5, 13, v5')
        k(f'v_lshl_add_u32 v{DW+i}, v6, 4, v5')
        if i:
            k(f'v_subrev_u32 v{DW+i}, {1024*i}, v{DW+i}')
    k(f'v_lshlrev_b32 v{HOFF}, 4, v2')
    k(f'v_add_u32 v{HOFF+1}, 18432, v{HOFF}')
    k('s_waitcnt lgkmcnt(0)')
    k('s_lshl_b32 s3, s34, 9')
    k(f's_sub_u32 s36, {hx(576*8192)}, s3')
    k.srd_off(16, 's28', 's29', 's3', 's36')
    k('s_lshl_b32 s37, s35, 3')
    k('s_lshl_b32 s3, s33, 1')
    k('s_add_u32 s37, s37, s3')
    k('s_mul_i32 s3, s37, 18432')
    k(f's_add_u32 s3, s3, {hx(WS_H)}')
    k.srd_off(20, 's30', 's31', 's3', 2 * 18432)
    k('s_lshl_b32 s38, s33, 12')

    def wslot(t):
        return ((t + 3) % 4) * 32768

    def pgroup(t):
        g = []
        for h in range(2):
            kk = 2 * t + h
            g.append((f's_mov_b32 s42, {hx(kk*262144)}', 1))
            g.append((f's_add_u32 m0, s38, {wslot(t) + h*16384}', 1))
            g.append((f's_mov_b32 s43, {hx(kk*1024)}', 1))
            for i in range(4):
                g.append((f'buffer_load_dwordx4 v{DW+i}, s[16:19], s42 offen offset:{1024*i} lds', 1))
            for rb in range(2):
                r = HR + (t % 4) * 16 + h * 8 + rb * 4
                g.append((f'buffer_load_dwordx4 {q4("v", r)}, v{HOFF+rb}, s[20:23], s43 offen', 1))
        return g
    for t in range(3):
        for ins, _ in pgroup(t):
            k(ins)
    k('s_lshl_b32 s3, s34, 19')
    k.srd_off(8, 's4', 's5', 's3', 524288)
    k.srd_off(12, 's6', 's7', 's3', 524288)
    k('s_lshl_b32 s3, s37, 17')
    k('s_lshl_b32 s36, s34, 13')
    k('s_add_u32 s3, s3, s36')
    k(f's_sub_u32 s36, {hx(16777216)}, s3')
    k(f's_add_u32 s3, s3, {hx(WS_O)}')
    k.srd_off(24, 's30', 's31', 's3', 's36')
    k(f'v_lshlrev_b32 v{OST}, 4, v2')
    k('v_and_b32 v3, 15, v2')
    k('v_lshrrev_b32 v4, 4, v2')
    k('v_xor_b32 v5, v3, v4')
    k('v_lshlrev_b32 v6, 8, v3')
    for s in range(4):
        k(f'v_xor_b32 v7, {4*s}, v5')
        k(f'v_lshl_add_u32 v{KA+s}, v7, 4, v6')
    k('s_lshl_b32 s3, s33, 4')
    k('v_add_u32 v6, s3, v4')
    k('v_lshlrev_b32 v6, 8, v6')
    for i in range(4):
        k(f'v_xor_b32 v7, {4*i}, v5')
        k(f'v_lshl_add_u32 v{DK+i}, v7, 4, v6')
    for i in range(2):
        k(f'v_add_u32 v7, {4*i}, v4')
        k('v_lshlrev_b32 v7, 1, v7')
        k('v_xor_b32 v7, v7, v3')
        k(f'v_lshl_add_u32 v{DV+i}, v7, 4, v6')
    k('v_lshrrev_b32 v3, 2, v2')
    k('v_and_b32 v4, 3, v2')
    k('v_lshlrev_b32 v5, 8, v3')
    k('v_lshl_add_u32 v5, v4, 3, v5')
    k('v_add_u32 v5, 0x10000, v5')
    k('v_and_b32 v6, 7, v3')
    for db in range(8):
        k(f'v_xor_b32 v7, {db}, v6')
        k(f'v_lshl_add_u32 v{VA+db}, v7, 5, v5')
    k('v_bfe_u32 v3, v2, 2, 2')
    k('v_lshrrev_b32 v5, 4, v2')
    k('v_lshl_add_u32 v6, v5, 3, v3')
    k('v_lshlrev_b32 v6, 9, v6')
    k('v_lshl_add_u32 v6, v4, 3, v6')
    k('v_and_b32 v5, 1, v5')
    k('v_lshl_add_u32 v5, v5, 2, v3')
    for u in range(8):
        k(f'v_xor_b32 v7, {u}, v5')
        k(f'v_lshl_add_u32 v{WA+u}, v7, 5, v6')
    WA2 = S
    for u in range(8):
        k(f'v_add_u32 v{WA2+u}, 0x10000, v{WA+u}')
    for i in range(4):
        k(f'v_mov_b32 v{ONE+i}, 0x3f803f80')
        k(f'v_mov_b32 v{MX+i}, 0xff800000')
    k('s_mov_b32 s45, 0')
    k(f'v_mov_b32 v3, 0x20000')
    k(f'v_mov_b32 v4, 0')
    k('ds_write_b32 v3, v4')

    def kdma(T):
        g = [(f's_add_u32 m0, s38, {(T % 4)*16384}', 1), (f's_mov_b32 s42, {hx(T*16384)}', 1)]
        for i in range(4):
            g.append((f'buffer_load_dwordx4 v{DK+i}, s[8:11], s42 offen offset:{1024*i} lds', 1))
        return g

    def vdma(T):
        g = [(f's_add_u32 m0, s38, {65536 + (T % 4)*16384}', 1), (f's_mov_b32 s42, {hx(T*16384)}', 1)]
        for i in range(4):
            g.append((f'buffer_load_dwordx4 v{DV + i % 2}, s[12:15], s42 offen offset:{1024*i} lds', 1))
        return g

    k('s_waitcnt vmcnt(24) lgkmcnt(0)')
    k('s_barrier')
    LA = 6
    NF = 18 * 16

    def prd(f):
        kk, u = f // 16, f % 16
        t = kk // 2
        base = wslot(t) + (kk % 2) * 16384 + (u // 8) * 256
        a = (WA if base < 65536 else WA2) + u % 8
        base %= 65536
        r = KF + 4 * (f % 16)
        return [(f'ds_read_b64_tr_b16 {q2("a", r)}, v{a} offset:{base}', 1),
                (f'ds_read_b64_tr_b16 {q2("a", r+2)}, v{a} offset:{base + 2048}', 1)]
    lines = []
    for f in range(LA):
        lines += [x[0] for x in prd(f)]
    pend = []
    for f in range(NF):
        kk, u = f // 16, f % 16
        t = kk // 2
        fill = []
        if (f + LA) % 32 == 0:
            if t + 1 <= 6:
                n = 12
            elif t + 1 == 7:
                n = 12
            elif t + 1 == 8:
                n = 8
            else:
                n = 8
            lines.append(f's_waitcnt vmcnt({n})')
            lines.append('s_barrier')
            if t + 3 <= 8:
                pend = pgroup(t + 3)
            elif t + 1 == 7:
                pend = kdma(0) + kdma(1)
            elif t + 1 == 8:
                pend = kdma(2)
            else:
                pend = vdma(0) + vdma(1)
        if f + LA < NF:
            fill += prd(f + LA)
        take = pend[:2]
        pend = pend[2:]
        mf = []
        hd, db = u // 8, u % 8
        for rb in range(2):
            acc = O + (hd * 2 + rb) * 32 + db * 4
            b = HR + (t % 4) * 16 + (kk % 2) * 8 + rb * 4
            c = '0' if kk == 0 else q4('a', acc)
            mf.append(f'{MF} {q4("a", acc)}, {q4("a", KF + 4*(f % 16))}, {q4("v", b)}, {c}')
        lines += place(mf, fill + take)
    assert not pend
    lines, _ = insert_lgkm(lines)
    for ln in lines:
        k(ln)
    k(f's_mov_b32 s44, {hx(f2u(SCALE * LOG2E))}')
    k('s_nop 6')
    for qb in range(4):
        for s in range(4):
            t = S + ((qb * 4 + s) % 2) * 16
            for j in range(8):
                k(f'v_accvgpr_read_b32 v{t+j}, a{O + qb*32 + s*8 + j}')
            if not mimic:
                for j in range(0, 8, 2):
                    rnd_pair(k, t + j, t + j + 1, t + 8)
                for j in range(8):
                    k(f'v_mul_f32 v{t+j}, s44, v{t+j}')
            for j in range(4):
                k(f'v_cvt_pk_bf16_f32 v{t+8+j}, v{t+2*j}, v{t+2*j+1}')
            k('s_nop 1')
            k(f'v_permlane32_swap_b32 v{t+8}, v{t+10}')
            k(f'v_permlane32_swap_b32 v{t+9}, v{t+11}')
            k('s_nop 1')
            k(f'v_permlane16_swap_b32 v{t+8}, v{t+10}')
            k(f'v_permlane16_swap_b32 v{t+9}, v{t+11}')
            for j in range(4):
                k(f'v_accvgpr_write_b32 a{Q + qb*16 + s*4 + j}, v{t+8+j}')
    k(f's_mov_b32 s46, {hx(f2u(SCALE))}')
    k(f's_mov_b32 s47, {hx(f2u(LOG2E))}')
    k('s_mov_b32 s48, 0xffff0000')

    def sreg(buf, qb, kb):
        return S + buf * 32 + qb * 8 + kb * 4

    def kread(j, u):
        T, ht = j // 2, j % 2
        off = (T % 4) * 16384 + (ht * 2 + u // 4) * 4096
        return [(f'ds_read_b128 {q4("a", KF + 4*u)}, v{KA + u % 4} offset:{off}', 1)]

    def vread(j, u):
        T, ht = j // 2, j % 2
        off = (T % 4) * 16384 + ht * 8192
        return [(f'ds_read_b64_tr_b16 {q2("a", VF + 4*u)}, v{VA + u} offset:{off}', 1),
                (f'ds_read_b64_tr_b16 {q2("a", VF + 4*u + 2)}, v{VA + u} offset:{off + 4096}', 1)]

    def qk_mf(j, u, czero=False):
        kb, s = u // 4, u % 4
        out = []
        for qb in range(4):
            d = sreg(j % 2, qb, kb)
            if s == 0:
                c = '0' if (czero or mimic) else q4('v', NM + 4 * qb)
            else:
                c = q4('v', d)
            out.append(f'{MF} {q4("v", d)}, {q4("a", KF + 4*u)}, {q4("a", Q + qb*16 + s*4)}, {c}')
        return out

    def rowmax(buf):
        for qb in range(4):
            r = sreg(buf, qb, 0)
            k(f'v_max3_f32 v{TMP+qb}, v{r}, v{r+1}, v{MX+qb}')
            for i in range(2, 8, 2):
                k(f'v_max3_f32 v{TMP+qb}, v{r+i}, v{r+i+1}, v{TMP+qb}')
        for op in ('v_permlane16_swap_b32', 'v_permlane32_swap_b32'):
            for qb in range(4):
                k(f'v_mov_b32 v{TMP+4+qb}, v{TMP+qb}')
            k('s_nop 1')
            for qb in range(4):
                k(f'{op} v{TMP+qb}, v{TMP+4+qb}')
            for qb in range(4):
                k(f'v_max_f32 v{TMP+qb}, v{TMP+qb}, v{TMP+4+qb}')

    k('L_attn_entry:')
    lines = []
    for u in range(8):
        lines += [x[0] for x in kread(0, u)]
    for i in range(128):
        lines.append(f'v_accvgpr_write_b32 a{O+i}, 0')
    for i in range(16):
        lines.append(f'v_mov_b32 v{L+i}, 0')
    for u in range(8):
        lines += qk_mf(0, u, czero=True)
    for u in range(4):
        lines += [x[0] for x in kread(1, u)]
    lines, q = insert_lgkm(lines)
    for ln in lines:
        k(ln)
    k('s_nop 7')
    rowmax(0)
    if mimic:
        for qb in range(4):
            rnd_one(k, TMP + qb)
            k(f'v_mul_f32 v{TMP+qb}, s46, v{TMP+qb}')
            rnd_one(k, TMP + qb)
            k(f'v_mul_f32 v{NM+4*qb}, s47, v{TMP+qb}')
            k(f'v_sub_f32 v{NM+4*qb}, 0, v{NM+4*qb}')
    else:
        for qb in range(4):
            for i in range(4):
                k(f'v_sub_f32 v{NM+4*qb+i}, 0, v{TMP+qb}')
            for i in range(8):
                r = sreg(0, qb, 0) + i
                k(f'v_sub_f32 v{r}, v{r}, v{TMP+qb}')
    k('s_mov_b32 s40, 7')
    k(f's_mov_b32 s41, {hx(3*16384)}')

    def softmax(j):
        va = []
        b = j % 2
        n = 0
        prev = None
        for kb in range(2):
            for qb in range(4):
                for h in range(2):
                    s0 = sreg(b, qb, kb) + 2 * h
                    t0 = TMP + 2 * (n % 4)
                    n += 1
                    if mimic:
                        va += [(f'v_cvt_pk_bf16_f32 v{t0}, v{s0}, v{s0+1}', 1),
                               (f'v_and_b32 v{t0+1}, s48, v{t0}', 1), (f'v_lshlrev_b32 v{t0}, 16, v{t0}', 1),
                               (f'v_mul_f32 v{t0+1}, s46, v{t0+1}', 1), (f'v_mul_f32 v{t0}, s46, v{t0}', 1),
                               (f'v_cvt_pk_bf16_f32 v{t0}, v{t0}, v{t0+1}', 1),
                               (f'v_and_b32 v{t0+1}, s48, v{t0}', 1), (f'v_lshlrev_b32 v{t0}, 16, v{t0}', 1),
                               (f'v_fma_f32 v{t0+1}, v{t0+1}, s47, v{NM+4*qb}', 1),
                               (f'v_fma_f32 v{t0}, v{t0}, s47, v{NM+4*qb}', 1),
                               (f'v_exp_f32 v{t0+1}, v{t0+1}', 2), (f'v_exp_f32 v{t0}, v{t0}', 2)]
                    else:
                        va += [(f'v_exp_f32 v{t0}, v{s0}', 2), (f'v_exp_f32 v{t0+1}, v{s0+1}', 2)]
                    if prev:
                        va.append(prev)
                    prev = (f'v_cvt_pk_bf16_f32 v{P + b*16 + qb*4 + kb*2 + h}, v{t0}, v{t0+1}', 1)
        va.append(('s_nop 0', 1))
        va.append(prev)
        return va

    def step(j, dyn):
        do_qk = j + 1 <= 63
        do_sm = j <= 63
        do_pv = j >= 1
        va = softmax(j) if do_sm else []
        nva = len(va)
        lines = []
        T = j // 2
        dm = []
        if j <= 62:
            if j % 2 == 0:
                dm = [(f's_add_u32 m0, s38, {((T+3) % 4)*16384}', 1)]
                dm += [(f'buffer_load_dwordx4 v{DK+i}, s[8:11], s41 offen offset:{1024*i} lds', 1) for i in range(4)]
            else:
                dm = [(f's_add_u32 m0, s38, {65536 + ((T+2) % 4)*16384}', 1), (f's_sub_u32 s42, s41, 16384', 1)]
                dm += [(f'buffer_load_dwordx4 v{DV + i % 2}, s[12:15], s42 offen offset:{1024*i} lds', 1) for i in range(4)]
                dm += [(f's_add_u32 s41, s41, 16384', 1)]
        for u in range(8):
            mf = []
            if do_qk:
                mf += qk_mf(j + 1, u)
            if do_pv:
                pb = P + ((j - 1) % 2) * 16
                for qb in range(4):
                    o = O + qb * 32 + u * 4
                    mf.append(f'{MF} {q4("a", o)}, {q4("a", VF + 4*u)}, {q4("v", pb + qb*4)}, {q4("a", o)}')
                if u % 2 == 0:
                    qb = u // 2
                    mf.append(f'{MF} {q4("v", L + 4*qb)}, {q4("v", ONE)}, {q4("v", pb + qb*4)}, {q4("v", L + 4*qb)}')
            oth = []
            pre = []
            if u == 4 and j % 2 == 0 and j <= 62:
                pre = [f's_waitcnt vmcnt({4 if j == 0 else 8})', 's_barrier']
            if u < 4:
                if do_qk:
                    oth += kread(j + 1, u + 4)
                if do_pv:
                    oth += vread(j - 1, u + 4)
            else:
                if j + 2 <= 63:
                    oth += kread(j + 2, u - 4)
                if j <= 63:
                    oth += vread(j, u - 4)
            if dm:
                if j % 2 == 0:
                    if u == 4:
                        oth = oth + dm[:2]
                    elif u > 4:
                        oth = oth + [dm[u - 3]]
                else:
                    if u == 0:
                        oth = oth + dm[:3]
                    elif u in (2, 4):
                        oth = oth + [dm[2 + u // 2]]
                    elif u == 6:
                        oth = oth + dm[5:]
            cats = []
            v = va[u * nva // 8:(u + 1) * nva // 8]
            if v:
                cats.append(v)
            if oth:
                cats.append(oth)
            fill = merge(cats) if cats else []
            g = place(mf, fill)
            lines += g[:1] + pre + g[1:]
        return lines

    def fix_m0(lines):
        out = []
        for i, ln in enumerate(lines):
            out.append(ln)
            if ln.startswith('s_add_u32 m0') and lines[i + 1].endswith(' lds'):
                out.append('s_nop 0')
        return out

    l0, q = insert_lgkm(fix_m0(step(0, False)), q)
    for ln in l0:
        k(ln)
    body = []
    for j in range(1, 9):
        body.append(fix_m0(step(j, True)))
    qq = q
    first = []
    qexit = None
    for j in range(8):
        o, qq = insert_lgkm(body[j], qq)
        first.append(o)
    second = []
    for j in range(8):
        o, qq = insert_lgkm(body[j], qq)
        second.append(o)
        if j == 5:
            qexit = qq
    assert first == second, 'loop not in steady state'
    k('.p2align 6')
    k('L_attn_loop:')
    for j in range(8):
        for ln in first[j]:
            k(ln)
        if j == 5:
            k('s_cmp_eq_u32 s40, 0')
            k('s_cbranch_scc1 L_attn_tail')
    k('s_sub_u32 s40, s40, 1')
    k('s_branch L_attn_loop')
    k('L_attn_tail:')
    o, qq = insert_lgkm(step(63, False) + ['s_nop 1'] + step(64, False), qexit)
    for ln in o:
        k(ln)
    k('s_nop 7')
    for qb in range(4):
        k(f'v_rcp_f32 v{TMP+qb}, v{L+4*qb}')
    k(f'v_max3_f32 v{TMP+4}, v{L}, v{L+4}, v{L+8}')
    k(f'v_max_f32 v{TMP+4}, v{TMP+4}, v{L+12}')
    k(f'v_mov_b32 v{TMP+5}, 0')
    k(f'v_mov_b32 v{TMP+6}, 0')
    for qb in range(4):
        for i in range(32):
            t = S + (i % 8)
            k(f'v_accvgpr_read_b32 v{t}, a{O + qb*32 + i}')
            k(f'v_mul_f32 v{t}, v{t}, v{TMP+qb}')
            if i % 2:
                d = HR + qb * 16 + i // 2
                k(f'v_cvt_pk_bf16_f32 v{d}, v{t-1}, v{t}')
                k(f'v_dot2_f32_bf16 v{TMP+5}, v{d}, v{TMP+6}, v{TMP+5}')
    k(f's_mov_b32 s3, {hx(f2u(2.0**100))}')
    k(f'v_cmp_ngt_f32 vcc, s3, v{TMP+4}')
    k('s_nop 3')
    k(f'v_cmp_u_f32 s[50:51], v{TMP+5}, v{TMP+5}')
    k('s_nop 3')
    k('s_or_b64 s[50:51], s[50:51], vcc')
    k('s_cmp_lg_u32 s45, 0')
    k('s_cbranch_scc1 L_attn_store')
    k('s_cmp_eq_u64 s[50:51], 0')
    k('s_cbranch_scc1 L_attn_noflag')
    k(f'v_mov_b32 v3, 0x20000')
    k(f'v_mov_b32 v4, 1')
    k('ds_write_b32 v3, v4')
    k('L_attn_noflag:')
    k('s_waitcnt vmcnt(0) lgkmcnt(0)')
    k('s_barrier')
    k(f'v_mov_b32 v3, 0x20000')
    k('ds_read_b32 v4, v3')
    k('s_waitcnt lgkmcnt(0)')
    k('v_readfirstlane_b32 s3, v4')
    k('s_cmp_eq_u32 s3, 0')
    k('s_cbranch_scc1 L_attn_store')
    k('s_mov_b32 s45, 1')
    k('s_mov_b32 s41, 0')
    k('L_attn_maxloop:')
    k('s_barrier')
    k('s_mov_b32 m0, s38')
    k('s_nop 0')
    for i in range(4):
        k(f'buffer_load_dwordx4 v{DK+i}, s[8:11], s41 offen offset:{1024*i} lds')
    k('s_waitcnt vmcnt(0)')
    k('s_barrier')
    for ht in range(2):
        lines = []
        for u in range(8):
            lines += [x[0] for x in kread(ht, u)]
        for u in range(8):
            lines += qk_mf(0, u, czero=True)
        lines, _ = insert_lgkm(lines)
        for ln in lines:
            k(ln)
        k('s_nop 7')
        rowmax(0)
        for qb in range(4):
            k(f'v_mov_b32 v{MX+qb}, v{TMP+qb}')
    k('s_add_u32 s41, s41, 16384')
    k(f's_cmp_lt_u32 s41, {hx(524288)}')
    k('s_cbranch_scc1 L_attn_maxloop')
    k('s_barrier')
    for ins, _ in kdma(0) + kdma(1) + kdma(2) + vdma(0) + vdma(1):
        k(ins)
    k('s_waitcnt vmcnt(16)')
    k('s_barrier')
    k('s_branch L_attn_entry')
    k('L_attn_store:')
    for qb in range(4):
        k(f's_mov_b32 s3, {hx((qb % 2)*131072 + (qb // 2)*4096)}')
        for s in range(4):
            k(f'buffer_store_dwordx4 {q4("v", HR + qb*16 + s*4)}, v{OST}, s[24:27], s3 offen offset:{1024*s}')
    k('L_attn_end:')
    k('s_endpgm')
    return k
```

```python
import re
import struct


def f2u(x):
    return struct.unpack('<I', struct.pack('<f', x))[0]


def hx(x):
    return '0x%x' % (x & 0xffffffff)


class K:
    def __init__(self, name, grid, block, lds, nvgpr=256, nagpr=0, nsgpr=96):
        self.name = name
        self.grid = grid
        self.block = block
        self.lds = lds
        self.nvgpr = nvgpr
        self.nagpr = nagpr
        self.nsgpr = nsgpr
        self.lines = []
        self._lab = 0

    def __call__(self, s):
        for ln in s.split('\n'):
            ln = ln.strip()
            if ln:
                self.lines.append(ln)

    def label(self, base):
        self._lab += 1
        return f'L_{self.name}_{base}_{self._lab}'

    def srd(self, r, lo, hi, nbytes):
        self(f's_mov_b32 s{r}, {lo}')
        self(f's_mov_b32 s{r+1}, {hi}')
        self(f's_mov_b32 s{r+2}, {nbytes if isinstance(nbytes, str) else hx(nbytes)}')
        self(f's_mov_b32 s{r+3}, 0x20000')

    def srd_off(self, r, lo, hi, off, nbytes):
        o = off if isinstance(off, str) else hx(off)
        self(f's_add_u32 s{r}, {lo}, {o}')
        self(f's_addc_u32 s{r+1}, {hi}, 0')
        self(f's_mov_b32 s{r+2}, {nbytes if isinstance(nbytes, str) else hx(nbytes)}')
        self(f's_mov_b32 s{r+3}, 0x20000')

    def text(self):
        out = [f'.globl {self.name}', '.p2align 8', f'.type {self.name},@function', f'{self.name}:']
        for ln in self.lines:
            if ln.endswith(':') or ln.startswith('.'):
                out.append(ln)
            else:
                out.append('    ' + ln)
        return '\n'.join(out) + '\n'

    def desc(self):
        acc = (self.nvgpr + 3) // 4 * 4
        nfv = acc + self.nagpr if self.nagpr else self.nvgpr
        return f'''.p2align 6
.amdhsa_kernel {self.name}
  .amdhsa_next_free_vgpr {nfv}
  .amdhsa_next_free_sgpr {self.nsgpr}
  .amdhsa_accum_offset {acc}
  .amdhsa_group_segment_fixed_size 0
  .amdhsa_kernarg_size 120
  .amdhsa_user_sgpr_count 2
  .amdhsa_user_sgpr_kernarg_segment_ptr 1
  .amdhsa_system_sgpr_workgroup_id_x 1
.end_amdhsa_kernel
'''


HEADER = '''; Kernarg layout for this problem (120 bytes, ptrs only, base s[0:1]):
'''

ARG = dict(x=0, k=8, v=16, wq=24, wo=32, bx=40, wr=48, wg=56, wu=64, wd=72, c=80, wmod=88, out=96, dbg=104, ws=112)


def assemble(kernels, launches=None):
    launches = launches or kernels
    s = HEADER
    for k in launches:
        s += f'; @launch kernel={k.name} grid=({k.grid},1,1) block=({k.block},1,1) lds={k.lds}\n'
    s += '.amdgcn_target "amdgcn-amd-amdhsa--gfx950"\n.text\n'
    for k in kernels:
        s += k.text()
    s += '.section .rodata,"a"\n'
    for k in kernels:
        s += k.desc()
    return s


def merge(cats):
    items = []
    for ci, c in enumerate(cats):
        tot = sum(x[1] for x in c)
        acc = 0
        for n, (ins, cost) in enumerate(c):
            items.append(((acc + cost / 2) / tot, ci, n, ins, cost))
            acc += cost
    items.sort(key=lambda x: (x[0], x[1], x[2]))
    return [(x[3], x[4]) for x in items]


def place(mf, fill):
    n = len(mf)
    tot = sum(c for _, c in fill)
    out = []
    j = 0
    acc = 0
    for i in range(n):
        out.append(mf[i])
        target = tot * (i + 1) / n
        while j < len(fill) and acc + fill[j][1] / 2 <= target:
            out.append(fill[j][0])
            acc += fill[j][1]
            j += 1
    while j < len(fill):
        out.append(fill[j][0])
        j += 1
    return out


_REG = re.compile(r'\b([va])(?:\[(\d+):(\d+)\]|(\d+))')


def regs_of(opnd):
    out = set()
    for m in _REG.finditer(opnd):
        t = m.group(1)
        if m.group(2):
            for i in range(int(m.group(2)), int(m.group(3)) + 1):
                out.add((t, i))
        else:
            out.add((t, int(m.group(4))))
    return out


def insert_lgkm(lines, pending=None):
    q = list(pending or [])
    out = []
    for ln in lines:
        op = ln.split()[0]
        if op == 's_waitcnt':
            m = re.search(r'lgkmcnt\((\d+)\)', ln)
            if m:
                n = int(m.group(1))
                while len(q) > n:
                    q.pop(0)
            out.append(ln)
            continue
        if ln.endswith(':') or op.startswith('s_') or op.startswith('.'):
            out.append(ln)
            continue
        used = regs_of(ln.split(None, 1)[1]) if ' ' in ln else set()
        need = -1
        for i, d in enumerate(q):
            if d & used:
                need = i
        if need >= 0:
            n = len(q) - need - 1
            assert n <= 15
            out.append(f's_waitcnt lgkmcnt({n})')
            q = q[need + 1:]
        if op.startswith('ds_read'):
            dst = regs_of(ln.split(None, 1)[1].split(',')[0])
            q.append(dst)
            if len(q) > 15:
                raise RuntimeError('too many outstanding LDS ops')
        elif op.startswith('ds_'):
            q.append(set())
        out.append(ln)
    return out, q
```

```python
from lib import *

WS_MOD = 0
WS_IDX = 14336
WS_R = 16384
WS_H = 32768
WS_X1 = WS_H + 2359296
WS_H2 = WS_X1 + 2359296
WS_O = WS_H2 + 2359296
WS_PART = WS_O + 16777216
WS_Y = WS_PART + 4 * 4718592
WS_END = WS_Y + 144 * 18432

LOG2E = 1.4426950408889634


def rnd_pair(k, a, b, t):
    k(f'v_cvt_pk_bf16_f32 v{t}, v{a}, v{b}')
    k(f'v_lshlrev_b32 v{a}, 16, v{t}')
    k(f'v_and_b32 v{b}, 0xffff0000, v{t}')


def rnd_one(k, a):
    k(f'v_cvt_pk_bf16_f32 v{a}, v{a}, v{a}')
    k(f'v_and_b32 v{a}, 0xffff0000, v{a}')


def red32(k, r, t, op='v_add_f32'):
    for sh in (1, 2, 4, 8):
        k('s_nop 1')
        k(f'{op}_dpp v{r}, v{r}, v{r} row_ror:{sh} row_mask:0xf bank_mask:0xf')
    k(f'v_mov_b32 v{t}, v{r}')
    k('s_nop 1')
    k(f'v_permlane16_swap_b32 v{r}, v{t}')
    k(f'{op} v{r}, v{r}, v{t}')


def gen_mod():
    k = K('mod_kernel', 108, 256, 512, nvgpr=72)
    k('s_cmp_ge_u32 s2, 108')
    k('s_cbranch_scc1 L_mod_end')
    k(f's_load_dwordx4 s[4:7], s[0:1], {ARG["c"]}')
    k(f's_load_dwordx2 s[20:21], s[0:1], {ARG["ws"]}')
    k('v_and_b32 v1, 3, v0')
    k('v_lshrrev_b32 v2, 2, v0')
    k('v_mul_u32_u24 v3, 6912, v2')
    k('v_lshl_add_u32 v3, v1, 4, v3')
    k('s_lshl_b32 s3, s2, 6')
    k('v_add_u32 v3, s3, v3')
    k('v_lshlrev_b32 v4, 1, v2')
    for i in range(9):
        k(f's_mov_b32 s{40+i}, {hx(i * 64 * 6912)}')
    k('s_waitcnt lgkmcnt(0)')
    k.srd(8, 's4', 's5', 1152)
    k.srd(12, 's6', 's7', 576 * 6912)
    k.srd(16, 's20', 's21', 13824)
    for i in range(9):
        k(f'buffer_load_ushort v{8+i}, v4, s[8:11], 0 offen offset:{128*i}')
    for i in range(9):
        k(f'buffer_load_dwordx4 v[{32+4*i}:{35+4*i}], v3, s[12:15], s{40+i} offen')
    k('s_waitcnt vmcnt(9)')
    for i in range(9):
        k(f'v_lshlrev_b32 v{8+i}, 16, v{8+i}')
    for i in range(9):
        k(f'v_mul_f32 v{18+i}, {hx(f2u(-LOG2E))}, v{8+i}')
    for i in range(9):
        k(f'v_exp_f32 v{18+i}, v{18+i}')
    for i in range(9):
        k(f'v_add_f32 v{18+i}, 1.0, v{18+i}')
    for i in range(9):
        k(f'v_rcp_f32 v{18+i}, v{18+i}')
    for i in range(9):
        k(f'v_mul_f32 v{8+i}, v{8+i}, v{18+i}')
    for i in range(9):
        rnd_one(k, 8 + i)
    for i in range(9):
        k(f's_waitcnt vmcnt({8-i})')
        for j in range(4):
            w = 32 + 4 * i + j
            k(f'v_lshlrev_b32 v28, 16, v{w}')
            k(f'v_and_b32 v29, 0xffff0000, v{w}')
            if i == 0:
                k(f'v_mul_f32 v{20+2*j}, v28, v8')
                k(f'v_mul_f32 v{21+2*j}, v29, v8')
            else:
                k(f'v_fmac_f32 v{20+2*j}, v28, v{8+i}')
                k(f'v_fmac_f32 v{21+2*j}, v29, v{8+i}')
    k('s_nop 1')
    for sh in (4, 8):
        for j in range(8):
            k(f'v_add_f32_dpp v{20+j}, v{20+j}, v{20+j} row_ror:{sh} row_mask:0xf bank_mask:0xf')
    k('s_nop 1')
    for j in range(0, 8, 2):
        k(f'v_permlane16_swap_b32 v{20+j}, v{21+j}')
    for j in range(0, 8, 2):
        k(f'v_add_f32 v{20+j}, v{20+j}, v{21+j}')
    k('s_nop 1')
    k('v_permlane32_swap_b32 v20, v22')
    k('v_permlane32_swap_b32 v24, v26')
    k('v_add_f32 v20, v20, v22')
    k('v_add_f32 v24, v24, v26')
    k('v_lshrrev_b32 v5, 6, v0')
    k('v_bfe_u32 v6, v0, 4, 2')
    k('v_lshlrev_b32 v5, 5, v5')
    k('v_lshl_add_u32 v5, v1, 3, v5')
    k('v_add_lshl_u32 v5, v5, v6, 2')
    k('ds_write_b32 v5, v20')
    k('ds_write_b32 v5, v24 offset:16')
    k('s_waitcnt lgkmcnt(0)')
    k('s_barrier')
    k('v_cmp_gt_u32 vcc, 32, v0')
    k('s_and_saveexec_b64 s[30:31], vcc')
    k('s_cbranch_execz L_mod_end')
    k('v_lshlrev_b32 v5, 2, v0')
    for w in range(4):
        k(f'ds_read_b32 v{20+w}, v5 offset:{128*w}')
    k('s_waitcnt lgkmcnt(0)')
    k('v_add_f32 v20, v20, v21')
    k('v_add_f32 v22, v22, v23')
    k('v_add_f32 v20, v20, v22')
    rnd_one(k, 20)
    k('s_lshl_b32 s3, s2, 7')
    k('buffer_store_dword v20, v5, s[16:19], s3 offen')
    k('L_mod_end:')
    k('s_endpgm')
    return k


def emit_ln(k, X, T):
    s, t, m, mb = T, T + 1, T + 2, T + 3
    D = T + 4
    k(f'v_add_f32 v{s}, v{X}, v{X+1}')
    k(f'v_add_f32 v{t}, v{X+2}, v{X+3}')
    for i in range(4, 18, 2):
        k(f'v_add_f32 v{s}, v{s}, v{X+i}')
        k(f'v_add_f32 v{t}, v{t}, v{X+i+1}')
    k(f'v_add_f32 v{s}, v{s}, v{t}')
    red32(k, s, t)
    k(f'v_mul_f32 v{m}, {hx(f2u(1.0/576))}, v{s}')
    for i in range(18):
        k(f'v_sub_f32 v{D+i}, v{X+i}, v{m}')
    k(f'v_mul_f32 v{s}, v{D}, v{D}')
    k(f'v_mul_f32 v{t}, v{D+1}, v{D+1}')
    for i in range(2, 18, 2):
        k(f'v_fmac_f32 v{s}, v{D+i}, v{D+i}')
        k(f'v_fmac_f32 v{t}, v{D+i+1}, v{D+i+1}')
    k(f'v_add_f32 v{s}, v{s}, v{t}')
    k(f'v_mov_b32 v{mb}, v{m}')
    rnd_one(k, mb)
    for i in range(18):
        k(f'v_sub_f32 v{X+i}, v{X+i}, v{mb}')
    red32(k, s, t)
    k(f'v_mul_f32 v{s}, {hx(f2u(1.0/576))}, v{s}')
    rnd_one(k, s)
    k(f'v_add_f32 v{s}, {hx(f2u(1e-5))}, v{s}')
    rnd_one(k, s)
    k(f'v_sqrt_f32 v{s}, v{s}')
    k('s_nop 0')
    rnd_one(k, s)
    k(f'v_rcp_f32 v{s}, v{s}')
    for i in range(0, 18, 2):
        rnd_pair(k, X + i, X + i + 1, t)
    for i in range(18):
        k(f'v_mul_f32 v{X+i}, v{X+i}, v{s}')
    for i in range(0, 18, 2):
        rnd_pair(k, X + i, X + i + 1, t)


def emit_modulate(k, X, C, S, t, PK):
    for i in range(18):
        k(f'v_add_f32 v{C+i}, 1.0, v{C+i}')
    for i in range(0, 18, 2):
        rnd_pair(k, C + i, C + i + 1, t)
    for i in range(18):
        k(f'v_mul_f32 v{X+i}, v{X+i}, v{C+i}')
    for i in range(0, 18, 2):
        rnd_pair(k, X + i, X + i + 1, t)
    for i in range(18):
        k(f'v_add_f32 v{X+i}, v{X+i}, v{S+i}')
    for i in range(0, 18, 2):
        k(f'v_cvt_pk_bf16_f32 v{PK+i//2}, v{X+i}, v{X+i+1}')


def unpack9(k, src, X):
    for i in range(9):
        k(f'v_lshlrev_b32 v{X+2*i}, 16, v{src+i}')
        k(f'v_and_b32 v{X+2*i+1}, 0xffff0000, v{src+i}')


def gen_ln1():
    k = K('ln1_kernel', 256, 256, 0, nvgpr=112)
    k('s_cmp_ge_u32 s2, 256')
    k('s_cbranch_scc1 L_ln1_end')
    k(f's_load_dwordx2 s[4:5], s[0:1], {ARG["x"]}')
    k(f's_load_dwordx2 s[6:7], s[0:1], {ARG["ws"]}')
    k('v_lshrrev_b32 v1, 5, v0')
    k('s_lshl_b32 s3, s2, 3')
    k('v_add_u32 v1, s3, v1')
    k('v_and_b32 v2, 31, v0')
    k('v_mul_u32_u24 v3, 1152, v1')
    k('v_lshl_add_u32 v3, v2, 2, v3')
    k('v_lshlrev_b32 v4, 3, v2')
    k('v_lshrrev_b32 v5, 4, v1')
    k('v_mul_u32_u24 v5, 18432, v5')
    k('v_lshrrev_b32 v6, 2, v2')
    k('v_lshl_add_u32 v5, v6, 8, v5')
    k('v_and_b32 v6, 15, v1')
    k('v_lshl_add_u32 v5, v6, 4, v5')
    k('v_and_b32 v6, 3, v2')
    k('v_lshl_add_u32 v5, v6, 2, v5')
    k('s_mov_b32 s30, 2304')
    for i in range(9):
        k(f's_mov_b32 s{40+i}, {2048*i}')
    k('s_waitcnt lgkmcnt(0)')
    k.srd(8, 's4', 's5', 2359296)
    k.srd(12, 's6', 's7', 13824)
    k.srd_off(16, 's6', 's7', WS_H, 2359296)
    XL, X, C, S, T = 8, 18, 36, 54, 72
    for i in range(9):
        k(f'buffer_load_dword v{XL+i}, v3, s[8:11], 0 offen offset:{128*i}')
    for i in range(9):
        k(f'buffer_load_dwordx2 v[{S+2*i}:{S+2*i+1}], v4, s[12:15], 0 offen offset:{256*i}')
    for i in range(9):
        k(f'buffer_load_dwordx2 v[{C+2*i}:{C+2*i+1}], v4, s[12:15], s30 offen offset:{256*i}')
    k('s_waitcnt vmcnt(18)')
    unpack9(k, XL, X)
    emit_ln(k, X, T)
    k('s_waitcnt vmcnt(0)')
    emit_modulate(k, X, C, S, T, XL)
    for i in range(9):
        k(f'buffer_store_dword v{XL+i}, v5, s[16:19], s{40+i} offen')
    k('L_ln1_end:')
    k('s_endpgm')
    return k


def gen_ln2(nsplit=4):
    k = K('ln2_kernel', 256, 256, 0, nvgpr=224)
    k('s_cmp_ge_u32 s2, 256')
    k('s_cbranch_scc1 L_ln2_end')
    k(f's_load_dwordx2 s[4:5], s[0:1], {ARG["x"]}')
    k(f's_load_dwordx2 s[6:7], s[0:1], {ARG["ws"]}')
    k(f's_load_dwordx2 s[36:37], s[0:1], {ARG["wr"]}')
    k(f's_load_dwordx2 s[38:39], s[0:1], {ARG["out"]}')
    k('v_lshrrev_b32 v1, 5, v0')
    k('s_lshl_b32 s3, s2, 3')
    k('v_add_u32 v1, s3, v1')
    k('v_and_b32 v2, 31, v0')
    k('v_mul_u32_u24 v3, 1152, v1')
    k('v_lshl_add_u32 v3, v2, 2, v3')
    k('v_lshlrev_b32 v4, 3, v2')
    k('v_lshlrev_b32 v5, 1, v3')
    k('v_lshlrev_b32 v6, 2, v2')
    k('v_lshlrev_b32 v7, 2, v1')
    for i in range(4):
        k(f's_mov_b32 s{40+i}, {2304*(i+2)}')
        k(f's_mov_b32 s{44+i}, {4718592*i}')
    k('s_waitcnt lgkmcnt(0)')
    k.srd(8, 's4', 's5', 2359296)
    k.srd(12, 's6', 's7', 13824)
    k.srd_off(16, 's6', 's7', WS_PART, 4718592 * nsplit)
    k.srd(20, 's36', 's37', 1152)
    k.srd(24, 's38', 's39', 2359296)
    k.srd_off(28, 's6', 's7', WS_X1, 2 * 2359296)
    k.srd_off(32, 's6', 's7', WS_R, 8192)
    k(f's_mov_b32 s48, {2359296}')
    XL, WR, P, GA, SB, CB, GB, X, T = 8, 18, 28, 100, 118, 136, 154, 172, 190
    for j in range(nsplit):
        for i in range(9):
            k(f'buffer_load_dwordx2 v[{P+18*j+2*i}:{P+18*j+2*i+1}], v5, s[16:19], s{44+j} offen offset:{256*i}')
    for i in range(9):
        k(f'buffer_load_dword v{XL+i}, v3, s[8:11], 0 offen offset:{128*i}')
    for i in range(9):
        k(f'buffer_load_dwordx2 v[{GA+2*i}:{GA+2*i+1}], v4, s[12:15], s40 offen offset:{256*i}')
    k('s_waitcnt vmcnt(18)')
    for j, b in enumerate((SB, CB, GB)):
        for i in range(9):
            k(f'buffer_load_dwordx2 v[{b+2*i}:{b+2*i+1}], v4, s[12:15], s{41+j} offen offset:{256*i}')
    for i in range(9):
        k(f'buffer_load_dword v{WR+i}, v6, s[20:23], 0 offen offset:{128*i}')
    if nsplit == 4:
        for i in range(18):
            k(f'v_add_f32 v{P+i}, v{P+i}, v{P+18+i}')
            k(f'v_add_f32 v{P+36+i}, v{P+36+i}, v{P+54+i}')
        for i in range(18):
            k(f'v_add_f32 v{P+i}, v{P+i}, v{P+36+i}')
    else:
        for j in range(1, nsplit):
            for i in range(18):
                k(f'v_add_f32 v{P+i}, v{P+i}, v{P+18*j+i}')
    for i in range(0, 18, 2):
        rnd_pair(k, P + i, P + i + 1, T)
    k('s_waitcnt vmcnt(36)')
    unpack9(k, XL, X)
    for i in range(18):
        k(f'v_mul_f32 v{P+i}, v{P+i}, v{GA+i}')
    for i in range(0, 18, 2):
        rnd_pair(k, P + i, P + i + 1, T)
    for i in range(18):
        k(f'v_add_f32 v{X+i}, v{X+i}, v{P+i}')
    for i in range(0, 18, 2):
        k(f'v_cvt_pk_bf16_f32 v{XL+i//2}, v{X+i}, v{X+i+1}')
    unpack9(k, XL, X)
    unpack9(k, XL, P)
    for i in range(9):
        k(f'buffer_store_dword v{XL+i}, v3, s[28:31], 0 offen offset:{128*i}')
    emit_ln(k, X, T)
    k('s_waitcnt vmcnt(9)')
    PK = P + 18
    emit_modulate(k, X, CB, SB, T, PK)
    for i in range(9):
        k(f'buffer_store_dword v{PK+i}, v3, s[28:31], s48 offen offset:{128*i}')
    unpack9(k, PK, X)
    W = P + 36
    unpack9(k, WR, W)
    k(f'v_mul_f32 v{T}, v{X}, v{W}')
    k(f'v_mul_f32 v{T+1}, v{X+1}, v{W+1}')
    for i in range(2, 18, 2):
        k(f'v_fmac_f32 v{T}, v{X+i}, v{W+i}')
        k(f'v_fmac_f32 v{T+1}, v{X+i+1}, v{W+i+1}')
    k(f'v_add_f32 v{T}, v{T}, v{T+1}')
    for i in range(18):
        k(f'v_mul_f32 v{X+i}, v{X+i}, v{GB+i}')
    for i in range(0, 18, 2):
        rnd_pair(k, X + i, X + i + 1, T + 2)
    for i in range(18):
        k(f'v_add_f32 v{X+i}, v{X+i}, v{P+i}')
    OUT = P + 54
    for i in range(0, 18, 2):
        k(f'v_cvt_pk_bf16_f32 v{OUT+i//2}, v{X+i}, v{X+i+1}')
    for i in range(9):
        k(f'buffer_store_dword v{OUT+i}, v3, s[24:27], 0 offen offset:{128*i}')
    red32(k, T, T + 1)
    k('v_cmp_eq_u32 vcc, 0, v2')
    k('s_and_saveexec_b64 s[50:51], vcc')
    k(f'buffer_store_dword v{T}, v7, s[32:35], 0 offen')
    k('L_ln2_end:')
    k('s_endpgm')
    return k


def gen_moe1():
    LG, LU, LD, LX = 0, 36864, 73728, 110592
    k = K('moe1_kernel', 144, 256, 114688, nvgpr=160)
    k('s_cmp_ge_u32 s2, 144')
    k('s_cbranch_scc1 L_moe1_end')
    k(f's_load_dwordx4 s[4:7], s[0:1], {ARG["wg"]}')
    k(f's_load_dwordx2 s[36:37], s[0:1], {ARG["wd"]}')
    k(f's_load_dwordx2 s[38:39], s[0:1], {ARG["ws"]}')
    k('v_lshrrev_b32 v1, 6, v0')
    k('v_and_b32 v2, 63, v0')
    k('v_readfirstlane_b32 s33, v1')
    k('v_lshrrev_b32 v3, 2, v2')
    k('v_mul_u32_u24 v3, 9216, v3')
    k('v_and_b32 v4, 3, v2')
    k('v_lshl_add_u32 v3, v4, 4, v3')
    k('s_lshl_b32 s3, s2, 6')
    k('v_add_u32 v3, s3, v3')
    k('v_lshlrev_b32 v4, 4, v2')
    k('v_lshlrev_b32 v5, 7, v2')
    k('s_waitcnt lgkmcnt(0)')
    k.srd(8, 's4', 's5', 576 * 9216)
    k.srd(12, 's6', 's7', 576 * 9216)
    k.srd(16, 's36', 's37', 4608 * 1152)
    k.srd_off(20, 's38', 's39', WS_R, 8192)
    k.srd_off(24, 's38', 's39', WS_H2, 2359296)
    k('s_mul_i32 s34, s2, 18432')
    k(f's_add_u32 s34, s34, {WS_Y}')
    k.srd_off(28, 's38', 's39', 's34', 18432)
    k.srd_off(44, 's38', 's39', WS_IDX, 32)
    R = 16
    for i in range(8):
        k(f'buffer_load_dwordx4 v[{R+4*i}:{R+4*i+3}], v5, s[20:23], 0 offen offset:{16*i}')
    k('s_lshl_b32 s40, s33, 10')
    k('s_mul_i32 s41, s33, 147456')
    k('s_mul_i32 s42, s2, 36864')
    k('s_add_u32 s42, s42, s40')
    for i in range(9):
        k(f's_add_u32 m0, s40, {LG + 4096*i}')
        k('s_nop 0')
        k('buffer_load_dwordx4 v3, s[8:11], s41 offen lds')
        k(f's_add_u32 m0, s40, {LU + 4096*i}')
        k('s_nop 0')
        k('buffer_load_dwordx4 v3, s[12:15], s41 offen lds')
        k(f's_add_u32 s41, s41, {4*147456}')
    for i in range(9):
        k(f's_add_u32 m0, s40, {LD + 4096*i}')
        k('s_nop 0')
        k('buffer_load_dwordx4 v4, s[16:19], s42 offen lds')
        k(f's_add_u32 s42, s42, 4096')
    k('s_waitcnt vmcnt(27)')
    k('v_lshlrev_b32 v6, 5, v2')
    k('s_mov_b32 s35, 0xfffff800')
    for i in range(32):
        k(f'v_ashrrev_i32 v8, 31, v{R+i}')
        k(f'v_or_b32 v8, 0x80000000, v8')
        k(f'v_xor_b32 v{R+i}, v{R+i}, v8')
        k(f'v_add_u32 v9, {i}, v6')
        k(f'v_and_or_b32 v{R+i}, v{R+i}, s35, v9')
    k('v_mov_b32 v7, -1')
    k('v_and_b32 v10, 7, v2')
    k('v_mov_b32 v11, 0')
    TT = 48
    for rnd in range(8):
        for i in range(32):
            k(f'v_sub_u32 v{TT+i}, v7, v{R+i}')
        n = 32
        k(f'v_min_u32 v8, v{TT}, v{TT+1}')
        k(f'v_min_u32 v9, v{TT+2}, v{TT+3}')
        for i in range(4, 32, 4):
            k(f'v_min3_u32 v8, v8, v{TT+i}, v{TT+i+1}')
            k(f'v_min3_u32 v9, v9, v{TT+i+2}, v{TT+i+3}')
        k('v_min_u32 v8, v8, v9')
        red32(k, 8, 9, 'v_min_u32')
        k('v_mov_b32 v9, v8')
        k('s_nop 1')
        k('v_permlane32_swap_b32 v8, v9')
        k('v_min_u32 v8, v8, v9')
        k('v_sub_u32 v8, v7, v8')
        k(f'v_cmp_eq_u32 vcc, {rnd}, v10')
        k('v_subrev_u32 v7, 1, v8')
        k('v_and_b32 v9, 0x7ff, v8')
        k('v_cndmask_b32 v11, v11, v9, vcc')
    k('s_or_b32 s3, s2, s33')
    k('s_cmp_lg_u32 s3, 0')
    k('s_cbranch_scc1 L_moe1_noidx')
    k('v_lshlrev_b32 v8, 2, v2')
    k('buffer_store_dword v11, v8, s[44:47], 0 offen')
    k('L_moe1_noidx:')
    k('v_mul_u32_u24 v12, 1152, v11')
    k('v_lshrrev_b32 v13, 4, v2')
    k('v_lshl_add_u32 v12, v13, 4, v12')
    B = 16
    for kk in range(18):
        k(f'buffer_load_dwordx4 v[{B+4*kk}:{B+4*kk+3}], v12, s[24:27], 0 offen offset:{64*kk}')
    k('v_bfe_u32 v8, v2, 2, 2')
    k('v_lshl_add_u32 v8, v13, 3, v8')
    k('v_lshlrev_b32 v8, 6, v8')
    k('v_and_b32 v9, 3, v2')
    k('v_lshl_add_u32 v8, v9, 3, v8')
    k('s_lshr_b32 s3, s33, 1')
    k('s_mul_i32 s3, s3, 36864')
    k('s_and_b32 s34, s33, 1')
    k('s_lshl_b32 s34, s34, 5')
    k('s_add_u32 s3, s3, s34')
    k('v_add_u32 v8, s3, v8')
    k('v_lshrrev_b32 v14, 2, v2')
    k('v_mul_u32_u24 v14, 1152, v14')
    k('v_lshl_add_u32 v14, v9, 3, v14')
    k('s_mul_i32 s3, s33, 288')
    k(f's_add_u32 s3, s3, {LD}')
    k('v_add_u32 v14, s3, v14')
    k('s_waitcnt vmcnt(0)')
    k('s_barrier')
    A = 88
    lines = []
    for kk in range(18):
        lines.append(f'ds_read_b64_tr_b16 v[{A+4*kk}:{A+4*kk+1}], v8 offset:{2048*kk}')
        lines.append(f'ds_read_b64_tr_b16 v[{A+4*kk+2}:{A+4*kk+3}], v8 offset:{2048*kk+256}')
        j = kk - 5
        if j >= 0:
            lines.append(f'v_mfma_f32_16x16x32_bf16 v[4:7], v[{A+4*j}:{A+4*j+3}], v[{B+4*j}:{B+4*j+3}], {"0" if j == 0 else "v[4:7]"}')
    for j in range(13, 18):
        lines.append(f'v_mfma_f32_16x16x32_bf16 v[4:7], v[{A+4*j}:{A+4*j+3}], v[{B+4*j}:{B+4*j+3}], v[4:7]')
    lines, _ = insert_lgkm(lines)
    for ln in lines:
        k(ln)
    k('v_lshlrev_b32 v9, 4, v0')
    k(f'v_add_u32 v9, {LX}, v9')
    k('v_lshlrev_b32 v10, 4, v2')
    k(f'v_add_u32 v10, {LX}, v10')
    k('s_nop 4')
    k('ds_write_b128 v9, v[4:7]')
    k('s_waitcnt lgkmcnt(0)')
    k('s_barrier')
    for t in range(4):
        k(f'ds_read_b128 v[{16+4*t}:{19+4*t}], v10 offset:{1024*t}')
    for i in range(5):
        k(f'ds_read_b64_tr_b16 v[{A+4*i}:{A+4*i+1}], v14 offset:{32*i}')
        k(f'ds_read_b64_tr_b16 v[{A+4*i+2}:{A+4*i+3}], v14 offset:{32*i+16*1152}')
    k('s_waitcnt lgkmcnt(10)')
    for i in range(0, 16, 2):
        rnd_pair(k, 16 + i, 17 + i, 32)
    for i in range(8):
        k(f'v_mul_f32 v{32+i}, {hx(f2u(-LOG2E))}, v{16+i}')
    for i in range(8):
        k(f'v_exp_f32 v{32+i}, v{32+i}')
    for i in range(8):
        k(f'v_add_f32 v{32+i}, 1.0, v{32+i}')
    for i in range(8):
        k(f'v_rcp_f32 v{32+i}, v{32+i}')
    for i in range(8):
        k(f'v_mul_f32 v{16+i}, v{16+i}, v{32+i}')
    for i in range(0, 8, 2):
        rnd_pair(k, 16 + i, 17 + i, 32)
    for i in range(8):
        k(f'v_mul_f32 v{16+i}, v{16+i}, v{24+i}')
    for i in range(0, 8, 2):
        k(f'v_cvt_pk_bf16_f32 v{40+i//2}, v{16+i}, v{17+i}')
    k('s_waitcnt lgkmcnt(0)')
    for i in range(5, 9):
        k(f'ds_read_b64_tr_b16 v[{A+4*i}:{A+4*i+1}], v14 offset:{32*i}')
        k(f'ds_read_b64_tr_b16 v[{A+4*i+2}:{A+4*i+3}], v14 offset:{32*i+16*1152}')
    k('v_and_b32 v8, 15, v2')
    k('v_mul_u32_u24 v8, 2304, v8')
    k('v_lshl_add_u32 v8, v13, 4, v8')
    k('s_mul_i32 s3, s33, 576')
    Y = 48
    for i in range(5):
        k(f'v_mfma_f32_16x16x32_bf16 v[{Y+4*i}:{Y+4*i+3}], v[{A+4*i}:{A+4*i+3}], v[40:43], 0')
    k('s_waitcnt lgkmcnt(0)')
    for i in range(5, 9):
        k(f'v_mfma_f32_16x16x32_bf16 v[{Y+4*i}:{Y+4*i+3}], v[{A+4*i}:{A+4*i+3}], v[40:43], 0')
    k('s_nop 7')
    for i in range(9):
        k(f'buffer_store_dwordx4 v[{Y+4*i}:{Y+4*i+3}], v8, s[28:31], s3 offen offset:{64*i}')
    k('L_moe1_end:')
    k('s_endpgm')
    return k


def gen_moe2():
    k = K('moe2_kernel', 72, 256, 1024, nvgpr=64)
    for w in range(72):
        assert (w * 57) >> 9 == w // 9
    k('s_cmp_ge_u32 s2, 72')
    k('s_cbranch_scc1 L_moe2_end')
    k(f's_load_dwordx2 s[38:39], s[0:1], {ARG["ws"]}')
    k(f's_load_dwordx2 s[36:37], s[0:1], {ARG["out"]}')
    k('s_mul_i32 s33, s2, 57')
    k('s_lshr_b32 s33, s33, 9')
    k('s_mul_i32 s34, s33, 9')
    k('s_sub_u32 s34, s2, s34')
    k('v_and_b32 v1, 15, v0')
    k('v_lshrrev_b32 v2, 4, v0')
    k(f'v_mul_u32_u24 v3, {9*18432}, v2')
    k('v_lshl_add_u32 v3, v1, 4, v3')
    k('s_mul_i32 s3, s33, 2304')
    k('s_lshl_b32 s35, s34, 8')
    k('s_add_u32 s3, s3, s35')
    k('v_add_u32 v3, s3, v3')
    k('s_lshl_b32 s40, s33, 2')
    k('v_mov_b32 v4, s40')
    for i in range(9):
        k(f's_mov_b32 s{50+i}, {18432*i}')
    k('s_waitcnt lgkmcnt(0)')
    k.srd_off(8, 's38', 's39', WS_Y, 144 * 18432)
    k.srd_off(12, 's38', 's39', WS_IDX, 32)
    k.srd_off(16, 's38', 's39', WS_R, 8192)
    k.srd_off(20, 's38', 's39', WS_X1, 2 * 2359296)
    k.srd(24, 's36', 's37', 2359296)
    k.srd(28, 's38', 's39', 13824)
    k('buffer_load_dword v5, v4, s[12:15], 0 offen')
    for i in range(9):
        k(f'buffer_load_dwordx4 v[{16+4*i}:{19+4*i}], v3, s[8:11], s{50+i} offen')
    k('v_lshlrev_b32 v6, 4, v1')
    k(f's_add_u32 s41, s35, {5*2304}')
    k('buffer_load_dwordx4 v[52:55], v6, s[28:31], s41 offen')
    k('s_waitcnt vmcnt(10)')
    k('v_and_b32 v5, 0x7ff, v5')
    k('v_lshlrev_b32 v7, 2, v5')
    k('buffer_load_dword v8, v7, s[16:19], 0 offen')
    k('v_mul_u32_u24 v9, 1152, v5')
    k('v_lshl_add_u32 v9, v1, 3, v9')
    k('s_lshl_b32 s42, s34, 7')
    k('v_add_u32 v9, s42, v9')
    k(f's_mov_b32 s43, 2359296')
    k('buffer_load_dwordx2 v[10:11], v9, s[20:23], 0 offen')
    k('buffer_load_dwordx2 v[12:13], v9, s[20:23], s43 offen')
    k('s_waitcnt vmcnt(4)')
    for i in range(1, 9):
        for j in range(4):
            k(f'v_add_f32 v{16+j}, v{16+j}, v{16+4*i+j}')
    for j in range(4):
        k(f'v_mov_b32 v{20+j}, v{16+j}')
    k('s_nop 1')
    for j in range(4):
        k(f'v_permlane16_swap_b32 v{16+j}, v{20+j}')
    for j in range(4):
        k(f'v_add_f32 v{16+j}, v{16+j}, v{20+j}')
    for j in range(4):
        k(f'v_mov_b32 v{20+j}, v{16+j}')
    k('s_nop 1')
    for j in range(4):
        k(f'v_permlane32_swap_b32 v{16+j}, v{20+j}')
    for j in range(4):
        k(f'v_add_f32 v{16+j}, v{16+j}, v{20+j}')
    k('v_lshrrev_b32 v14, 6, v0')
    k('v_lshlrev_b32 v14, 8, v14')
    k('v_add_u32 v14, v14, v6')
    k('ds_write_b128 v14, v[16:19]')
    k('s_waitcnt lgkmcnt(0)')
    k('s_barrier')
    k('v_cmp_gt_u32 vcc, 16, v0')
    k('s_and_saveexec_b64 s[44:45], vcc')
    k('s_cbranch_execz L_moe2_end')
    for w in range(4):
        k(f'ds_read_b128 v[{16+4*w}:{19+4*w}], v6 offset:{256*w}')
    k('s_waitcnt vmcnt(0)')
    rnd_one(k, 8)
    k(f'v_mul_f32 v8, {hx(f2u(-LOG2E))}, v8')
    k('v_exp_f32 v8, v8')
    k('s_nop 0')
    k('v_add_f32 v8, 1.0, v8')
    k('v_rcp_f32 v8, v8')
    k('s_nop 0')
    rnd_one(k, 8)
    k('s_waitcnt lgkmcnt(0)')
    for j in range(4):
        k(f'v_add_f32 v{16+j}, v{16+j}, v{20+j}')
        k(f'v_add_f32 v{24+j}, v{24+j}, v{28+j}')
    for j in range(4):
        k(f'v_add_f32 v{16+j}, v{16+j}, v{24+j}')
    rnd_pair(k, 16, 17, 20)
    rnd_pair(k, 18, 19, 20)
    for j in range(4):
        k(f'v_mul_f32 v{16+j}, v{16+j}, v8')
    rnd_pair(k, 16, 17, 20)
    rnd_pair(k, 18, 19, 20)
    for j in range(2):
        k(f'v_lshlrev_b32 v{24+2*j}, 16, v{12+j}')
        k(f'v_and_b32 v{25+2*j}, 0xffff0000, v{12+j}')
        k(f'v_lshlrev_b32 v{28+2*j}, 16, v{10+j}')
        k(f'v_and_b32 v{29+2*j}, 0xffff0000, v{10+j}')
    for j in range(4):
        k(f'v_add_f32 v{16+j}, v{16+j}, v{24+j}')
    rnd_pair(k, 16, 17, 20)
    rnd_pair(k, 18, 19, 20)
    for j in range(4):
        k(f'v_mul_f32 v{16+j}, v{16+j}, v{52+j}')
    rnd_pair(k, 16, 17, 20)
    rnd_pair(k, 18, 19, 20)
    for j in range(4):
        k(f'v_add_f32 v{16+j}, v{16+j}, v{28+j}')
    k('v_cvt_pk_bf16_f32 v20, v16, v17')
    k('v_cvt_pk_bf16_f32 v21, v18, v19')
    k('buffer_store_dwordx2 v[20:21], v9, s[24:27], 0 offen')
    k('L_moe2_end:')
    k('s_endpgm')
    return k
```

```python
import sys
from lib import *
from small import *
from big import *
def build(mimic=False):
    ks = [gen_mod(), gen_ln1(), gen_attn(mimic), gen_oproj(), gen_ln2(), gen_moe1(), gen_moe2()]
    return assemble(ks)
if __name__ == '__main__':
    out = sys.argv[1]
    mimic = 'mimic' in sys.argv[2:]
    open(out, 'w').write(build(mimic))
```

```python
from lib import *
from small import *

MF = 'v_mfma_f32_16x16x32_bf16'
SCALE = 128 ** -0.5


def q4(t, r):
    return f'{t}[{r}:{r+3}]'


def q2(t, r):
    return f'{t}[{r}:{r+1}]'


def gen_attn(opt=None):
    opt = opt or {}
    dbl = opt.get('dbl', True)
    bias = opt.get('bias', 0.0)
    k = K('attn_kernel', 256, 256, 131072 + 64, nvgpr=256, nagpr=192)
    O, KF, VF = 0, 128, 160
    KA, VA, DK, DV = 8, 12, 20, 24
    OST = 26
    MX = 28
    TMP = 32
    ONE = 40
    NM = 44
    L = 60
    P = 76
    S = 108
    QA = 44
    WA, DW, PF = 172, 180, 184
    Q = HR = 188
    WA2 = TMP
    stats = []
    E = k

    def emit(lines):
        for ln in lines:
            k(ln)

    k('s_cmp_ge_u32 s2, 256')
    k('s_cbranch_scc1 L_attn_exit')
    k.stamp()
    k(f's_load_dwordx4 s[52:55], s[0:1], {ARG["wq"]}')
    k(f's_load_dwordx2 s[30:31], s[0:1], {ARG["ws"]}')
    k(f's_load_dwordx4 s[4:7], s[0:1], {ARG["k"]}')
    k('v_lshrrev_b32 v1, 6, v0')
    k('v_and_b32 v2, 63, v0')
    k('v_readfirstlane_b32 s33, v1')
    k('s_and_b32 s34, s2, 7')
    k('s_lshl_b32 s34, s34, 1')
    k('s_bfe_u32 s3, s2, 0x10003')
    k('s_add_u32 s34, s34, s3')
    k('s_lshr_b32 s35, s2, 4')
    k('v_lshrrev_b32 v3, 5, v2')
    k('v_and_b32 v4, 1, v1')
    k('v_lshl_add_u32 v4, v4, 2, v3')
    k('v_lshlrev_b32 v4, 1, v4')
    k('v_and_b32 v5, 31, v2')
    k('v_xor_b32 v4, v4, v5')
    k('v_lshl_add_u32 v3, v1, 3, v3')
    k('v_lshlrev_b32 v3, 13, v3')
    k(f'v_lshl_add_u32 v{DW}, v4, 4, v3')
    k(f'v_xor_b32 v{DW+1}, 64, v{DW}')
    k(f'v_add_u32 v{DW+1}, {2*8192-1024}, v{DW+1}')
    k(f'v_add_u32 v{DW+2}, {4*8192-2048}, v{DW}')
    k(f'v_add_u32 v{DW+3}, {4*8192-2048}, v{DW+1}')
    k(f'v_lshlrev_b32 v{OST}, 4, v2')
    k(f'v_add_u32 v{OST+1}, 18432, v{OST}')
    k('s_lshl_b32 s3, s34, 9')
    k(f's_sub_u32 s18, {hx(576*8192)}, s3')
    k('s_lshl_b32 s37, s35, 3')
    k('s_lshl_b32 s36, s33, 1')
    k('s_add_u32 s37, s37, s36')
    k('s_mul_i32 s36, s37, 18432')
    k(f's_add_u32 s36, s36, {hx(WS_H)}')
    k('s_lshl_b32 s38, s33, 12')
    k('s_waitcnt lgkmcnt(0)')
    k.srd_off(16, 's52', 's53', 's3', 's18')
    k.srd_off(20, 's30', 's31', 's36', 2 * 18432)

    def wslot(t):
        return ((t + 3) % 4) * 32768

    def pgroup(t):
        g = []
        for h in range(2):
            kk = 2 * t + h
            g.append(f's_mov_b32 s42, {hx(kk*262144)}')
            g.append(f's_add_u32 m0, s38, {wslot(t) + h*16384}')
            g.append(f's_mov_b32 s43, {hx(kk*1024)}')
            for rb in range(2):
                r = HR + (t % 4) * 16 + h * 8 + rb * 4
                g.append(f'buffer_load_dwordx4 {q4("v", r)}, v{OST+rb}, s[20:23], s43 offen ;@W{t}')
            for i in range(4):
                g.append(f'buffer_load_dwordx4 v{DW+i}, s[16:19], s42 offen offset:{1024*i} lds ;@W{t}')
        return g
    lines, vq = resolve_vm(pgroup(0) + pgroup(1) + pgroup(2))
    emit(lines)
    k(f's_load_dwordx4 s[44:47], s[0:1], {ARG["wg"]}')
    k(f's_load_dwordx2 s[72:73], s[0:1], {ARG["x"]}')
    k(f's_load_dwordx2 s[76:77], s[0:1], {ARG["out"]}')
    k(f's_load_dwordx2 s[28:29], s[0:1], {ARG["wd"]}')
    k('s_lshl_b32 s3, s34, 19')
    k.srd_off(8, 's4', 's5', 's3', 524288)
    k.srd_off(12, 's6', 's7', 's3', 524288)
    k('s_lshl_b32 s3, s34, 7')
    k('s_add_u32 s3, s3, s37')
    k('s_mul_i32 s3, s3, 18432')
    k(f's_add_u32 s3, s3, {hx(WS_PART)}')
    k.srd_off(24, 's30', 's31', 's3', 2 * 18432)
    k(f's_mul_i32 s3, s34, {256*1152}')
    k.srd_off(56, 's54', 's55', 's3', 256 * 1152)
    k('v_and_b32 v3, 15, v2')
    k('v_lshrrev_b32 v4, 4, v2')
    k('v_xor_b32 v5, v3, v4')
    k('v_lshlrev_b32 v6, 8, v3')
    for s in range(4):
        k(f'v_xor_b32 v7, {4*s}, v5')
        k(f'v_lshl_add_u32 v{KA+s}, v7, 4, v6')
    k('s_lshl_b32 s3, s33, 4')
    k('v_add_u32 v6, s3, v4')
    k('v_lshlrev_b32 v6, 8, v6')
    for i in range(4):
        k(f'v_xor_b32 v7, {4*i}, v5')
        k(f'v_lshl_add_u32 v{DK+i}, v7, 4, v6')
    for i in range(2):
        k(f'v_add_u32 v7, {4*i}, v4')
        k('v_lshlrev_b32 v7, 1, v7')
        k('v_xor_b32 v7, v7, v3')
        k(f'v_lshl_add_u32 v{DV+i}, v7, 4, v6')
    k('v_lshrrev_b32 v3, 2, v2')
    k('v_and_b32 v4, 3, v2')
    k('v_lshlrev_b32 v5, 8, v3')
    k('v_lshl_add_u32 v5, v4, 3, v5')
    k('v_add_u32 v5, 0x10000, v5')
    k('v_and_b32 v6, 7, v3')
    for db in range(8):
        k(f'v_xor_b32 v7, {db}, v6')
        k(f'v_lshl_add_u32 v{VA+db}, v7, 5, v5')
    k('v_bfe_u32 v3, v2, 2, 2')
    k('v_lshrrev_b32 v5, 4, v2')
    k('v_lshl_add_u32 v6, v5, 3, v3')
    k('v_lshlrev_b32 v6, 9, v6')
    k('v_lshl_add_u32 v6, v4, 3, v6')
    k('v_and_b32 v5, 1, v5')
    k('v_lshl_add_u32 v5, v5, 2, v3')
    for u in range(8):
        k(f'v_xor_b32 v7, {u}, v5')
        k(f'v_lshl_add_u32 v{WA+u}, v7, 5, v6')
        k(f'v_add_u32 v{WA2+u}, 0x10000, v{WA+u}')
    for i in range(4):
        k(f'v_mov_b32 v{ONE+i}, 0x3f803f80')
        k(f'v_mov_b32 v{MX+i}, 0xff800000')
    for i in range(128):
        k(f'v_accvgpr_write_b32 a{O+i}, 0')
    k('v_lshrrev_b32 v3, 3, v2')
    k('v_lshl_add_u32 v3, v1, 5, v3')
    k('v_mul_u32_u24 v3, 1152, v3')
    k('v_lshrrev_b32 v4, 4, v2')
    k('v_lshlrev_b32 v4, 1, v4')
    k('v_and_b32 v5, 7, v2')
    k('v_xor_b32 v4, v4, v5')
    k('v_lshl_add_u32 v252, v4, 4, v3')
    k('v_lshrrev_b32 v3, 2, v2')
    k('v_lshlrev_b32 v3, 7, v3')
    k('v_and_b32 v4, 3, v2')
    k('v_lshl_add_u32 v3, v4, 3, v3')
    k('v_bfe_u32 v4, v2, 3, 2')
    k('v_lshl_add_u32 v253, v4, 5, v3')
    k('s_waitcnt lgkmcnt(0)')
    k.srd(60, 's44', 's45', 576 * 9216)
    k.srd(64, 's46', 's47', 576 * 9216)
    k.srd(68, 's28', 's29', 4608 * 1152)
    k('s_mov_b32 s74, 2359296')
    k('s_mov_b32 s75, 0x20000')
    k('s_mov_b32 s78, 2359296')
    k('s_mov_b32 s79, 0x20000')
    k.srd_off(48, 's30', 's31', WS_X1, WS_END - WS_X1)
    PFS = {0: 60, 1: 64, 2: 68}
    k('v_lshlrev_b32 v254, 7, v2')
    k('v_lshlrev_b32 v255, 3, v2')
    k('s_lshl_b32 s39, s2, 2')
    k('s_add_u32 s39, s39, s33')
    k('s_lshl_b32 s36, s39, 13')
    k('s_mul_i32 s37, s39, 2304')
    k('s_mul_i32 s39, s39, 5184')
    k('s_lshl_b32 s32, s35, 2')
    k('s_add_u32 s32, s32, s33')
    k('s_mul_i32 s32, s32, 4608')
    k('s_mov_b32 s45, 0')
    k(f's_mov_b32 s44, {hx(f2u(SCALE * LOG2E))}')
    k(f's_mov_b32 s46, {hx(f2u(bias))}')

    def kdma(T, tag=None):
        g = [f's_add_u32 m0, s38, {(T % 4)*16384}', f's_mov_b32 s42, {hx(T*16384)}']
        for i in range(4):
            g.append(f'buffer_load_dwordx4 v{DK+i}, s[8:11], s42 offen offset:{1024*i} lds ;@K{T % 4}')
        return g

    def vdma(T):
        g = [f's_add_u32 m0, s38, {65536 + (T % 4)*16384}', f's_mov_b32 s42, {hx(T*16384)}']
        for i in range(4):
            g.append(f'buffer_load_dwordx4 v{DV + i % 2}, s[12:15], s42 offen offset:{1024*i} lds ;@V{T % 4}')
        return g

    def gemm(nf, rd, mf_of, at_bar, extra=None, first_bar_items=None, LA=6):
        pre = []
        for f in range(LA):
            pre += rd(f)
        mf = []
        rs, ns, ds = [], [], []
        if first_bar_items:
            n = len(first_bar_items)
            for i, x in enumerate(first_bar_items):
                ds.append(It(x, 1, lo=0, hi=2 + (i * 44) // n, sep=x.startswith('buffer')))
        for f in range(nf):
            mf += mf_of(f)
            if (f + LA) % 32 == 0:
                ab = at_bar(f // 32)
                if ab:
                    tags, dm, span = ab
                    rs.append(It(f'VWAIT {tags}', 1, lo=2*f - 2, hi=2*f))
                    b = It('s_barrier', 1, lo=2*f - 2, hi=2*f)
                    rs.append(b)
                    n = len(dm)
                    for i, x in enumerate(dm):
                        ds.append(It(x, 1, lo=2*f + 1 + (i * span) // n - 4, hi=2*f + 2 + (i * span) // n,
                                     sep=x.startswith('buffer'), after=[b]))
            if f + LA < nf:
                for i, x in enumerate(rd(f + LA)):
                    rs.append(It(x, 1, lo=2*f - 1, hi=2*f + i))
            if f % 2 == 0 and f > 0:
                r = KF + 4 * (f % 16)
                ns.append(It(f'NEED a[{r}:{r+7}]', 1, lo=2*f - 1, hi=2*f - 1))
        streams = [ns, rs, ds] + (extra or [])
        return pre + sched(mf, streams, stats=stats)

    lines, vq = resolve_vm(['VWAIT W0', 's_barrier'], vq)
    emit(lines)
    k.stamp()

    def prd(f):
        kk, u = f // 16, f % 16
        t = kk // 2
        base = wslot(t) + (kk % 2) * 16384 + (u // 8) * 256
        a = (WA if base < 65536 else WA2) + u % 8
        base %= 65536
        r = KF + 4 * (f % 16)
        return [f'ds_read_b64_tr_b16 {q2("a", r)}, v{a} offset:{base}',
                f'ds_read_b64_tr_b16 {q2("a", r+2)}, v{a} offset:{base + 2048}']

    def pmf(f):
        kk, u = f // 16, f % 16
        t = kk // 2
        out = []
        for rb in range(2):
            acc = QA + ((u // 8) * 2 + rb) * 32 + (u % 8) * 4
            b = HR + (t % 4) * 16 + (kk % 2) * 8 + rb * 4
            c = '0' if kk == 0 else q4('v', acc)
            out.append(f'{MF} {q4("v", acc)}, {q4("a", KF + 4*(f % 16))}, {q4("v", b)}, {c}')
        return out

    def pbar(t):
        if t + 3 <= 8:
            return f'W{t+1}', pgroup(t + 3), 50
        if t == 6:
            return 'W7', kdma(0) + kdma(1), 50
        if t == 7:
            return 'W8', kdma(2), 30
        return 'K0', vdma(0) + vdma(1), 9
    lines = gemm(288, prd, pmf, pbar)
    lines, vq = resolve_vm(lines, vq)
    lines, _ = insert_lgkm(lines)
    emit(lines)
    k.stamp()

    def sreg(buf, qb, kb):
        return S + buf * 32 + qb * 8 + kb * 4

    def kread(j, u):
        T, ht = j // 2, j % 2
        off = (T % 4) * 16384 + (ht * 2 + u // 4) * 4096
        return [f'ds_read_b128 {q4("a", KF + 4*u)}, v{KA + u % 4} offset:{off}']

    def vread(j, u):
        T, ht = j // 2, j % 2
        off = (T % 4) * 16384 + ht * 8192
        return [f'ds_read_b64_tr_b16 {q2("a", VF + 4*u)}, v{VA + u} offset:{off}',
                f'ds_read_b64_tr_b16 {q2("a", VF + 4*u + 2)}, v{VA + u} offset:{off + 4096}']

    def qk1(j, u, qb, czero=False):
        kb, s = u // 4, u % 4
        d = sreg(j % 2, qb, kb)
        if s == 0:
            c = '0' if czero else q4('v', NM + 4 * qb)
        else:
            c = q4('v', d)
        return f'{MF} {q4("v", d)}, {q4("a", KF + 4*u)}, {q4("v", Q + qb*16 + s*4)}, {c}'

    k(f'v_mov_b32 v{DW}, v252')
    for i in range(1, 4):
        k(f'v_add_u32 v{DW+i}, {i*(8*1152-1024)}, v252')
    for nbl in range(4):
        k(f'v_xor_b32 v{WA+nbl}, {nbl*32}, v253')
        k(f'v_add_u32 v{WA+4+nbl}, 0x10000, v{WA+nbl}')

    def qconv(qb):
        out = []
        a = QA + qb * 32
        d = Q + qb * 16
        if dbl:
            for j in range(16):
                out.append(f'v_cvt_pk_bf16_f32 v{d+j}, v{a+2*j}, v{a+2*j+1}')
            for j in range(16):
                out.append(f'v_lshlrev_b32 v{a+2*j}, 16, v{d+j}')
                out.append(f'v_and_b32 v{a+2*j+1}, 0xffff0000, v{d+j}')
        for j in range(32):
            out.append(f'v_mul_f32 v{a+j}, s44, v{a+j}')
        for j in range(16):
            out.append(f'v_cvt_pk_bf16_f32 v{d+j}, v{a+2*j}, v{a+2*j+1}')
        for op in ('v_permlane32_swap_b32', 'v_permlane16_swap_b32'):
            for s in range(4):
                out.append(f'{op} v{d+4*s}, v{d+4*s+2}')
                out.append(f'{op} v{d+4*s+1}, v{d+4*s+3}')
        return out
    USLOT = [0, 1, 4, 2, 5, 3, 6, 7]

    def wodma(U):
        src = (U % 2) * 128 * 1152 + (U // 2) * 128
        g = [f's_add_u32 m0, s38, {USLOT[U % 8]*16384}', f's_mov_b32 s42, {hx(src)}']
        for i in range(4):
            g.append(f'buffer_load_dwordx4 v{DW+i}, s[56:59], s42 offen offset:{1024*i} lds ;@U{U}')
        return g

    def localmax(buf, qb):
        r = sreg(buf, qb, 0)
        out = [f'v_max3_f32 v{TMP+qb}, v{r}, v{r+1}, v{MX+qb}']
        for i in range(2, 8, 2):
            out.append(f'v_max3_f32 v{TMP+qb}, v{r+i}, v{r+i+1}, v{TMP+qb}')
        return out

    def crossmax():
        out = []
        for op in ('v_permlane16_swap_b32', 'v_permlane32_swap_b32'):
            for qb in range(4):
                out.append(f'v_mov_b32 v{TMP+4+qb}, v{TMP+qb}')
            out.append('s_nop 0')
            for qb in range(4):
                out.append(f'{op} v{TMP+qb}, v{TMP+4+qb}')
            for qb in range(4):
                out.append(f'v_max_f32 v{TMP+qb}, v{TMP+qb}, v{TMP+4+qb}')
        return out
    lines = []
    for u in range(8):
        lines += kread(0, u)
    lines += qconv(2)
    order = [2, 0, 1, 3]
    for i in range(3):
        lines += place([qk1(0, u, order[i], True) for u in range(8)], [(x, 1) for x in qconv(order[i + 1])])
    lines.append('s_nop 1')
    fin = localmax(0, 2) + localmax(0, 0) + localmax(0, 1) + [f'v_mov_b32 v{L+i}, 0' for i in range(4)]
    lines += place([qk1(0, u, 3, True) for u in range(8)], [(x, 1) for x in fin])
    lines, _ = insert_lgkm(lines)
    emit(lines)
    k('s_branch L_attn_go')
    k('L_attn_entry:')
    lines = []
    for u in range(8):
        lines += kread(0, u)
    for i in range(128):
        lines.append(f'v_accvgpr_write_b32 a{O+i}, 0')
    for qb in order:
        for u in range(8):
            lines.append(qk1(0, u, qb, True))
    lines += fin
    lines, _ = insert_lgkm(lines)
    emit(lines)
    k('L_attn_go:')
    lines = []
    for u in range(4):
        lines += kread(1, u)
    lines += [f'v_mov_b32 v{L+i}, 0' for i in range(4, 16)]
    lines += localmax(0, 3) + crossmax()
    for qb in range(4):
        lines.append(f'v_add_f32 v{TMP+qb}, s46, v{TMP+qb}')
    for qb in range(4):
        for i in range(4):
            lines.append(f'v_sub_f32 v{NM+4*qb+i}, 0, v{TMP+qb}')
    for kb in range(2):
        for qb in range(4):
            for i in range(4):
                r = sreg(0, qb, kb) + i
                lines.append(f'v_sub_f32 v{r}, v{r}, v{TMP+qb}')
    lines, q = insert_lgkm(lines)
    emit(lines)
    k.stamp()
    k('s_mov_b32 s40, 7')
    k(f's_mov_b32 s41, {hx(2*16384)}')

    def step(j, extra=None):
        do_qk = j + 1 <= 63
        do_sm = j <= 63
        do_pv = j >= 1
        T = j // 2
        mf = []
        gs = []
        for u in range(8):
            gs.append(len(mf))
            pb = P + ((j - 1) % 2) * 16
            if do_qk:
                mf += [qk1(j + 1, u, qb) for qb in range(4)]
            if do_pv and j == 64 and u == 0:
                for qb in range(4):
                    mf.append(f'{MF} {q4("v", L + 4*qb)}, {q4("v", ONE)}, {q4("v", pb + qb*4)}, {q4("v", L + 4*qb)}')
            if do_pv:
                for qb in range(4):
                    o = O + qb * 32 + u * 4
                    mf.append(f'{MF} {q4("a", o)}, {q4("a", VF + 4*u)}, {q4("v", pb + qb*4)}, {q4("a", o)}')
                if u % 2 == 0 and j != 64:
                    qb = u // 2
                    mf.append(f'{MF} {q4("v", L + 4*qb)}, {q4("v", ONE)}, {q4("v", pb + qb*4)}, {q4("v", L + 4*qb)}')
        n = len(mf)
        gs.append(n)
        es, cs, rs, ns, ds = [], [], [], [], []
        if do_sm:
            b = j % 2
            e = 0
            for kb in range(2):
                for qb in range(4):
                    for h in range(2):
                        s0 = sreg(b, qb, kb) + 2 * h
                        t0 = TMP + 2 * ((e // 2) % 4)
                        pair = []
                        for i in range(2):
                            tg = (e * (n - 2)) // 32
                            it = It(f'v_exp_f32 v{t0+i}, v{s0+i}', 2, lo=tg - 1, hi=tg + 1,
                                    after=[cs[e // 2 - 4]] if e >= 8 else None)
                            es.append(it)
                            pair.append(it)
                            e += 1
                        cs.append(It(f'v_cvt_pk_bf16_f32 v{P + b*16 + qb*4 + kb*2 + h}, v{t0}, v{t0+1}', 1,
                                     hi=tg + 6, after=pair))
        bar = None
        for u in range(8):
            if u == 4 and j % 2 == 0 and j <= 62:
                rs.append(It(f'VWAIT K{(T+1) % 4},V{T % 4}', 1, lo=gs[4] - 1, hi=gs[4] + 1))
                bar = It('s_barrier', 1, lo=gs[4] - 1, hi=gs[4] + 1)
                rs.append(bar)
            rd = []
            if u < 4:
                if do_qk:
                    rd += kread(j + 1, u + 4)
                if do_pv:
                    rd += vread(j - 1, u + 4)
            else:
                if j + 2 <= 63:
                    rd += kread(j + 2, u - 4)
                if j <= 63:
                    rd += vread(j, u - 4)
            w = gs[u + 1] - gs[u]
            for i, x in enumerate(rd):
                rs.append(It(x, 1, lo=gs[u] - (2 if u else 0), hi=gs[u] + ((i + 1) * w) // len(rd) - 1))
            if u % 2 == 1:
                f = (u + 1) % 8
                ns.append(It(f'NEED a[{KF+4*f}:{KF+4*f+7}], a[{VF+4*f}:{VF+4*f+7}]', 1, lo=gs[u + 1] - 2, hi=gs[u + 1] - 1))
        special = {58: 0, 60: 1, 61: 2, 62: 3, 63: 4}
        dm = []
        if j in special:
            dm = wodma(special[j])
        elif j < 63:
            if j % 2 == 0:
                dm = [f's_add_u32 m0, s38, {((T+3) % 4)*16384}', 's_add_u32 s41, s41, 16384']
                dm += [f'buffer_load_dwordx4 v{DK+i}, s[8:11], s41 offen offset:{1024*i} lds ;@K{(T+3) % 4}' for i in range(4)]
            else:
                dm = [f's_add_u32 m0, s38, {65536 + ((T+2) % 4)*16384}', f's_sub_u32 s42, s41, {16384 if j < 58 else 0}']
                dm += [f'buffer_load_dwordx4 v{DV + i % 2}, s[12:15], s42 offen offset:{1024*i} lds ;@V{(T+2) % 4}' for i in range(4)]
                if j < 57 and opt.get('prefetch', True):
                    w = (j % 8) // 2
                    if w < 3:
                        dm.append(f'buffer_load_dwordx4 {q4("v", PF)}, v{OST}, s[{PFS[w]}:{PFS[w]+3}], s39 offen')
                    else:
                        dm.append(f'buffer_load_dwordx4 {q4("v", PF)}, v{OST}, s[56:59], s32 offen')
                        dm.append('s_add_u32 s39, s39, 768')
                        dm.append('s_add_u32 s32, s32, 768')
        if j % 2 == 0 and 2 <= j <= 56 and opt.get('prefetch', True):
            w = (j % 8) // 2
            pf = []
            if w == 1:
                pf = [f'buffer_load_dword v{PF}, v254, s[48:51], s36 offen', f's_add_u32 s36, s36, {8 << 20}']
            elif w == 2:
                pf = [f'buffer_load_dwordx2 {q2("v", PF)}, v255, s[72:75], s37 offen']
            elif w == 3:
                pf = [f'buffer_load_dwordx2 {q2("v", PF)}, v255, s[76:79], s37 offen', 's_add_u32 s37, s37, 384']
            for x in pf:
                ds.append(It(x, 2 if x.startswith('buffer') else 1, lo=8, hi=24))
        if dm:
            lo0 = gs[4] + 2 if j % 2 == 0 else 0
            nb = sum(x.startswith('buffer') for x in dm)
            ib = 0
            for x in dm:
                tg = lo0 + ((n - 1 - lo0) * (ib + 0.6)) // nb
                isb = x.startswith('buffer')
                ds.append(It(x, 2 if isb else 1, lo=(tg - 3 if isb else lo0), hi=min(n - 1, tg + 3), sep=isb,
                             after=[bar] if (bar and isb) else None))
                ib += isb
        return sched(mf, [ns, es, rs, cs, ds] + (extra or []), stats=stats)

    l0, vq = resolve_vm(step(0), vq)
    l0, q = insert_lgkm(l0, q)
    emit(l0)
    loopctl = [It('s_sub_u32 s40, s40, 1', 1, lo=40, hi=66)]
    body = []
    for j in range(1, 9):
        body += step(j)
    res = []
    for rep in range(2):
        o, vq = resolve_vm(body, vq)
        o, q = insert_lgkm(o, q)
        res.append(o)
    assert len(res[0]) == len(res[1]), 'loop not in steady state'
    for i, (a, b) in enumerate(zip(*res)):
        if a != b:
            ma, mb = re.match(r's_waitcnt (\w+)\((\d+)\)', a), re.match(r's_waitcnt (\w+)\((\d+)\)', b)
            assert ma and mb and ma.group(1) == mb.group(1), (a, b)
            res[0][i] = f's_waitcnt {ma.group(1)}({min(int(ma.group(2)), int(mb.group(2)))})'
    k('.p2align 6')
    k('L_attn_loop:')
    emit(res[0])
    k('s_sub_u32 s40, s40, 1')
    k('s_cmp_lg_u32 s40, 0')
    k('s_cbranch_scc1 L_attn_loop')
    tail = []
    for j in range(57, 64):
        tail += step(j)
    tail.append('s_nop 1')
    OF = S
    ACC = P
    PK = NM
    RI = TMP
    norm = []
    for qb in range(4):
        norm.append(It(f'v_rcp_f32 v{RI+qb}, v{L+4*qb}', 2, lo=12))
    norm.append(It(f'v_max3_f32 v{TMP+4}, v{L}, v{L+4}, v{L+8}', 1))
    norm.append(It(f'v_max_f32 v{TMP+4}, v{TMP+4}, v{L+12}', 1))
    tv = [1, 3, 4, 5, 6, 7, 252, 253]
    late = []
    for db in range(8):
        blk = []
        for half in range(2):
            for qb in (2 * half, 2 * half + 1):
                for i in range(4):
                    blk.append(f'v_accvgpr_read_b32 v{tv[(qb % 2)*4 + i]}, a{O + qb*32 + db*4 + i}')
            for qb in (2 * half, 2 * half + 1):
                for i in range(4):
                    t = tv[(qb % 2)*4 + i]
                    blk.append(f'v_mul_f32 v{t}, v{t}, v{RI+qb}')
            for qb in (2 * half, 2 * half + 1):
                for i in range(2):
                    blk.append(f'v_cvt_pk_bf16_f32 v{OF + qb*16 + db*2 + i}, v{tv[(qb % 2)*4 + 2*i]}, v{tv[(qb % 2)*4 + 2*i + 1]}')
        if db < 2:
            norm += [It(x, 1, lo=4 + 4 * (db + 1) + 7) for x in blk]
        else:
            late += blk
    tail += step(64, extra=[norm])
    tail += late
    ZR = L
    tail += [f'v_mov_b32 v{ZR+i}, 0' for i in range(4)]
    tail.append('s_nop 1')
    for i in range(16):
        tail.append(f'{MF} {q4("v", L+4)}, {q4("v", ZR)}, {q4("v", OF + 4*i)}, {"0" if i == 0 else q4("v", L+4)}')
        if i == 0:
            tail += ['VWAIT U0,U1', 's_barrier']
    o, vq = resolve_vm(tail, vq)
    o, q = insert_lgkm(o, q)
    emit(o)
    k.stamp()

    def ord_(f):
        nb, ks = f // 8, f % 8
        U = (nb // 4) * 2 + ks // 4
        sl = USLOT[U % 8]
        a = WA + (4 if sl >= 4 else 0) + nb % 4
        off = (sl % 4) * 16384 + (ks % 4) * 4096
        r = KF + 4 * (f % 16)
        return [f'ds_read_b64_tr_b16 {q2("a", r)}, v{a} offset:{off}',
                f'ds_read_b64_tr_b16 {q2("a", r+2)}, v{a} offset:{off + 2048}']

    def omf(f):
        nb, ks = f // 8, f % 8
        out = []
        for rb in range(2):
            acc = ACC + ((nb // 2) % 2) * 16 + (nb % 2) * 8 + rb * 4
            b = OF + ((ks // 4) * 2 + rb) * 16 + (ks % 4) * 4
            c = '0' if ks == 0 else q4('v', acc)
            out.append(f'{MF} {q4("v", acc)}, {q4("a", KF + 4*(f % 16))}, {q4("v", b)}, {c}')
        return out

    def obar(t):
        if t == 8:
            return None
        dm = wodma(2*t+6) + wodma(2*t+7) if (t >= 1 and t + 3 <= 8) else []
        return f'U{2*t+2},U{2*t+3}', dm, 50

    def flush_pair(p):
        out = []
        par = p % 2
        if p % 4 == 0:
            out.append(f's_mov_b32 s43, {p*1024}')
        for rb in range(2):
            for h in range(2):
                a = ACC + par * 16 + h * 8 + rb * 4
                for i in range(2):
                    out.append(f'v_cvt_pk_bf16_f32 v{PK + par*8 + rb*4 + h*2 + i}, v{a+2*i}, v{a+2*i+1}')
            out.append(f'buffer_store_dwordx4 {q4("v", PK + par*8 + rb*4)}, v{OST+rb}, s[24:27], s43 offen offset:{(p % 4)*1024} sc1')
        return out
    fl = []
    chk = [f's_mov_b32 s3, {hx(f2u(2.0**100))}', f'v_cmp_ngt_f32 vcc, s3, v{TMP+4}',
           f'v_cmp_u_f32 s[28:29], v{L+4}, v{L+4}', 's_lshl_b32 s3, s33, 2', 's_add_u32 s3, s3, 0x20000', 'v_mov_b32 v3, s3',
           's_or_b64 s[28:29], s[28:29], vcc\ns_cselect_b32 s3, 1, 0', 'v_mov_b32 v4, s3', 'ds_write_b32 v3, v4',
           'v_mov_b32 v3, 0x20000']
    for i, x in enumerate(chk):
        fl.append(It(x, 1 + x.count('\n'), lo=4 + 2 * i, hi=8 + 3 * i, sep=True))
    for p in range(17):
        items = flush_pair(p)
        g0 = 32 * (p + 1) + 5
        for i, x in enumerate(items):
            fl.append(It(x, 1, lo=g0, hi=g0 + 3 + (i * 22) // len(items)))
        if p == 8:
            fl.append(It('ds_read_b128 v[4:7], v3', 1, lo=g0, hi=g0 + 27))
    lines = gemm(288, ord_, omf, obar, extra=[fl], first_bar_items=wodma(5) + wodma(6) + wodma(7))
    lines = sum((x.split('\n') for x in lines), [])
    lines.append('v_or3_b32 v4, v4, v5, v6')
    lines.append('v_or_b32 v4, v4, v7')
    lines.append('s_nop 5')
    lines.append('v_readfirstlane_b32 s47, v4')
    lines += flush_pair(17)
    lines, vq = resolve_vm(lines, vq)
    lines, _ = insert_lgkm(lines)
    emit(lines)
    k.stamp()
    k('s_cmp_lg_u32 s45, 0')
    k('s_cbranch_scc1 L_attn_end')
    k('s_cmp_eq_u32 s47, 0')
    k('s_cbranch_scc1 L_attn_end')
    k('s_mov_b32 s45, 1')
    k('s_mov_b32 s46, 0')
    k('s_mov_b32 s41, 0')
    k('L_attn_maxloop:')
    k('s_barrier')
    k('s_mov_b32 m0, s38')
    k('s_nop 0')
    for i in range(4):
        k(f'buffer_load_dwordx4 v{DK+i}, s[8:11], s41 offen offset:{1024*i} lds')
    k('s_waitcnt vmcnt(0)')
    k('s_barrier')
    for ht in range(2):
        lines = []
        for u in range(8):
            lines += kread(ht, u)
        for u in range(8):
            lines += [qk1(0, u, qb, True) for qb in range(4)]
        lines.append('s_nop 7')
        for qb in range(4):
            lines += localmax(0, qb)
        for qb in range(4):
            lines.append(f'v_mov_b32 v{MX+qb}, v{TMP+qb}')
        lines, _ = insert_lgkm(lines)
        emit(lines)
    k('s_add_u32 s41, s41, 16384')
    k(f's_cmp_lt_u32 s41, {hx(524288)}')
    k('s_cbranch_scc1 L_attn_maxloop')
    k('s_barrier')
    lines, _ = resolve_vm(kdma(0) + kdma(1) + kdma(2) + vdma(0) + vdma(1) + ['VWAIT K0', 's_barrier'])
    emit(lines)
    k('s_branch L_attn_entry')
    k('L_attn_end:')
    k.stamp_end(2)
    k('L_attn_exit:')
    k('s_endpgm')
    k.stats = stats
    return k
```

```python
import re
import struct


def f2u(x):
    return struct.unpack('<I', struct.pack('<f', x))[0]


def hx(x):
    return '0x%x' % (x & 0xffffffff)


DIAG = {'on': False}
DIAG_OFF = 128 << 20


class K:
    def __init__(self, name, grid, block, lds, nvgpr=256, nagpr=0, nsgpr=96):
        self.name = name
        self.grid = grid
        self.block = block
        self.lds = lds
        self.nvgpr = nvgpr
        self.nagpr = nagpr
        self.nsgpr = nsgpr
        self.lines = []
        self._lab = 0

    def __call__(self, s):
        for ln in s.split('\n'):
            ln = ln.strip()
            if ln:
                self.lines.append(ln)

    def stamp(self):
        if not DIAG['on']:
            return
        n = self.nstamp = getattr(self, 'nstamp', 0) + 1
        assert n <= 8
        self(f's_memrealtime s[{78+2*n}:{79+2*n}]')
        self('s_waitcnt lgkmcnt(0)')

    def stamp_end(self, kid):
        if not DIAG['on']:
            return
        self('s_waitcnt vmcnt(0)')
        self.stamp()
        self('s_mov_b64 exec, -1')
        self(f's_load_dwordx2 s[60:61], s[0:1], 112')
        self('v_lshrrev_b32 v1, 6, v0')
        self('s_nop 1')
        self('v_readfirstlane_b32 s62, v1')
        self('s_waitcnt lgkmcnt(0)')
        self('s_and_b32 s62, s62, 3')
        self(f's_add_u32 s63, s2, {kid*256}')
        self('s_lshl_b32 s63, s63, 2')
        self('s_add_u32 s63, s63, s62')
        self('s_lshl_b32 s63, s63, 6')
        self(f's_add_u32 s63, s63, {hx(DIAG_OFF)}')
        self.srd_off(64, 's60', 's61', 's63', 64)
        self('v_mov_b32 v1, 0')
        for i in range(1, self.nstamp + 1):
            self(f'v_mov_b32 v2, s{78+2*i}')
            self(f'buffer_store_dword v2, v1, s[64:67], 0 offen offset:{4*(i-1)}')

    def label(self, base):
        self._lab += 1
        return f'L_{self.name}_{base}_{self._lab}'

    def srd(self, r, lo, hi, nbytes):
        self(f's_mov_b32 s{r}, {lo}')
        self(f's_mov_b32 s{r+1}, {hi}')
        self(f's_mov_b32 s{r+2}, {nbytes if isinstance(nbytes, str) else hx(nbytes)}')
        self(f's_mov_b32 s{r+3}, 0x20000')

    def srd_off(self, r, lo, hi, off, nbytes):
        o = off if isinstance(off, str) else hx(off)
        self(f's_add_u32 s{r}, {lo}, {o}')
        self(f's_addc_u32 s{r+1}, {hi}, 0')
        self(f's_mov_b32 s{r+2}, {nbytes if isinstance(nbytes, str) else hx(nbytes)}')
        self(f's_mov_b32 s{r+3}, 0x20000')

    def text(self):
        out = [f'.globl {self.name}', '.p2align 8', f'.type {self.name},@function', f'{self.name}:']
        for ln in self.lines:
            if ln.endswith(':') or ln.startswith('.'):
                out.append(ln)
            else:
                out.append('    ' + ln)
        return '\n'.join(out) + '\n'

    def desc(self):
        acc = (self.nvgpr + 3) // 4 * 4
        nfv = acc + self.nagpr if self.nagpr else self.nvgpr
        return f'''.p2align 6
.amdhsa_kernel {self.name}
  .amdhsa_next_free_vgpr {nfv}
  .amdhsa_next_free_sgpr {self.nsgpr}
  .amdhsa_accum_offset {acc}
  .amdhsa_group_segment_fixed_size 0
  .amdhsa_kernarg_size 120
  .amdhsa_user_sgpr_count 2
  .amdhsa_user_sgpr_kernarg_segment_ptr 1
  .amdhsa_system_sgpr_workgroup_id_x 1
.end_amdhsa_kernel
'''


HEADER = '''; Kernarg layout for this problem (120 bytes, ptrs only, base s[0:1]):
'''

ARG = dict(x=0, k=8, v=16, wq=24, wo=32, bx=40, wr=48, wg=56, wu=64, wd=72, c=80, wmod=88, out=96, dbg=104, ws=112)


def assemble(kernels, launches=None):
    launches = launches or kernels
    s = HEADER
    for k in launches:
        s += f'; @launch kernel={k.name} grid=({k.grid},1,1) block=({k.block},1,1) lds={k.lds}\n'
    s += '.amdgcn_target "amdgcn-amd-amdhsa--gfx950"\n.text\n'
    for k in kernels:
        s += k.text()
    s += '.section .rodata,"a"\n'
    for k in kernels:
        s += k.desc()
    return s


def merge(cats):
    items = []
    for ci, c in enumerate(cats):
        tot = sum(x[1] for x in c)
        acc = 0
        for n, (ins, cost) in enumerate(c):
            items.append(((acc + cost / 2) / tot, ci, n, ins, cost))
            acc += cost
    items.sort(key=lambda x: (x[0], x[1], x[2]))
    return [(x[3], x[4]) for x in items]


def place(mf, fill):
    n = len(mf)
    tot = sum(c for _, c in fill)
    out = []
    j = 0
    acc = 0
    for i in range(n):
        out.append(mf[i])
        target = tot * (i + 1) / n
        while j < len(fill) and acc + fill[j][1] / 2 <= target:
            out.append(fill[j][0])
            acc += fill[j][1]
            j += 1
    while j < len(fill):
        out.append(fill[j][0])
        j += 1
    return out


_REG = re.compile(r'\b([va])(?:\[(\d+):(\d+)\]|(\d+))')


def regs_of(opnd):
    out = set()
    for m in _REG.finditer(opnd):
        t = m.group(1)
        if m.group(2):
            for i in range(int(m.group(2)), int(m.group(3)) + 1):
                out.add((t, i))
        else:
            out.add((t, int(m.group(4))))
    return out


def insert_lgkm(lines, pending=None):
    q = list(pending or [])
    out = []
    for ln in lines:
        op = ln.split()[0]
        if op == 's_waitcnt':
            m = re.search(r'lgkmcnt\((\d+)\)', ln)
            if m:
                n = int(m.group(1))
                while len(q) > n:
                    q.pop(0)
            out.append(ln)
            continue
        if ln.endswith(':') or op.startswith('s_') or op.startswith('.'):
            out.append(ln)
            continue
        used = regs_of(ln.split(None, 1)[1]) if ' ' in ln else set()
        need = -1
        for i, d in enumerate(q):
            if d & used:
                need = i
        if need >= 0:
            n = len(q) - need - 1
            assert n <= 15
            out.append(f's_waitcnt lgkmcnt({n})')
            q = q[need + 1:]
        if op == 'NEED':
            continue
        if op.startswith('ds_read'):
            dst = regs_of(ln.split(None, 1)[1].split(',')[0])
            q.append(dst)
            if len(q) > 15:
                raise RuntimeError('too many outstanding LDS ops')
        elif op.startswith('ds_'):
            q.append(set())
        out.append(ln)
    return out, q


class It:
    __slots__ = ('t', 'c', 'lo', 'hi', 'sep', 'after')

    def __init__(self, t, c=1, lo=0, hi=10**9, sep=False, after=None):
        self.t = t
        self.c = c
        self.lo = lo
        self.hi = hi
        self.sep = sep
        self.after = after


def sched(mf, streams, cap=2, stats=None):
    n = len(mf)
    pos = [0] * len(streams)
    last = [-1] * len(streams)
    where = {}
    out = []
    over = 0
    for g in range(n):
        out.append(mf[g])
        room = cap
        while True:
            cand = []
            for si, s in enumerate(streams):
                if pos[si] >= len(s):
                    continue
                it = s[pos[si]]
                if it.lo > g and g != n - 1:
                    continue
                if it.sep and last[si] == g:
                    if g != n - 1:
                        continue
                if it.after and any(where.get(id(a), 10**9) >= g for a in it.after):
                    if g != n - 1 or any(id(a) not in where for a in it.after):
                        continue
                forced = it.hi <= g or g == n - 1
                if it.c <= room or forced:
                    cand.append((it.hi, si))
            if not cand:
                break
            cand.sort()
            si = cand[0][1]
            it = streams[si][pos[si]]
            if g == n - 1 and ((it.sep and last[si] == g) or (it.after and any(where[id(a)] == g for a in it.after))):
                out.append('s_nop 0')
                room -= 1
            out.append(it.t)
            where[id(it)] = g
            pos[si] += 1
            last[si] = g
            room -= it.c
        if room < 0:
            over += -room
    if stats is not None:
        stats.append(over)
    return out


def resolve_vm(lines, queue=None):
    q = list(queue or [])
    out = []
    for ln in lines:
        op = ln.split()[0]
        if op == 'VWAIT':
            tags = set(ln.split()[1].split(','))
            idx = [i for i, t in enumerate(q) if t in tags]
            if idx:
                n = len(q) - idx[-1] - 1
                assert n <= 63
                out.append(f's_waitcnt vmcnt({n})')
                q = q[idx[-1] + 1:]
            continue
        if op == 's_waitcnt':
            m = re.search(r'vmcnt\((\d+)\)', ln)
            if m:
                n = int(m.group(1))
                q = q[max(0, len(q) - n):] if n else []
        if op.startswith('buffer_') or op.startswith('global_'):
            tag = None
            if ' ;@' in ln:
                ln, tag = ln.split(' ;@')
            q.append(tag)
            assert len(q) <= 63, 'too many outstanding vmem'
        out.append(ln)
    return out, q
```

```python
from lib import *

WS_MOD = 0
WS_IDX = 14336
WS_R = 16384
WS_H = 32768
WS_X1 = WS_H + 2359296
WS_H2 = WS_X1 + 2359296
WS_O = WS_H2 + 2359296
WS_PART = WS_O
WS_Y = WS_PART + 16 * 2359296
WS_END = WS_Y + 144 * 18432

LOG2E = 1.4426950408889634


def rnd_pair(k, a, b, t):
    k(f'v_cvt_pk_bf16_f32 v{t}, v{a}, v{b}')
    k(f'v_lshlrev_b32 v{a}, 16, v{t}')
    k(f'v_and_b32 v{b}, 0xffff0000, v{t}')


def rnd_one(k, a):
    k(f'v_cvt_pk_bf16_f32 v{a}, v{a}, v{a}')
    k(f'v_and_b32 v{a}, 0xffff0000, v{a}')


def red32(k, r, t, op='v_add_f32'):
    for sh in (1, 2, 4, 8):
        k('s_nop 1')
        k(f'{op}_dpp v{r}, v{r}, v{r} row_ror:{sh} row_mask:0xf bank_mask:0xf')
    k(f'v_mov_b32 v{t}, v{r}')
    k('s_nop 1')
    k(f'v_permlane16_swap_b32 v{r}, v{t}')
    k(f'{op} v{r}, v{r}, v{t}')


def gen_mod():
    k = K('mod_kernel', 108, 256, 512, nvgpr=72)
    k('s_cmp_ge_u32 s2, 108')
    k('s_cbranch_scc1 L_mod_exit')
    k.stamp()
    k(f's_load_dwordx4 s[4:7], s[0:1], {ARG["c"]}')
    k(f's_load_dwordx2 s[20:21], s[0:1], {ARG["ws"]}')
    k('v_and_b32 v1, 3, v0')
    k('v_lshrrev_b32 v2, 2, v0')
    k('v_mul_u32_u24 v3, 6912, v2')
    k('v_lshl_add_u32 v3, v1, 4, v3')
    k('s_lshl_b32 s3, s2, 6')
    k('v_add_u32 v3, s3, v3')
    k('v_lshlrev_b32 v4, 1, v2')
    for i in range(9):
        k(f's_mov_b32 s{40+i}, {hx(i * 64 * 6912)}')
    k('s_waitcnt lgkmcnt(0)')
    k.srd(8, 's4', 's5', 1152)
    k.srd(12, 's6', 's7', 576 * 6912)
    k.srd(16, 's20', 's21', 13824)
    for i in range(9):
        k(f'buffer_load_ushort v{8+i}, v4, s[8:11], 0 offen offset:{128*i}')
    for i in range(9):
        k(f'buffer_load_dwordx4 v[{32+4*i}:{35+4*i}], v3, s[12:15], s{40+i} offen')
    k('s_waitcnt vmcnt(9)')
    for i in range(9):
        k(f'v_lshlrev_b32 v{8+i}, 16, v{8+i}')
    for i in range(9):
        k(f'v_mul_f32 v{18+i}, {hx(f2u(-LOG2E))}, v{8+i}')
    for i in range(9):
        k(f'v_exp_f32 v{18+i}, v{18+i}')
    for i in range(9):
        k(f'v_add_f32 v{18+i}, 1.0, v{18+i}')
    for i in range(9):
        k(f'v_rcp_f32 v{18+i}, v{18+i}')
    for i in range(9):
        k(f'v_mul_f32 v{8+i}, v{8+i}, v{18+i}')
    for i in range(9):
        rnd_one(k, 8 + i)
    for i in range(9):
        k(f's_waitcnt vmcnt({8-i})')
        for j in range(4):
            w = 32 + 4 * i + j
            k(f'v_lshlrev_b32 v28, 16, v{w}')
            k(f'v_and_b32 v29, 0xffff0000, v{w}')
            if i == 0:
                k(f'v_mul_f32 v{20+2*j}, v28, v8')
                k(f'v_mul_f32 v{21+2*j}, v29, v8')
            else:
                k(f'v_fmac_f32 v{20+2*j}, v28, v{8+i}')
                k(f'v_fmac_f32 v{21+2*j}, v29, v{8+i}')
    k('s_nop 1')
    for sh in (4, 8):
        for j in range(8):
            k(f'v_add_f32_dpp v{20+j}, v{20+j}, v{20+j} row_ror:{sh} row_mask:0xf bank_mask:0xf')
    k('s_nop 1')
    for j in range(0, 8, 2):
        k(f'v_permlane16_swap_b32 v{20+j}, v{21+j}')
    for j in range(0, 8, 2):
        k(f'v_add_f32 v{20+j}, v{20+j}, v{21+j}')
    k('s_nop 1')
    k('v_permlane32_swap_b32 v20, v22')
    k('v_permlane32_swap_b32 v24, v26')
    k('v_add_f32 v20, v20, v22')
    k('v_add_f32 v24, v24, v26')
    k('v_lshrrev_b32 v5, 6, v0')
    k('v_bfe_u32 v6, v0, 4, 2')
    k('v_lshlrev_b32 v5, 5, v5')
    k('v_lshl_add_u32 v5, v1, 3, v5')
    k('v_add_lshl_u32 v5, v5, v6, 2')
    k('ds_write_b32 v5, v20')
    k('ds_write_b32 v5, v24 offset:16')
    k('s_waitcnt lgkmcnt(0)')
    k('s_barrier')
    k('v_cmp_gt_u32 vcc, 32, v0')
    k('s_and_saveexec_b64 s[30:31], vcc')
    k('s_cbranch_execz L_mod_end')
    k('v_lshlrev_b32 v5, 2, v0')
    for w in range(4):
        k(f'ds_read_b32 v{20+w}, v5 offset:{128*w}')
    k('s_waitcnt lgkmcnt(0)')
    k('v_add_f32 v20, v20, v21')
    k('v_add_f32 v22, v22, v23')
    k('v_add_f32 v20, v20, v22')
    rnd_one(k, 20)
    k('s_lshl_b32 s3, s2, 7')
    k('buffer_store_dword v20, v5, s[16:19], s3 offen')
    k('L_mod_end:')
    k.stamp_end(0)
    k('L_mod_exit:')
    k('s_endpgm')
    return k


def emit_ln(k, X, T):
    s, t, m, mb = T, T + 1, T + 2, T + 3
    D = T + 4
    k(f'v_add_f32 v{s}, v{X}, v{X+1}')
    k(f'v_add_f32 v{t}, v{X+2}, v{X+3}')
    for i in range(4, 18, 2):
        k(f'v_add_f32 v{s}, v{s}, v{X+i}')
        k(f'v_add_f32 v{t}, v{t}, v{X+i+1}')
    k(f'v_add_f32 v{s}, v{s}, v{t}')
    red32(k, s, t)
    k(f'v_mul_f32 v{m}, {hx(f2u(1.0/576))}, v{s}')
    for i in range(18):
        k(f'v_sub_f32 v{D+i}, v{X+i}, v{m}')
    k(f'v_mul_f32 v{s}, v{D}, v{D}')
    k(f'v_mul_f32 v{t}, v{D+1}, v{D+1}')
    for i in range(2, 18, 2):
        k(f'v_fmac_f32 v{s}, v{D+i}, v{D+i}')
        k(f'v_fmac_f32 v{t}, v{D+i+1}, v{D+i+1}')
    k(f'v_add_f32 v{s}, v{s}, v{t}')
    k(f'v_mov_b32 v{mb}, v{m}')
    rnd_one(k, mb)
    for i in range(18):
        k(f'v_sub_f32 v{X+i}, v{X+i}, v{mb}')
    red32(k, s, t)
    k(f'v_mul_f32 v{s}, {hx(f2u(1.0/576))}, v{s}')
    rnd_one(k, s)
    k(f'v_add_f32 v{s}, {hx(f2u(1e-5))}, v{s}')
    rnd_one(k, s)
    k(f'v_sqrt_f32 v{s}, v{s}')
    k('s_nop 0')
    rnd_one(k, s)
    k(f'v_rcp_f32 v{s}, v{s}')
    for i in range(0, 18, 2):
        rnd_pair(k, X + i, X + i + 1, t)
    for i in range(18):
        k(f'v_mul_f32 v{X+i}, v{X+i}, v{s}')
    for i in range(0, 18, 2):
        rnd_pair(k, X + i, X + i + 1, t)


def emit_modulate(k, X, C, S, t, PK):
    for i in range(18):
        k(f'v_add_f32 v{C+i}, 1.0, v{C+i}')
    for i in range(0, 18, 2):
        rnd_pair(k, C + i, C + i + 1, t)
    for i in range(18):
        k(f'v_mul_f32 v{X+i}, v{X+i}, v{C+i}')
    for i in range(0, 18, 2):
        rnd_pair(k, X + i, X + i + 1, t)
    for i in range(18):
        k(f'v_add_f32 v{X+i}, v{X+i}, v{S+i}')
    for i in range(0, 18, 2):
        k(f'v_cvt_pk_bf16_f32 v{PK+i//2}, v{X+i}, v{X+i+1}')


def unpack9(k, src, X):
    for i in range(9):
        k(f'v_lshlrev_b32 v{X+2*i}, 16, v{src+i}')
        k(f'v_and_b32 v{X+2*i+1}, 0xffff0000, v{src+i}')


def gen_ln1():
    k = K('ln1_kernel', 256, 256, 0, nvgpr=112)
    k('s_cmp_ge_u32 s2, 256')
    k('s_cbranch_scc1 L_ln1_exit')
    k.stamp()
    k(f's_load_dwordx2 s[4:5], s[0:1], {ARG["x"]}')
    k(f's_load_dwordx2 s[6:7], s[0:1], {ARG["ws"]}')
    k('v_lshrrev_b32 v1, 5, v0')
    k('s_lshl_b32 s3, s2, 3')
    k('v_add_u32 v1, s3, v1')
    k('v_and_b32 v2, 31, v0')
    k('v_mul_u32_u24 v3, 1152, v1')
    k('v_lshl_add_u32 v3, v2, 2, v3')
    k('v_lshlrev_b32 v4, 3, v2')
    k('v_lshrrev_b32 v5, 4, v1')
    k('v_mul_u32_u24 v5, 18432, v5')
    k('v_lshrrev_b32 v6, 2, v2')
    k('v_lshl_add_u32 v5, v6, 8, v5')
    k('v_and_b32 v6, 15, v1')
    k('v_lshl_add_u32 v5, v6, 4, v5')
    k('v_and_b32 v6, 3, v2')
    k('v_lshl_add_u32 v5, v6, 2, v5')
    k('s_mov_b32 s30, 2304')
    for i in range(9):
        k(f's_mov_b32 s{40+i}, {2048*i}')
    k('s_waitcnt lgkmcnt(0)')
    k.srd(8, 's4', 's5', 2359296)
    k.srd(12, 's6', 's7', 13824)
    k.srd_off(16, 's6', 's7', WS_H, 2359296)
    XL, X, C, S, T = 8, 18, 36, 54, 72
    for i in range(9):
        k(f'buffer_load_dword v{XL+i}, v3, s[8:11], 0 offen offset:{128*i}')
    for i in range(9):
        k(f'buffer_load_dwordx2 v[{S+2*i}:{S+2*i+1}], v4, s[12:15], 0 offen offset:{256*i}')
    for i in range(9):
        k(f'buffer_load_dwordx2 v[{C+2*i}:{C+2*i+1}], v4, s[12:15], s30 offen offset:{256*i}')
    k('s_waitcnt vmcnt(18)')
    unpack9(k, XL, X)
    emit_ln(k, X, T)
    k('s_waitcnt vmcnt(0)')
    emit_modulate(k, X, C, S, T, XL)
    for i in range(9):
        k(f'buffer_store_dword v{XL+i}, v5, s[16:19], s{40+i} offen')
    k('L_ln1_end:')
    k.stamp_end(1)
    k('L_ln1_exit:')
    k('s_endpgm')
    return k


def gen_ln2(nsplit=4):
    k = K('ln2_kernel', 256, 256, 0, nvgpr=224)
    k('s_cmp_ge_u32 s2, 256')
    k('s_cbranch_scc1 L_ln2_exit')
    k.stamp()
    k(f's_load_dwordx2 s[4:5], s[0:1], {ARG["x"]}')
    k(f's_load_dwordx2 s[6:7], s[0:1], {ARG["ws"]}')
    k(f's_load_dwordx2 s[36:37], s[0:1], {ARG["wr"]}')
    k(f's_load_dwordx2 s[38:39], s[0:1], {ARG["out"]}')
    k('v_lshrrev_b32 v1, 5, v0')
    k('s_lshl_b32 s3, s2, 3')
    k('v_add_u32 v1, s3, v1')
    k('v_and_b32 v2, 31, v0')
    k('v_mul_u32_u24 v3, 1152, v1')
    k('v_lshl_add_u32 v3, v2, 2, v3')
    k('v_lshlrev_b32 v4, 3, v2')
    k('v_lshlrev_b32 v5, 1, v3')
    k('v_lshlrev_b32 v6, 2, v2')
    k('v_lshlrev_b32 v7, 2, v1')
    for i in range(4):
        k(f's_mov_b32 s{40+i}, {2304*(i+2)}')
        k(f's_mov_b32 s{44+i}, {4718592*i}')
    k('s_waitcnt lgkmcnt(0)')
    k.srd(8, 's4', 's5', 2359296)
    k.srd(12, 's6', 's7', 13824)
    k.srd_off(16, 's6', 's7', WS_PART, 4718592 * nsplit)
    k.srd(20, 's36', 's37', 1152)
    k.srd(24, 's38', 's39', 2359296)
    k.srd_off(28, 's6', 's7', WS_X1, 2 * 2359296)
    k.srd_off(32, 's6', 's7', WS_R, 8192)
    k(f's_mov_b32 s48, {2359296}')
    XL, WR, P, GA, SB, CB, GB, X, T = 8, 18, 28, 100, 118, 136, 154, 172, 190
    for j in range(nsplit):
        for i in range(9):
            k(f'buffer_load_dwordx2 v[{P+18*j+2*i}:{P+18*j+2*i+1}], v5, s[16:19], s{44+j} offen offset:{256*i}')
    for i in range(9):
        k(f'buffer_load_dword v{XL+i}, v3, s[8:11], 0 offen offset:{128*i}')
    for i in range(9):
        k(f'buffer_load_dwordx2 v[{GA+2*i}:{GA+2*i+1}], v4, s[12:15], s40 offen offset:{256*i}')
    k('s_waitcnt vmcnt(18)')
    k.stamp()
    for j, b in enumerate((SB, CB, GB)):
        for i in range(9):
            k(f'buffer_load_dwordx2 v[{b+2*i}:{b+2*i+1}], v4, s[12:15], s{41+j} offen offset:{256*i}')
    for i in range(9):
        k(f'buffer_load_dword v{WR+i}, v6, s[20:23], 0 offen offset:{128*i}')
    if nsplit == 4:
        for i in range(18):
            k(f'v_add_f32 v{P+i}, v{P+i}, v{P+18+i}')
            k(f'v_add_f32 v{P+36+i}, v{P+36+i}, v{P+54+i}')
        for i in range(18):
            k(f'v_add_f32 v{P+i}, v{P+i}, v{P+36+i}')
    else:
        for j in range(1, nsplit):
            for i in range(18):
                k(f'v_add_f32 v{P+i}, v{P+i}, v{P+18*j+i}')
    for i in range(0, 18, 2):
        rnd_pair(k, P + i, P + i + 1, T)
    k('s_waitcnt vmcnt(36)')
    unpack9(k, XL, X)
    for i in range(18):
        k(f'v_mul_f32 v{P+i}, v{P+i}, v{GA+i}')
    for i in range(0, 18, 2):
        rnd_pair(k, P + i, P + i + 1, T)
    for i in range(18):
        k(f'v_add_f32 v{X+i}, v{X+i}, v{P+i}')
    for i in range(0, 18, 2):
        k(f'v_cvt_pk_bf16_f32 v{XL+i//2}, v{X+i}, v{X+i+1}')
    unpack9(k, XL, X)
    unpack9(k, XL, P)
    for i in range(9):
        k(f'buffer_store_dword v{XL+i}, v3, s[28:31], 0 offen offset:{128*i}')
    emit_ln(k, X, T)
    k('s_waitcnt vmcnt(9)')
    PK = P + 18
    emit_modulate(k, X, CB, SB, T, PK)
    for i in range(9):
        k(f'buffer_store_dword v{PK+i}, v3, s[28:31], s48 offen offset:{128*i}')
    unpack9(k, PK, X)
    W = P + 36
    unpack9(k, WR, W)
    k(f'v_mul_f32 v{T}, v{X}, v{W}')
    k(f'v_mul_f32 v{T+1}, v{X+1}, v{W+1}')
    for i in range(2, 18, 2):
        k(f'v_fmac_f32 v{T}, v{X+i}, v{W+i}')
        k(f'v_fmac_f32 v{T+1}, v{X+i+1}, v{W+i+1}')
    k(f'v_add_f32 v{T}, v{T}, v{T+1}')
    for i in range(18):
        k(f'v_mul_f32 v{X+i}, v{X+i}, v{GB+i}')
    for i in range(0, 18, 2):
        rnd_pair(k, X + i, X + i + 1, T + 2)
    for i in range(18):
        k(f'v_add_f32 v{X+i}, v{X+i}, v{P+i}')
    OUT = P + 54
    for i in range(0, 18, 2):
        k(f'v_cvt_pk_bf16_f32 v{OUT+i//2}, v{X+i}, v{X+i+1}')
    for i in range(9):
        k(f'buffer_store_dword v{OUT+i}, v3, s[24:27], 0 offen offset:{128*i}')
    k.stamp()
    red32(k, T, T + 1)
    k('v_cmp_eq_u32 vcc, 0, v2')
    k('s_and_saveexec_b64 s[50:51], vcc')
    k(f'buffer_store_dword v{T}, v7, s[32:35], 0 offen')
    k('L_ln2_end:')
    k.stamp_end(4)
    k('L_ln2_exit:')
    k('s_endpgm')
    return k


def gen_moe1():
    LG, LU, LD, LX = 0, 36864, 73728, 110592
    k = K('moe1_kernel', 144, 512, 114688, nvgpr=160)
    k('s_cmp_ge_u32 s2, 144')
    k('s_cbranch_scc1 L_moe1_exit')
    k.stamp()
    k(f's_load_dwordx4 s[4:7], s[0:1], {ARG["wg"]}')
    k(f's_load_dwordx2 s[36:37], s[0:1], {ARG["wd"]}')
    k(f's_load_dwordx2 s[38:39], s[0:1], {ARG["ws"]}')
    k('v_lshrrev_b32 v1, 6, v0')
    k('v_and_b32 v2, 63, v0')
    k('v_readfirstlane_b32 s33, v1')
    k('s_and_b32 s32, s2, 0xf0')
    k('s_and_b32 s3, s2, 7')
    k('s_lshl_b32 s3, s3, 1')
    k('s_add_u32 s32, s32, s3')
    k('s_bfe_u32 s3, s2, 0x10003')
    k('s_add_u32 s32, s32, s3')
    k('s_cmp_lt_u32 s33, 4')
    k('s_cbranch_scc1 L_moe1_compute')
    k('s_sub_u32 s33, s33, 4')
    k('v_lshrrev_b32 v3, 2, v2')
    k('v_mul_u32_u24 v3, 9216, v3')
    k('v_and_b32 v4, 3, v2')
    k('v_lshl_add_u32 v3, v4, 4, v3')
    k('v_lshlrev_b32 v4, 4, v2')
    k('s_lshl_b32 s40, s33, 10')
    k('s_mul_i32 s41, s33, 147456')
    k('s_lshl_b32 s3, s32, 6')
    k('s_add_u32 s41, s41, s3')
    k('s_mul_i32 s42, s32, 36864')
    k('s_add_u32 s42, s42, s40')
    k('s_waitcnt lgkmcnt(0)')
    k.srd(8, 's4', 's5', 576 * 9216)
    k.srd(12, 's6', 's7', 576 * 9216)
    k.srd(16, 's36', 's37', 4608 * 1152)
    for i in range(9):
        k(f's_add_u32 m0, s40, {LG + 4096*i}')
        k('s_nop 0')
        k('buffer_load_dwordx4 v3, s[8:11], s41 offen lds')
        k(f's_add_u32 m0, s40, {LU + 4096*i}')
        k('s_nop 0')
        k('buffer_load_dwordx4 v3, s[12:15], s41 offen lds')
        k(f's_add_u32 s41, s41, {4*147456}')
    for i in range(9):
        k(f's_add_u32 m0, s40, {LD + 4096*i}')
        k('s_nop 0')
        k('buffer_load_dwordx4 v4, s[16:19], s42 offen lds')
        k(f's_add_u32 s42, s42, 4096')
    k('s_waitcnt vmcnt(9)')
    k('s_barrier')
    k('s_waitcnt vmcnt(0)')
    k('s_barrier')
    k('s_branch L_moe1_exit')
    k('L_moe1_compute:')
    k('v_lshlrev_b32 v5, 4, v2')
    k('s_waitcnt lgkmcnt(0)')
    k.srd_off(20, 's38', 's39', WS_R, 8192)
    R = 16
    k('s_movk_i32 s3, 0x1000')
    for i in range(8):
        k(f'buffer_load_dwordx4 v[{R+4*i}:{R+4*i+3}], v5, s[20:23], {"0" if i < 4 else "s3"} offen offset:{1024*(i % 4)}')
    k.srd_off(24, 's38', 's39', WS_H2, 2359296)
    k('s_mul_i32 s34, s32, 18432')
    k(f's_add_u32 s34, s34, {WS_Y}')
    k.srd_off(28, 's38', 's39', 's34', 18432)
    k.srd_off(44, 's38', 's39', WS_IDX, 32)
    k('s_waitcnt vmcnt(0)')
    k.stamp()
    k('v_mov_b32 v7, -1')
    k('v_and_b32 v10, 7, v2')
    k('v_mov_b32 v11, 0')
    TT = 48
    for rnd in range(8):
        for i in range(32):
            k(f'v_sub_u32 v{TT+i}, v7, v{R+i}')
        n = 32
        k(f'v_min_u32 v8, v{TT}, v{TT+1}')
        k(f'v_min_u32 v9, v{TT+2}, v{TT+3}')
        for i in range(4, 32, 4):
            k(f'v_min3_u32 v8, v8, v{TT+i}, v{TT+i+1}')
            k(f'v_min3_u32 v9, v9, v{TT+i+2}, v{TT+i+3}')
        k('v_min_u32 v8, v8, v9')
        red32(k, 8, 9, 'v_min_u32')
        k('v_mov_b32 v9, v8')
        k('s_nop 1')
        k('v_permlane32_swap_b32 v8, v9')
        k('v_min_u32 v8, v8, v9')
        k('v_sub_u32 v8, v7, v8')
        k(f'v_cmp_eq_u32 vcc, {rnd}, v10')
        k('v_subrev_u32 v7, 1, v8')
        k('s_nop 0')
        k('v_cndmask_b32 v11, v11, v8, vcc')
    k('s_or_b32 s3, s2, s33')
    k('s_cmp_lg_u32 s3, 0')
    k('s_cbranch_scc1 L_moe1_noidx')
    k('v_lshlrev_b32 v8, 2, v2')
    k('buffer_store_dword v11, v8, s[44:47], 0 offen')
    k('L_moe1_noidx:')
    k.stamp()
    k('v_and_b32 v12, 0x7ff, v11')
    k('v_mul_u32_u24 v12, 1152, v12')
    k('v_lshrrev_b32 v13, 4, v2')
    k('v_lshl_add_u32 v12, v13, 4, v12')
    B = 16
    for kk in range(18):
        k(f'buffer_load_dwordx4 v[{B+4*kk}:{B+4*kk+3}], v12, s[24:27], 0 offen offset:{64*kk}')
    k('v_bfe_u32 v8, v2, 2, 2')
    k('v_lshl_add_u32 v8, v13, 3, v8')
    k('v_lshlrev_b32 v8, 6, v8')
    k('v_and_b32 v9, 3, v2')
    k('v_lshl_add_u32 v8, v9, 3, v8')
    k('s_lshr_b32 s3, s33, 1')
    k('s_mul_i32 s3, s3, 36864')
    k('s_and_b32 s34, s33, 1')
    k('s_lshl_b32 s34, s34, 5')
    k('s_add_u32 s3, s3, s34')
    k('v_add_u32 v8, s3, v8')
    k('v_lshrrev_b32 v14, 2, v2')
    k('v_mul_u32_u24 v14, 1152, v14')
    k('v_lshl_add_u32 v14, v9, 3, v14')
    k('s_mul_i32 s3, s33, 288')
    k(f's_add_u32 s3, s3, {LD}')
    k('v_add_u32 v14, s3, v14')
    k('s_waitcnt vmcnt(0)')
    k.stamp()
    k('s_barrier')
    A = 88
    lines = []
    for kk in range(18):
        lines.append(f'ds_read_b64_tr_b16 v[{A+4*kk}:{A+4*kk+1}], v8 offset:{2048*kk}')
        lines.append(f'ds_read_b64_tr_b16 v[{A+4*kk+2}:{A+4*kk+3}], v8 offset:{2048*kk+256}')
        j = kk - 5
        if j >= 0:
            lines.append(f'v_mfma_f32_16x16x32_bf16 v[4:7], v[{A+4*j}:{A+4*j+3}], v[{B+4*j}:{B+4*j+3}], {"0" if j == 0 else "v[4:7]"}')
    for j in range(13, 18):
        lines.append(f'v_mfma_f32_16x16x32_bf16 v[4:7], v[{A+4*j}:{A+4*j+3}], v[{B+4*j}:{B+4*j+3}], v[4:7]')
    lines, _ = insert_lgkm(lines)
    for ln in lines:
        k(ln)
    k('v_lshlrev_b32 v9, 4, v0')
    k(f'v_add_u32 v9, {LX}, v9')
    k('v_lshlrev_b32 v10, 4, v2')
    k(f'v_add_u32 v10, {LX}, v10')
    k('s_nop 4')
    k('ds_write_b128 v9, v[4:7]')
    k('s_waitcnt lgkmcnt(0)')
    k('s_barrier')
    for t in range(4):
        k(f'ds_read_b128 v[{16+4*t}:{19+4*t}], v10 offset:{1024*t}')
    for i in range(5):
        k(f'ds_read_b64_tr_b16 v[{A+4*i}:{A+4*i+1}], v14 offset:{32*i}')
        k(f'ds_read_b64_tr_b16 v[{A+4*i+2}:{A+4*i+3}], v14 offset:{32*i+16*1152}')
    k('s_waitcnt lgkmcnt(10)')
    for i in range(0, 16, 2):
        rnd_pair(k, 16 + i, 17 + i, 32)
    for i in range(8):
        k(f'v_mul_f32 v{32+i}, {hx(f2u(-LOG2E))}, v{16+i}')
    for i in range(8):
        k(f'v_exp_f32 v{32+i}, v{32+i}')
    for i in range(8):
        k(f'v_add_f32 v{32+i}, 1.0, v{32+i}')
    for i in range(8):
        k(f'v_rcp_f32 v{32+i}, v{32+i}')
    for i in range(8):
        k(f'v_mul_f32 v{16+i}, v{16+i}, v{32+i}')
    for i in range(0, 8, 2):
        rnd_pair(k, 16 + i, 17 + i, 32)
    for i in range(8):
        k(f'v_mul_f32 v{16+i}, v{16+i}, v{24+i}')
    for i in range(0, 8, 2):
        k(f'v_cvt_pk_bf16_f32 v{40+i//2}, v{16+i}, v{17+i}')
    k('s_waitcnt lgkmcnt(0)')
    for i in range(5, 9):
        k(f'ds_read_b64_tr_b16 v[{A+4*i}:{A+4*i+1}], v14 offset:{32*i}')
        k(f'ds_read_b64_tr_b16 v[{A+4*i+2}:{A+4*i+3}], v14 offset:{32*i+16*1152}')
    k('v_and_b32 v8, 15, v2')
    k('v_mul_u32_u24 v8, 2304, v8')
    k('v_lshl_add_u32 v8, v13, 4, v8')
    k('s_mul_i32 s3, s33, 576')
    Y = 48
    for i in range(5):
        k(f'v_mfma_f32_16x16x32_bf16 v[{Y+4*i}:{Y+4*i+3}], v[{A+4*i}:{A+4*i+3}], v[40:43], 0')
    k('s_waitcnt lgkmcnt(0)')
    for i in range(5, 9):
        k(f'v_mfma_f32_16x16x32_bf16 v[{Y+4*i}:{Y+4*i+3}], v[{A+4*i}:{A+4*i+3}], v[40:43], 0')
    k('s_nop 7')
    for i in range(9):
        k(f'buffer_store_dwordx4 v[{Y+4*i}:{Y+4*i+3}], v8, s[28:31], s3 offen offset:{64*i} sc1')
    k('L_moe1_end:')
    k.stamp_end(5)
    k('L_moe1_exit:')
    k('s_endpgm')
    return k


def gen_moe2():
    k = K('moe2_kernel', 72, 256, 1024, nvgpr=64)
    for w in range(72):
        assert (w * 57) >> 9 == w // 9
    k('s_cmp_ge_u32 s2, 72')
    k('s_cbranch_scc1 L_moe2_exit')
    k.stamp()
    k(f's_load_dwordx2 s[38:39], s[0:1], {ARG["ws"]}')
    k(f's_load_dwordx2 s[36:37], s[0:1], {ARG["out"]}')
    k('s_mul_i32 s33, s2, 57')
    k('s_lshr_b32 s33, s33, 9')
    k('s_mul_i32 s34, s33, 9')
    k('s_sub_u32 s34, s2, s34')
    k('v_and_b32 v1, 15, v0')
    k('v_lshrrev_b32 v2, 4, v0')
    k(f'v_mul_u32_u24 v3, {9*18432}, v2')
    k('v_lshl_add_u32 v3, v1, 4, v3')
    k('s_mul_i32 s3, s33, 2304')
    k('s_lshl_b32 s35, s34, 8')
    k('s_add_u32 s3, s3, s35')
    k('v_add_u32 v3, s3, v3')
    k('s_lshl_b32 s40, s33, 2')
    k('v_mov_b32 v4, s40')
    for i in range(9):
        k(f's_mov_b32 s{50+i}, {18432*i}')
    k('s_waitcnt lgkmcnt(0)')
    k.srd_off(8, 's38', 's39', WS_Y, 144 * 18432)
    k.srd_off(12, 's38', 's39', WS_IDX, 32)
    k.srd_off(16, 's38', 's39', WS_R, 8192)
    k.srd_off(20, 's38', 's39', WS_X1, 2 * 2359296)
    k.srd(24, 's36', 's37', 2359296)
    k.srd(28, 's38', 's39', 13824)
    k('buffer_load_dword v5, v4, s[12:15], 0 offen')
    for i in range(9):
        k(f'buffer_load_dwordx4 v[{16+4*i}:{19+4*i}], v3, s[8:11], s{50+i} offen')
    k('v_lshlrev_b32 v6, 4, v1')
    k(f's_add_u32 s41, s35, {5*2304}')
    k('buffer_load_dwordx4 v[52:55], v6, s[28:31], s41 offen')
    k('s_waitcnt vmcnt(10)')
    k('v_not_b32 v7, v5')
    k('v_ashrrev_i32 v7, 31, v7')
    k('v_or_b32 v7, 0x80000000, v7')
    k('v_xor_b32 v8, v5, v7')
    k('v_and_b32 v5, 0x7ff, v5')
    k('v_mul_u32_u24 v9, 1152, v5')
    k('v_lshl_add_u32 v9, v1, 3, v9')
    k('s_lshl_b32 s42, s34, 7')
    k('v_add_u32 v9, s42, v9')
    k(f's_mov_b32 s43, 2359296')
    k('buffer_load_dwordx2 v[10:11], v9, s[20:23], 0 offen')
    k('buffer_load_dwordx2 v[12:13], v9, s[20:23], s43 offen')
    k('s_waitcnt vmcnt(3)')
    for i in range(1, 9):
        for j in range(4):
            k(f'v_add_f32 v{16+j}, v{16+j}, v{16+4*i+j}')
    for j in range(4):
        k(f'v_mov_b32 v{20+j}, v{16+j}')
    k('s_nop 1')
    for j in range(4):
        k(f'v_permlane16_swap_b32 v{16+j}, v{20+j}')
    for j in range(4):
        k(f'v_add_f32 v{16+j}, v{16+j}, v{20+j}')
    for j in range(4):
        k(f'v_mov_b32 v{20+j}, v{16+j}')
    k('s_nop 1')
    for j in range(4):
        k(f'v_permlane32_swap_b32 v{16+j}, v{20+j}')
    for j in range(4):
        k(f'v_add_f32 v{16+j}, v{16+j}, v{20+j}')
    k('v_lshrrev_b32 v14, 6, v0')
    k('v_lshlrev_b32 v14, 8, v14')
    k('v_add_u32 v14, v14, v6')
    k('ds_write_b128 v14, v[16:19]')
    k('s_waitcnt lgkmcnt(0)')
    k('s_barrier')
    k('v_cmp_gt_u32 vcc, 16, v0')
    k('s_and_saveexec_b64 s[44:45], vcc')
    k('s_cbranch_execz L_moe2_end')
    for w in range(4):
        k(f'ds_read_b128 v[{16+4*w}:{19+4*w}], v6 offset:{256*w}')
    k('s_waitcnt vmcnt(0)')
    rnd_one(k, 8)
    k(f'v_mul_f32 v8, {hx(f2u(-LOG2E))}, v8')
    k('v_exp_f32 v8, v8')
    k('s_nop 0')
    k('v_add_f32 v8, 1.0, v8')
    k('v_rcp_f32 v8, v8')
    k('s_nop 0')
    rnd_one(k, 8)
    k('s_waitcnt lgkmcnt(0)')
    for j in range(4):
        k(f'v_add_f32 v{16+j}, v{16+j}, v{20+j}')
        k(f'v_add_f32 v{24+j}, v{24+j}, v{28+j}')
    for j in range(4):
        k(f'v_add_f32 v{16+j}, v{16+j}, v{24+j}')
    rnd_pair(k, 16, 17, 20)
    rnd_pair(k, 18, 19, 20)
    for j in range(4):
        k(f'v_mul_f32 v{16+j}, v{16+j}, v8')
    rnd_pair(k, 16, 17, 20)
    rnd_pair(k, 18, 19, 20)
    for j in range(2):
        k(f'v_lshlrev_b32 v{24+2*j}, 16, v{12+j}')
        k(f'v_and_b32 v{25+2*j}, 0xffff0000, v{12+j}')
        k(f'v_lshlrev_b32 v{28+2*j}, 16, v{10+j}')
        k(f'v_and_b32 v{29+2*j}, 0xffff0000, v{10+j}')
    for j in range(4):
        k(f'v_add_f32 v{16+j}, v{16+j}, v{24+j}')
    rnd_pair(k, 16, 17, 20)
    rnd_pair(k, 18, 19, 20)
    for j in range(4):
        k(f'v_mul_f32 v{16+j}, v{16+j}, v{52+j}')
    rnd_pair(k, 16, 17, 20)
    rnd_pair(k, 18, 19, 20)
    for j in range(4):
        k(f'v_add_f32 v{16+j}, v{16+j}, v{28+j}')
    k('v_cvt_pk_bf16_f32 v20, v16, v17')
    k('v_cvt_pk_bf16_f32 v21, v18, v19')
    k('buffer_store_dwordx2 v[20:21], v9, s[24:27], 0 offen')
    k('L_moe2_end:')
    k.stamp_end(6)
    k('L_moe2_exit:')
    k('s_endpgm')
    return k


def red_q8(k, regs, t, op='v_add_f32'):
    k('s_nop 1')
    for r in regs:
        k(f'{op}_dpp v{r}, v{r}, v{r} row_ror:8 row_mask:0xf bank_mask:0xf')
    for sw in ('v_permlane16_swap_b32', 'v_permlane32_swap_b32'):
        for i, r in enumerate(regs):
            k(f'v_mov_b32 v{t+i}, v{r}')
        k('s_nop 1')
        for i, r in enumerate(regs):
            k(f'{sw} v{r}, v{t+i}')
        for i, r in enumerate(regs):
            k(f'{op} v{r}, v{r}, v{t+i}')


def rnd8(k, X, t):
    for i in range(4):
        k(f'v_cvt_pk_bf16_f32 v{t+i}, v{X+2*i}, v{X+2*i+1}')
    for i in range(4):
        k(f'v_lshlrev_b32 v{X+2*i}, 16, v{t+i}')
        k(f'v_and_b32 v{X+2*i+1}, 0xffff0000, v{t+i}')


def gen_ln2b():
    k = K('ln2_kernel', 256, 576, 1536, nvgpr=136)
    k('s_cmp_ge_u32 s2, 256')
    k('s_cbranch_scc1 L_ln2_exit')
    k.stamp()
    k(f's_load_dwordx2 s[6:7], s[0:1], {ARG["ws"]}')
    k(f's_load_dwordx2 s[4:5], s[0:1], {ARG["x"]}')
    k(f's_load_dwordx2 s[36:37], s[0:1], {ARG["wr"]}')
    k(f's_load_dwordx2 s[38:39], s[0:1], {ARG["out"]}')
    k('v_and_b32 v1, 7, v0')
    k('v_lshrrev_b32 v2, 3, v0')
    k('v_lshlrev_b32 v3, 8, v2')
    k('v_lshl_add_u32 v3, v1, 4, v3')
    k('s_lshr_b32 s3, s2, 1')
    k('s_mul_i32 s3, s3, 18432')
    k('s_and_b32 s33, s2, 1')
    k('s_lshl_b32 s33, s33, 7')
    k('s_add_u32 s3, s3, s33')
    k('s_waitcnt lgkmcnt(0)')
    k.srd_off(16, 's6', 's7', WS_PART, 16 * 2359296)
    P = 16
    for j in range(16):
        k(f'buffer_load_dwordx4 v[{P+4*j}:{P+4*j+3}], v3, s[16:19], s3 offen')
        k(f's_add_u32 s3, s3, 2359296')
    k('v_lshrrev_b32 v4, 2, v2')
    k('v_lshlrev_b32 v4, 6, v4')
    k('v_and_b32 v5, 1, v2')
    k('v_lshl_add_u32 v4, v5, 5, v4')
    k('v_and_b32 v5, 2, v2')
    k('v_lshl_add_u32 v4, v5, 3, v4')
    k('v_lshlrev_b32 v5, 1, v4')
    k('s_lshl_b32 s3, s2, 3')
    k('v_add_u32 v6, s3, v1')
    k('v_mul_u32_u24 v7, 1152, v6')
    k('v_add_u32 v7, v7, v4')
    k.srd(8, 's4', 's5', 2359296)
    k.srd(12, 's6', 's7', 13824)
    k.srd(20, 's36', 's37', 1152)
    XL, WR, GA, SB, CB, GB, X, T = 80, 84, 88, 96, 104, 112, 120, 128
    k(f'buffer_load_dwordx4 v[{XL}:{XL+3}], v7, s[8:11], 0 offen')
    for j, b in enumerate((GA, SB, CB, GB)):
        k(f's_mov_b32 s40, {2304*(j+2)}')
        k(f'buffer_load_dwordx4 v[{b}:{b+3}], v5, s[12:15], s40 offen')
        k(f'buffer_load_dwordx4 v[{b+4}:{b+7}], v5, s[12:15], s40 offen offset:16')
    k(f'buffer_load_dwordx4 v[{WR}:{WR+3}], v4, s[20:23], 0 offen')
    k.srd(24, 's38', 's39', 2359296)
    k.srd_off(28, 's6', 's7', WS_X1, 2 * 2359296)
    k.srd_off(32, 's6', 's7', WS_R, 8192)
    k('s_mov_b32 s48, 2359296')
    k('v_lshrrev_b32 v8, 6, v0')
    k('v_mul_u32_u24 v9, 96, v1')
    k('v_lshl_add_u32 v8, v8, 3, v9')
    A = 8 + 2
    A = X
    for j in range(16):
        k(f's_waitcnt vmcnt({10 + 15 - j})')
        for i in range(4):
            w = P + 4 * j + i
            if j == 0:
                k(f'v_lshlrev_b32 v{A+2*i}, 16, v{w}')
                k(f'v_and_b32 v{A+2*i+1}, 0xffff0000, v{w}')
            else:
                k(f'v_lshlrev_b32 v{T+i}, 16, v{w}')
                k(f'v_and_b32 v{w}, 0xffff0000, v{w}')
        if j:
            for i in range(4):
                k(f'v_add_f32 v{A+2*i}, v{A+2*i}, v{T+i}')
                k(f'v_add_f32 v{A+2*i+1}, v{A+2*i+1}, v{P+4*j+i}')
    k.stamp()
    for i in range(4):
        k(f'v_cvt_pk_bf16_f32 v{T+i}, v{A+2*i}, v{A+2*i+1}')
    k(f'v_mov_b32 v{T+4}, v{T+2}')
    k(f'v_mov_b32 v{T+5}, v{T+3}')
    k(f'v_mov_b32_dpp v{T+2}, v{T} row_ror:8 row_mask:0xf bank_mask:0x3')
    k(f'v_mov_b32_dpp v{T+3}, v{T+1} row_ror:8 row_mask:0xf bank_mask:0x3')
    k(f'v_mov_b32_dpp v{T}, v{T+4} row_ror:8 row_mask:0xf bank_mask:0xc')
    k(f'v_mov_b32_dpp v{T+1}, v{T+5} row_ror:8 row_mask:0xf bank_mask:0xc')
    for i in (2, 3, 0, 1):
        k(f'v_lshlrev_b32 v{A+2*i}, 16, v{T+i}')
        k(f'v_and_b32 v{A+2*i+1}, 0xffff0000, v{T+i}')
    k('s_waitcnt vmcnt(0)')
    for i in range(8):
        k(f'v_mul_f32 v{A+i}, v{A+i}, v{GA+i}')
    X0, X1, D, PKX = 16, 24, 32, 40
    for i in range(4):
        k(f'v_lshlrev_b32 v{X0+2*i}, 16, v{XL+i}')
        k(f'v_and_b32 v{X0+2*i+1}, 0xffff0000, v{XL+i}')
    rnd8(k, A, T)
    for i in range(8):
        k(f'v_add_f32 v{X1+i}, v{X0+i}, v{A+i}')
    rnd8(k, X1, PKX)
    k(f'buffer_store_dwordx4 v[{PKX}:{PKX+3}], v7, s[28:31], 0 offen sc1')
    s_, m2 = 10, 11
    k(f'v_add_f32 v{T}, v{X1}, v{X1+1}')
    k(f'v_add_f32 v{T+1}, v{X1+2}, v{X1+3}')
    k(f'v_add_f32 v{T+2}, v{X1+4}, v{X1+5}')
    k(f'v_add_f32 v{T+3}, v{X1+6}, v{X1+7}')
    k(f'v_add_f32 v{T}, v{T}, v{T+1}')
    k(f'v_add_f32 v{T+2}, v{T+2}, v{T+3}')
    k(f'v_add_f32 v{s_}, v{T}, v{T+2}')
    red_q8(k, [s_], T)
    k(f'v_mul_f32 v{s_}, {hx(f2u(1.0/64))}, v{s_}')
    for i in range(8):
        k(f'v_sub_f32 v{D+i}, v{X1+i}, v{s_}')
    k(f'v_mul_f32 v{m2}, v{D}, v{D}')
    k(f'v_mul_f32 v{T}, v{D+1}, v{D+1}')
    for i in range(2, 8, 2):
        k(f'v_fmac_f32 v{m2}, v{D+i}, v{D+i}')
        k(f'v_fmac_f32 v{T}, v{D+i+1}, v{D+i+1}')
    k(f'v_add_f32 v{m2}, v{m2}, v{T}')
    red_q8(k, [m2], T)
    k(f'ds_write_b64 v8, v[{s_}:{m2}]')
    for i in range(8):
        k(f'v_add_f32 v{CB+i}, 1.0, v{CB+i}')
    rnd8(k, CB, T)
    W = 48
    for i in range(4):
        k(f'v_lshlrev_b32 v{W+2*i}, 16, v{WR+i}')
        k(f'v_and_b32 v{W+2*i+1}, 0xffff0000, v{WR+i}')
    k('s_waitcnt lgkmcnt(0)')
    k('s_barrier')
    ST = 56
    for i in range(4):
        k(f'ds_read_b128 v[{ST+4*i}:{ST+4*i+3}], v9 offset:{16*i}')
    k(f'ds_read_b64 v[{ST+16}:{ST+17}], v9 offset:64')
    k('s_waitcnt lgkmcnt(0)')
    k(f'v_add_f32 v{s_}, v{ST}, v{ST+2}')
    k(f'v_add_f32 v{m2}, v{ST+1}, v{ST+3}')
    for i in range(2, 9):
        k(f'v_add_f32 v{s_}, v{s_}, v{ST+2*i}')
        k(f'v_add_f32 v{m2}, v{m2}, v{ST+2*i+1}')
    k(f'v_mul_f32 v{s_}, {hx(f2u(1.0/9))}, v{s_}')
    for i in range(9):
        k(f'v_sub_f32 v{ST+2*i}, v{ST+2*i}, v{s_}')
    k(f'v_mul_f32 v{T}, v{ST}, v{ST}')
    k(f'v_mul_f32 v{T+1}, v{ST+2}, v{ST+2}')
    for i in range(2, 9):
        k(f'v_fmac_f32 v{T + i % 2}, v{ST+2*i}, v{ST+2*i}')
    k(f'v_add_f32 v{T}, v{T}, v{T+1}')
    k(f'v_fmac_f32 v{m2}, {hx(f2u(64.0))}, v{T}')
    k(f'v_mul_f32 v{m2}, {hx(f2u(1.0/576))}, v{m2}')
    rnd_pair(k, s_, m2, T)
    k(f'v_add_f32 v{m2}, {hx(f2u(1e-5))}, v{m2}')
    for i in range(8):
        k(f'v_sub_f32 v{D+i}, v{X1+i}, v{s_}')
    rnd_one(k, m2)
    k(f'v_sqrt_f32 v{m2}, v{m2}')
    rnd8(k, D, T)
    rnd_one(k, m2)
    k(f'v_rcp_f32 v{m2}, v{m2}')
    k('s_nop 0')
    for i in range(8):
        k(f'v_mul_f32 v{D+i}, v{D+i}, v{m2}')
    rnd8(k, D, T)
    for i in range(8):
        k(f'v_mul_f32 v{D+i}, v{D+i}, v{CB+i}')
    rnd8(k, D, T)
    for i in range(8):
        k(f'v_add_f32 v{D+i}, v{D+i}, v{SB+i}')
    PKH = 44
    rnd8(k, D, PKH)
    k(f'buffer_store_dwordx4 v[{PKH}:{PKH+3}], v7, s[28:31], s48 offen sc1')
    k(f'v_mul_f32 v{s_}, v{D}, v{W}')
    k(f'v_mul_f32 v{m2}, v{D+1}, v{W+1}')
    for i in range(2, 8, 2):
        k(f'v_fmac_f32 v{s_}, v{D+i}, v{W+i}')
        k(f'v_fmac_f32 v{m2}, v{D+i+1}, v{W+i+1}')
    k(f'v_add_f32 v{s_}, v{s_}, v{m2}')
    red_q8(k, [s_], T)
    k(f'ds_write_b32 v8, v{s_} offset:768')
    for i in range(8):
        k(f'v_mul_f32 v{D+i}, v{D+i}, v{GB+i}')
    rnd8(k, D, T)
    for i in range(8):
        k(f'v_add_f32 v{D+i}, v{D+i}, v{X1+i}')
    for i in range(4):
        k(f'v_cvt_pk_bf16_f32 v{T+i}, v{D+2*i}, v{D+2*i+1}')
    k(f'buffer_store_dwordx4 v[{T}:{T+3}], v7, s[24:27], 0 offen sc1')
    k('s_waitcnt lgkmcnt(0)')
    k('s_barrier')
    k('v_cmp_gt_u32 vcc, 8, v0')
    k('s_and_saveexec_b64 s[50:51], vcc')
    k('s_cbranch_execz L_ln2_end')
    for i in range(4):
        k(f'ds_read_b128 v[{ST+4*i}:{ST+4*i+3}], v9 offset:{768+16*i}')
    k(f'ds_read_b64 v[{ST+16}:{ST+17}], v9 offset:{768+64}')
    k('v_lshlrev_b32 v5, 2, v6')
    k('s_mov_b32 s3, 0xfffff800')
    k('s_waitcnt lgkmcnt(0)')
    k(f'v_add_f32 v{s_}, v{ST}, v{ST+2}')
    k(f'v_add_f32 v{m2}, v{ST+4}, v{ST+6}')
    for i in range(4, 9):
        k(f'v_add_f32 v{s_ + i % 2}, v{s_ + i % 2}, v{ST+2*i}')
    k(f'v_add_f32 v{s_}, v{s_}, v{m2}')
    k(f'v_ashrrev_i32 v{m2}, 31, v{s_}')
    k(f'v_or_b32 v{m2}, 0x80000000, v{m2}')
    k(f'v_xor_b32 v{s_}, v{s_}, v{m2}')
    k(f'v_and_or_b32 v{s_}, v{s_}, s3, v6')
    k(f'buffer_store_dword v{s_}, v5, s[32:35], 0 offen sc1')
    k('L_ln2_end:')
    k.stamp_end(4)
    k('L_ln2_exit:')
    k('s_endpgm')
    return k
```

```python
import sys
from lib import *
from small import *
from attn import *
def build(opt=None):
    a = gen_attn(opt)
    print('sched overflow:', a.stats, file=sys.stderr)
    ks = [gen_mod(), gen_ln1(), a, gen_ln2b(), gen_moe1(), gen_moe2()]
    return assemble(ks)
if __name__ == '__main__':
    out = sys.argv[1]
    DIAG['on'] = 'diag' in sys.argv[2:]
    opt = {}
    for a in sys.argv[2:]:
        if '=' in a:
            kk, v = a.split('=')
            opt[kk] = eval(v)
    open(out, 'w').write(build(opt))
```

```python
from lib import *
from small import *
from tail import emit_tail, wdma, wload, wstore, LDS_TOTAL

MF = 'v_mfma_f32_16x16x32_bf16'
SCALE = 128 ** -0.5


def q4(t, r):
    return f'{t}[{r}:{r+3}]'


def q2(t, r):
    return f'{t}[{r}:{r+1}]'


def gen_attn(opt=None):
    opt = opt or {}
    dbl = opt.get('dbl', True)
    bias = opt.get('bias', 0.0)
    CSB = 131072 + 256
    k = K('attn_kernel', 256, 256, LDS_TOTAL, nvgpr=256, nagpr=256)
    O, KF, VF = 0, 128, 160
    KA, VA, DK, DV = 8, 12, 20, 24
    OST = 26
    MX = 28
    TMP = 32
    ONE = 40
    NM = 44
    L = 60
    P = 76
    S = 108
    QA = 44
    WA, DW, PF = 172, 180, 184
    Q = HR = 188
    WA2 = TMP
    TMP2 = 0
    stats = []
    E = k

    def emit(lines):
        for ln in lines:
            k(ln)

    k('s_cmp_ge_u32 s2, 256')
    k('s_cbranch_scc1 L_attn_exit')
    k.stamp()
    k(f's_load_dwordx4 s[52:55], s[0:1], {ARG["wq"]}')
    k(f's_load_dwordx2 s[30:31], s[0:1], {ARG["ws"]}')
    k(f's_load_dwordx4 s[4:7], s[0:1], {ARG["k"]}')
    k('v_lshrrev_b32 v1, 6, v0')
    k('v_and_b32 v2, 63, v0')
    k('v_readfirstlane_b32 s33, v1')
    k('s_and_b32 s34, s2, 7')
    k('s_lshl_b32 s34, s34, 1')
    k('s_bfe_u32 s3, s2, 0x10003')
    k('s_add_u32 s34, s34, s3')
    k('s_lshr_b32 s35, s2, 4')
    k('v_lshrrev_b32 v3, 5, v2')
    k('v_and_b32 v4, 1, v1')
    k('v_lshl_add_u32 v4, v4, 2, v3')
    k('v_lshlrev_b32 v4, 1, v4')
    k('v_and_b32 v5, 31, v2')
    k('v_xor_b32 v4, v4, v5')
    k('v_lshl_add_u32 v3, v1, 3, v3')
    k('v_lshlrev_b32 v3, 13, v3')
    k(f'v_lshl_add_u32 v{DW}, v4, 4, v3')
    k(f'v_xor_b32 v{DW+1}, 64, v{DW}')
    k(f'v_add_u32 v{DW+1}, {2*8192-1024}, v{DW+1}')
    k(f'v_add_u32 v{DW+2}, {4*8192-2048}, v{DW}')
    k(f'v_add_u32 v{DW+3}, {4*8192-2048}, v{DW+1}')
    k(f'v_lshlrev_b32 v{OST}, 4, v2')
    k(f'v_add_u32 v{OST+1}, 18432, v{OST}')
    k('s_lshl_b32 s3, s34, 9')
    k(f's_sub_u32 s18, {hx(576*8192)}, s3')
    k('s_lshl_b32 s37, s35, 3')
    k('s_lshl_b32 s36, s33, 1')
    k('s_add_u32 s37, s37, s36')
    k('s_mul_i32 s36, s37, 18432')
    k(f's_add_u32 s36, s36, {hx(WS_H)}')
    k('s_lshl_b32 s38, s33, 12')
    k('s_waitcnt lgkmcnt(0)')
    k.srd_off(16, 's52', 's53', 's3', 's18')
    k.srd_off(20, 's30', 's31', 's36', 2 * 18432)

    def wslot(t):
        return ((t + 3) % 4) * 32768

    def pgroup(t):
        g = [f's_mov_b32 s43, {hx(t*2048)}']
        for h in range(2):
            for rb in range(2):
                r = HR + (t % 4) * 16 + h * 8 + rb * 4
                g.append(f'buffer_load_dwordx4 {q4("v", r)}, v{OST+rb}, s[20:23], s43 offen offset:{1024*h} ;@X{t}')
        for h in range(2):
            kk = 2 * t + h
            g.append(f's_add_u32 m0, s38, {wslot(t) + h*16384}')
            g.append(f's_mov_b32 s42, {hx(kk*262144)}')
            for i in range(4):
                g.append(f'buffer_load_dwordx4 v{DW+i}, s[16:19], s42 offen offset:{1024*i} lds ;@W{t}')
        return g
    k('s_lshl_b32 s3, s33, 10')
    k(f's_add_u32 m0, s3, {CSB}')
    k.srd(24, 's30', 's31', 3456)
    k(f'buffer_load_dwordx4 v{OST}, s[24:27], s3 offen lds')
    lines, vq = resolve_vm(pgroup(0))
    emit(lines)
    k(f's_load_dwordx4 s[44:47], s[0:1], {ARG["wg"]}')
    k(f's_load_dwordx2 s[72:73], s[0:1], {ARG["x"]}')
    k(f's_load_dwordx2 s[76:77], s[0:1], {ARG["out"]}')
    k(f's_load_dwordx2 s[28:29], s[0:1], {ARG["wd"]}')
    k('s_lshl_b32 s3, s34, 19')
    k.srd_off(8, 's4', 's5', 's3', 524288)
    k.srd_off(12, 's6', 's7', 's3', 524288)
    k('s_lshl_b32 s3, s34, 7')
    k('s_add_u32 s3, s3, s37')
    k('s_mul_i32 s3, s3, 18432')
    k(f's_add_u32 s3, s3, {hx(WS_PART)}')
    k.srd_off(24, 's30', 's31', 's3', 2 * 18432)
    k(f's_mul_i32 s3, s34, {256*1152}')
    k.srd_off(56, 's54', 's55', 's3', 256 * 1152)
    k('v_and_b32 v3, 15, v2')
    k('v_lshrrev_b32 v4, 4, v2')
    k('v_xor_b32 v5, v3, v4')
    k('v_lshlrev_b32 v6, 8, v3')
    for s in range(4):
        k(f'v_xor_b32 v7, {4*s}, v5')
        k(f'v_lshl_add_u32 v{KA+s}, v7, 4, v6')
    k('s_lshl_b32 s3, s33, 4')
    k('v_add_u32 v6, s3, v4')
    k('v_lshlrev_b32 v6, 8, v6')
    for i in range(4):
        k(f'v_xor_b32 v7, {4*i}, v5')
        k(f'v_lshl_add_u32 v{DK+i}, v7, 4, v6')
    for i in range(2):
        k(f'v_add_u32 v7, {4*i}, v4')
        k('v_lshlrev_b32 v7, 1, v7')
        k('v_xor_b32 v7, v7, v3')
        k(f'v_lshl_add_u32 v{DV+i}, v7, 4, v6')
    k('v_lshrrev_b32 v3, 2, v2')
    k('v_and_b32 v4, 3, v2')
    k('v_lshlrev_b32 v5, 8, v3')
    k('v_lshl_add_u32 v5, v4, 3, v5')
    k('v_add_u32 v5, 0x10000, v5')
    k('v_and_b32 v6, 7, v3')
    for db in range(8):
        k(f'v_xor_b32 v7, {db}, v6')
        k(f'v_lshl_add_u32 v{VA+db}, v7, 5, v5')
    k('v_bfe_u32 v3, v2, 2, 2')
    k('v_lshrrev_b32 v5, 4, v2')
    k('v_lshl_add_u32 v6, v5, 3, v3')
    k('v_lshlrev_b32 v6, 9, v6')
    k('v_lshl_add_u32 v6, v4, 3, v6')
    k('v_and_b32 v5, 1, v5')
    k('v_lshl_add_u32 v5, v5, 2, v3')
    for u in range(8):
        k(f'v_xor_b32 v7, {u}, v5')
        k(f'v_lshl_add_u32 v{WA+u}, v7, 5, v6')
        k(f'v_add_u32 v{WA2+u}, 0x10000, v{WA+u}')
    for i in range(12):
        k(f'v_accvgpr_write_b32 a{192+i}, v{KA+i}')
    lines, vq = resolve_vm(pgroup(1), vq)
    for i in range(128):
        k(f'v_accvgpr_write_b32 a{O+i}, 0')
        if i % 7 == 0 and lines:
            k(lines.pop(0))
    assert not lines
    k('v_lshrrev_b32 v3, 3, v2')
    k('v_lshl_add_u32 v3, v1, 5, v3')
    k('v_mul_u32_u24 v3, 1152, v3')
    k('v_lshrrev_b32 v4, 4, v2')
    k('v_lshlrev_b32 v4, 1, v4')
    k('v_and_b32 v5, 7, v2')
    k('v_xor_b32 v4, v4, v5')
    k('v_lshl_add_u32 v252, v4, 4, v3')
    k('v_lshrrev_b32 v3, 2, v2')
    k('v_lshlrev_b32 v3, 7, v3')
    k('v_and_b32 v4, 3, v2')
    k('v_lshl_add_u32 v3, v4, 3, v3')
    k('v_bfe_u32 v4, v2, 3, 2')
    k('v_lshl_add_u32 v253, v4, 5, v3')
    k('s_waitcnt lgkmcnt(0)')
    k.srd(60, 's44', 's45', 576 * 9216)
    k.srd(64, 's46', 's47', 576 * 9216)
    k.srd(68, 's28', 's29', 4608 * 1152)
    k('s_mov_b32 s74, 2359296')
    k('s_mov_b32 s75, 0x20000')
    k('s_mov_b32 s78, 2359296')
    k('s_mov_b32 s79, 0x20000')
    k.srd_off(48, 's30', 's31', WS_X1, WS_END - WS_X1)
    PFS = {0: 60, 1: 64, 2: 68}
    k('v_lshlrev_b32 v254, 7, v2')
    k('v_lshlrev_b32 v255, 3, v2')
    k('s_getpc_b64 s[4:5]')
    k('L_attn_pc:')
    k('s_add_u32 s4, s4, 0x3000')
    k('s_addc_u32 s5, s5, 0')
    k('s_mov_b32 s6, L_code_end-L_attn_pc-0x3000')
    k('s_mov_b32 s7, 0x20000')
    k('s_bfe_u32 s3, s2, 0x10003')
    k('s_lshl_b32 s3, s3, 2')
    k('s_add_u32 s3, s3, s33')
    k('s_lshl_b32 s52, s3, 13')
    k('s_add_u32 s52, s52, L_attn_tail-L_attn_pc-0x3000')
    k('s_mov_b32 s53, 0')
    k('s_lshl_b32 s39, s2, 2')
    k('s_add_u32 s39, s39, s33')
    k('s_lshl_b32 s36, s39, 13')
    k('s_mul_i32 s37, s39, 2304')
    k('s_lshr_b32 s3, s2, 3')
    k('s_lshl_b32 s3, s3, 2')
    k('s_add_u32 s3, s3, s33')
    k('s_min_u32 s3, s3, 95')
    k('s_and_b32 s53, s2, 7')
    k('s_mul_i32 s39, s3, 9216')
    k('s_lshl_b32 s34, s53, 7')
    k('s_add_u32 s39, s39, s34')
    k(f's_mul_i32 s34, s53, 73728')
    k('s_lshl_b32 s3, s3, 7')
    k('s_add_u32 s34, s34, s3')
    k('v_and_b32 v4, 31, v2')
    k('v_min_u32 v4, 8, v4')
    k(f'v_lshlrev_b32 v{PF+2}, 10, v4')
    k(f'v_mul_u32_u24 v{PF+3}, {8*73728}, v4')
    if opt.get('pf64', False):
        k('v_and_b32 v4, 32, v2')
        k(f'v_lshl_add_u32 v{PF+2}, v4, 1, v{PF+2}')
        k(f'v_lshl_add_u32 v{PF+3}, v4, 1, v{PF+3}')
    k('s_lshl_b32 s32, s35, 2')
    k('s_add_u32 s32, s32, s33')
    k('s_mul_i32 s32, s32, 4608')
    k('s_mov_b32 s45, 0')
    k(f's_mov_b32 s44, {hx(f2u(SCALE * LOG2E))}')
    k(f's_mov_b32 s46, {hx(f2u(bias))}')

    def kdma(T, tag=None):
        g = [f's_add_u32 m0, s38, {(T % 4)*16384}', f's_mov_b32 s42, {hx(T*16384)}']
        for i in range(4):
            g.append(f'buffer_load_dwordx4 v{DK+i}, s[8:11], s42 offen offset:{1024*i} lds ;@K{T % 4}')
        return g

    def vdma(T):
        g = [f's_add_u32 m0, s38, {65536 + (T % 4)*16384}', f's_mov_b32 s42, {hx(T*16384)}']
        for i in range(4):
            g.append(f'buffer_load_dwordx4 v{DV + i % 2}, s[12:15], s42 offen offset:{1024*i} lds ;@V{T % 4}')
        return g

    def gemm(nf, rd, mf_of, at_bar, extra=None, first_bar_items=None, LA=6):
        pre = []
        for f in range(LA):
            pre += rd(f)
        mf = []
        G = []
        for f in range(nf):
            G.append(len(mf))
            mf += mf_of(f)
        rs, ns, ds = [], [], []
        if first_bar_items:
            n = len(first_bar_items)
            for i, x in enumerate(first_bar_items):
                ds.append(It(x, 1, lo=0, hi=2 + (i * 44) // n, sep=x.startswith('buffer')))
        for f in range(nf):
            g = G[f]
            if (f + LA) % 32 == 0:
                ab = at_bar(f // 32)
                if ab:
                    tags, dm, span = ab
                    rs.append(It(f'VWAIT {tags}', 1, lo=g - 2, hi=g))
                    b = It('s_barrier', 1, lo=g - 2, hi=g)
                    rs.append(b)
                    n = len(dm)
                    for i, x in enumerate(dm):
                        ds.append(It(x, 1, lo=g + 1 + (i * span) // n - 4, hi=g + 2 + (i * span) // n,
                                     sep=x.startswith('buffer'), after=[b]))
            if f + LA < nf:
                for i, x in enumerate(rd(f + LA)):
                    rs.append(It(x, 1, lo=g - 1, hi=g + i))
            if f % 2 == 0 and f > 0:
                r = KF + 4 * (f % 16)
                ns.append(It(f'NEED a[{r}:{r+7}]', 1, lo=g - 1, hi=g - 1))
        streams = [ns, rs, ds] + (extra(G) if extra else [])
        return pre + sched(mf, streams, stats=stats)

    k('s_and_b32 s3, s2, 7')
    k('s_lshl_b32 s3, s3, 1')
    k('s_bfe_u32 s36, s2, 0x10003')
    k('s_add_u32 s3, s3, s36')
    k('s_lshl_b32 s36, s35, 4')
    k('s_add_u32 s3, s3, s36')
    k('s_lshl_b32 s40, s3, 6')
    k('s_mul_i32 s41, s3, 36864')
    k('s_cmp_lt_u32 s3, 144')
    k('s_cselect_b32 s40, s40, 0x1000000')
    k('v_lshrrev_b32 v3, 2, v0')
    k('v_mul_u32_u24 v3, 9216, v3')
    k('v_lshrrev_b32 v6, 4, v2')
    k('v_and_b32 v7, 2, v6')
    k('v_and_b32 v4, 3, v2')
    k('v_xor_b32 v4, v4, v7')
    k('v_lshl_add_u32 v3, v4, 4, v3')
    k('v_add_u32 v3, s40, v3')
    k('v_lshrrev_b32 v4, 3, v0')
    k('v_mul_u32_u24 v4, 1152, v4')
    k('v_lshlrev_b32 v6, 1, v6')
    k('v_and_b32 v7, 7, v2')
    k('v_xor_b32 v6, v6, v7')
    k('v_lshl_add_u32 v4, v6, 4, v4')
    k('v_add_u32 v4, s41, v4')
    k('v_accvgpr_write_b32 a205, v3')
    k('v_accvgpr_write_b32 a206, v4')
    k('s_lshl_b32 s36, s33, 10')
    M0, M1 = PF, PF + 1
    ID, QS = 248, 216
    c = SCALE * LOG2E
    chi = (f2u(c) + 0x8000) >> 16
    clo = (f2u(c - struct.unpack('<f', struct.pack('<I', chi << 16))[0]) + 0x8000) >> 16
    k('v_and_b32 v3, 1, v2')
    k('v_lshlrev_b32 v3, 4, v3')
    k('v_mov_b32 v4, 0xffff')
    k('v_lshlrev_b32 v3, v3, v4')
    k('v_lshrrev_b32 v4, 4, v2')
    k('v_bfe_u32 v5, v2, 1, 3')
    k('v_lshlrev_b32 v6, 1, v4')
    k('v_or_b32 v7, 1, v6')
    k('v_cmp_eq_u32 vcc, v5, v6')
    k('v_cmp_eq_u32 s[40:41], v5, v7')
    k('s_mov_b32 s47, 0x3f803f80')
    k(f'v_cndmask_b32 v{M0}, 0, v3, vcc')
    k(f'v_cndmask_b32 v{M1}, 0, v3, s[40:41]')
    k(f'v_and_b32 v6, s47, v{M0}')
    k(f'v_and_b32 v7, s47, v{M1}')
    for i, r in enumerate(('v6', 'v7', '0', '0', 'v6', 'v7')):
        k(f'v_accvgpr_write_b32 a{ID+i}, {r}')
    k('v_bfe_u32 v6, v2, 2, 1')
    k('v_lshlrev_b32 v6, 1, v6')
    k('v_sub_u32 v4, v4, v6')
    k('v_bfe_u32 v6, v2, 3, 1')
    k('v_and_b32 v5, 1, v5')
    k('v_lshl_add_u32 v5, v6, 1, v5')
    k('v_lshl_add_u32 v5, v4, 2, v5')
    k(f'v_and_b32 v6, {hx(chi * 0x10001)}, v3')
    k(f'v_and_b32 v7, {hx(clo * 0x10001)}, v3')
    for code in range(8):
        k(f'v_cmp_eq_u32 vcc, {code}, v5')
        k('s_nop 1')
        k('v_cndmask_b32 v3, 0, v6, vcc')
        k('v_cndmask_b32 v4, 0, v7, vcc')
        k(f'v_accvgpr_write_b32 a{QS+code}, v3')
        k(f'v_accvgpr_write_b32 a{QS+8+code}, v4')
    k('v_lshrrev_b32 v1, 4, v2')
    k('v_lshlrev_b32 v1, 4, v1')
    k('v_accvgpr_write_b32 a254, v0')
    k(f'v_add_u32 v{TMP2}, {CSB + 2304}, v1')
    k('v_lshlrev_b32 v1, 1, v1')
    k(f'v_add_u32 v1, {CSB}, v1')
    k('v_mov_b32 v4, 0')
    k('v_mov_b32 v5, 0')
    lines, vq = resolve_vm(['VWAIT W0', 's_barrier'], vq)
    emit(lines)
    k.stamp('h')

    def prd(f):
        kk, u = f // 16, f % 16
        t = kk // 2
        base = wslot(t) + (kk % 2) * 16384 + (u // 8) * 256
        a = (WA if base < 65536 else WA2) + u % 8
        base %= 65536
        r = KF + 4 * (f % 16)
        return [f'ds_read_b64_tr_b16 {q2("a", r)}, v{a} offset:{base}',
                f'ds_read_b64_tr_b16 {q2("a", r+2)}, v{a} offset:{base + 2048}']

    def pmf(f):
        kk, u = f // 16, f % 16
        t = kk // 2
        out = []
        for rb in range(2):
            acc = QA + ((u // 8) * 2 + rb) * 32 + (u % 8) * 4
            b = HR + (t % 4) * 16 + (kk % 2) * 8 + rb * 4
            c = '0' if kk == 0 else q4('v', acc)
            out.append(f'{MF} {q4("v", acc)}, {q4("a", KF + 4*(f % 16))}, {q4("v", b)}, {c}')
        return out

    def pbar(t):
        if t + 3 <= 8:
            return f'W{t+1}', pgroup(t + 3), 50
        if t == 6:
            return 'W7', kdma(0) + kdma(1), 50
        if t == 7:
            return 'W8', kdma(2), 30
        return 'K0', vdma(0) + vdma(1), 9
    CQ, SQ, DG = 8, 12, 2
    OUT = [28, 40]

    def xreg(kk, rb):
        return HR + ((kk // 2) % 4) * 16 + (kk % 2) * 8 + rb * 4

    def m1(kk, rb):
        return [f'{MF} {q4("v", OUT[T])}, {q4("v", DG + 2*T)}, {q4("v", xreg(kk, rb))}, 0' for T in range(2)]

    def m2(kk, rb):
        return [f'{MF} {q4("v", OUT[T])}, {q4("a", ID + 2*T)}, {q4("v", xreg(kk, rb))}, {q4("v", SQ + 4*T)}' for T in range(2)]

    def mcvt(kk, rb):
        return [f'v_cvt_pk_bf16_f32 v{xreg(kk, rb) + d}, v{OUT[d // 2] + 2*(d % 2)}, v{OUT[d // 2] + 2*(d % 2) + 1}' for d in range(4)]

    def cread(kk):
        return [f'ds_read_b128 {q4("v", CQ)}, v{TMP2} offset:{kk*64}']

    def sread(kk):
        return [f'ds_read_b128 {q4("v", SQ + 4*T)}, v1 offset:{kk*128 + T*16}' for T in range(2)]

    def diag():
        return [f'v_and_b32 v{DG + (0, 1, 4, 5)[d]}, v{CQ + d}, v{(M0, M1)[d % 2]}' for d in range(4)]
    MPOS = {0: (m1, 0), 4: (m2, 0), 8: (m1, 1), 12: (m2, 1)}

    def pmf2(f):
        kk, u = f // 16, f % 16
        out = pmf(f)
        if u in MPOS and kk + 1 < 18:
            fn, rb = MPOS[u]
            out += fn(kk + 1, rb)
        return out

    def mstreams(G):
        cv, tb = [], []
        for kk in range(1, 18):
            f0 = 16 * (kk - 1)
            for u in (0, 4, 8, 12):
                for i, x in enumerate(mcvt(kk, MPOS[u][1])):
                    cv.append(It(x, 1, lo=G[f0 + u + 2] + 1, hi=G[f0 + u + 3] + (i // 2) - (1 if u == 12 else 0)))
            if kk + 1 < 18:
                tb.append(It(cread(kk + 1)[0], 1, lo=G[f0 + 5], hi=G[f0 + 7]))
                for i, x in enumerate(diag()):
                    tb.append(It(x, 1, lo=G[f0 + 10], hi=G[f0 + 12 + i // 2]))
                if (kk + 1) % 2 == 0:
                    tb.append(It(f'VWAIT X{(kk+1)//2}', 1, lo=G[f0 + 13], hi=G[f0 + 15]))
                for x in sread(kk + 1):
                    tb.append(It(x, 1, lo=G[f0 + 14] + 1, hi=G[f0 + 16]))
        return [cv, tb]
    body = gemm(288, prd, pmf2, pbar, extra=mstreams, first_bar_items=pgroup(2), LA=5)
    OUT2 = [QA, QA + 4]
    first = cread(0) + sread(0) + body[:10] + diag() + cread(1) + ['s_nop 0'] + m1(0, 0)
    sw = lambda L: [x.replace(q4('v', OUT[0]), q4('v', OUT2[0])).replace(q4('v', OUT[1]), q4('v', OUT2[1])) for x in L]
    cv2 = [f'v_cvt_pk_bf16_f32 v{xreg(0, 1) + d}, v{QA + 2*d}, v{QA + 2*d + 1}' for d in range(4)]
    first += sw(m1(0, 1)) + ['s_nop 5'] + mcvt(0, 0) + cv2 + m2(0, 0) + sw(m2(0, 1)) + diag() + ['s_nop 1'] + mcvt(0, 0) + cv2
    first += sread(1)
    lines = first + body[10:]
    lines, vq = resolve_vm(lines, vq)
    lines, _ = insert_lgkm(lines)
    emit(lines)
    k.stamp('h')

    def sreg(buf, qb, kb):
        return S + buf * 32 + qb * 8 + kb * 4

    def kread(j, u):
        T, ht = j // 2, j % 2
        off = (T % 4) * 16384 + (ht * 2 + u // 4) * 4096
        return [f'ds_read_b128 {q4("a", KF + 4*u)}, v{KA + u % 4} offset:{off}']

    def vread(j, u):
        T, ht = j // 2, j % 2
        off = (T % 4) * 16384 + ht * 8192
        return [f'ds_read_b64_tr_b16 {q2("a", VF + 4*u)}, v{VA + u} offset:{off}',
                f'ds_read_b64_tr_b16 {q2("a", VF + 4*u + 2)}, v{VA + u} offset:{off + 4096}']

    def qk1(j, u, qb, czero=False):
        kb, s = u // 4, u % 4
        d = sreg(j % 2, qb, kb)
        if s == 0:
            c = '0' if czero else q4('v', NM + 4 * qb)
        else:
            c = q4('v', d)
        return f'{MF} {q4("v", d)}, {q4("a", KF + 4*u)}, {q4("v", Q + qb*16 + s*4)}, {c}'

    USLOT = [0, 1, 4, 2, 5, 3, 6, 7]

    def wodma(U):
        src = (U % 2) * 128 * 1152 + (U // 2) * 128
        g = [f's_add_u32 m0, s38, {USLOT[U % 8]*16384}', f's_mov_b32 s42, {hx(src)}']
        for i in range(4):
            g.append(f'buffer_load_dwordx4 v{DW+i}, s[56:59], s42 offen offset:{1024*i} lds ;@U{U}')
        return g

    def localmax(buf, qb):
        r = sreg(buf, qb, 0)
        out = [f'v_max3_f32 v{TMP+qb}, v{r}, v{r+1}, v{MX+qb}']
        for i in range(2, 8, 2):
            out.append(f'v_max3_f32 v{TMP+qb}, v{r+i}, v{r+i+1}, v{TMP+qb}')
        return out

    def crossmax():
        out = []
        for op in ('v_permlane16_swap_b32', 'v_permlane32_swap_b32'):
            for qb in range(4):
                out.append(f'v_mov_b32 v{TMP+4+qb}, v{TMP+qb}')
            out.append('s_nop 0')
            for qb in range(4):
                out.append(f'{op} v{TMP+qb}, v{TMP+4+qb}')
            for qb in range(4):
                out.append(f'v_max_f32 v{TMP+qb}, v{TMP+qb}, v{TMP+4+qb}')
        return out
    order = [2, 0, 1, 3]
    misc = [f'v_accvgpr_read_b32 v{KA+i}, a{192+i}' for i in range(12)]
    for u in range(8):
        misc += kread(0, u)
    misc2 = []
    for i in range(4):
        misc2 += [f'v_mov_b32 v{ONE+i}, 0x3f803f80', f'v_mov_b32 v{MX+i}, 0xff800000']
    misc2 += ['v_accvgpr_read_b32 v0, a205', 'v_accvgpr_read_b32 v2, a206']
    misc2.append(f'v_mov_b32 v{DW}, v252')
    for i in range(1, 4):
        misc2.append(f'v_add_u32 v{DW+i}, {i*(8*1152-1024)}, v252')
    for nbl in range(4):
        misc2.append(f'v_xor_b32 v{WA+nbl}, {nbl*32}, v253')
        misc2.append(f'v_add_u32 v{WA+4+nbl}, 0x10000, v{WA+nbl}')

    def ucvt(qb, s):
        a, d = QA + qb * 32 + s * 8, Q + qb * 16 + s * 4
        return [f'v_cvt_pk_bf16_f32 v{d+j}, v{a+2*j}, v{a+2*j+1}' for j in range(4)]

    def umf(qb, s):
        a, d = QA + qb * 32 + s * 8, Q + qb * 16 + s * 4
        return [f'{MF} {q4("v", a + 4*(j % 2))}, {q4("a", QS + 4*j)}, {q4("v", d)}, {"0" if j < 2 else q4("v", a + 4*(j % 2))}'
                for j in range(4)]
    mf, upos, qpos = [], {}, {}
    for i, qb in enumerate(order):
        for s_ in range(4):
            upos[qb, s_] = len(mf)
            mf += umf(qb, s_)
        if i >= 1:
            qpos[order[i - 1]] = len(mf)
            mf += [qk1(0, u, order[i - 1], True) for u in range(8)]
    qpos[3] = len(mf)
    mf += [qk1(0, u, 3, True) for u in range(8)]
    pre_s, post_s = [], []
    units = [(qb, s_) for qb in order for s_ in range(4)]
    for n, (qb, s_) in enumerate(units):
        p = upos[qb, s_]
        if n >= 1:
            pre_s += [It(x, 1, lo=p - 8, hi=p - 3) for x in ucvt(qb, s_)]
        post_s += [It(x, 1, lo=p + 7, hi=min(p + 12, qpos[qb] - 3 if qb == 2 else qpos[qb] + s_ - 3)) for x in ucvt(qb, s_)]
    fin = localmax(0, 2) + localmax(0, 0) + localmax(0, 1) + [f'v_mov_b32 v{L+i}, 0' for i in range(4)]
    oth = [It(x, 1, lo=0, hi=10 + i) for i, x in enumerate(misc[8:])] + [It(x, 1, lo=0, hi=70) for x in misc2]
    oth += [It(x, 1, lo=qpos[1], hi=200) for x in fin[:8]] + [It(x, 1, lo=qpos[3] + 5, hi=200) for x in fin[8:]]
    lines = misc[:8] + ucvt(*units[0]) + ['s_nop 1'] + sched(mf, [pre_s, post_s, oth], stats=stats)
    lines, _ = insert_lgkm(lines)
    emit(lines)
    k('s_branch L_attn_go')
    k('L_attn_entry:')
    lines = []
    for u in range(8):
        lines += kread(0, u)
    for i in range(128):
        lines.append(f'v_accvgpr_write_b32 a{O+i}, 0')
    for qb in order:
        for u in range(8):
            lines.append(qk1(0, u, qb, True))
    lines += fin
    lines, _ = insert_lgkm(lines)
    emit(lines)
    k('L_attn_go:')
    lines = []
    for u in range(4):
        lines += kread(1, u)
    lines += [f'v_mov_b32 v{L+i}, 0' for i in range(4, 16)]
    lines += localmax(0, 3) + crossmax()
    for qb in range(4):
        lines.append(f'v_add_f32 v{TMP+qb}, s46, v{TMP+qb}')
    for qb in range(4):
        for i in range(4):
            lines.append(f'v_sub_f32 v{NM+4*qb+i}, 0, v{TMP+qb}')
    for kb in range(2):
        for qb in range(4):
            for i in range(4):
                r = sreg(0, qb, kb) + i
                lines.append(f'v_sub_f32 v{r}, v{r}, v{TMP+qb}')
    lines, q = insert_lgkm(lines)
    emit(lines)
    k.stamp('h')
    k('s_mov_b32 s40, 7')
    k(f's_mov_b32 s41, {hx(2*16384)}')

    def step(j, extra=None):
        do_qk = j + 1 <= 63
        do_sm = j <= 63
        do_pv = j >= 1
        T = j // 2
        mf = []
        gs = []
        for u in range(8):
            gs.append(len(mf))
            pb = P + ((j - 1) % 2) * 16
            if do_qk:
                mf += [qk1(j + 1, u, qb) for qb in range(4)]
            if do_pv and j == 64 and u == 0:
                for qb in range(4):
                    mf.append(f'{MF} {q4("v", L + 4*qb)}, {q4("v", ONE)}, {q4("v", pb + qb*4)}, {q4("v", L + 4*qb)}')
            if do_pv:
                for qb in range(4):
                    o = O + qb * 32 + u * 4
                    mf.append(f'{MF} {q4("a", o)}, {q4("a", VF + 4*u)}, {q4("v", pb + qb*4)}, {q4("a", o)}')
                if u % 2 == 0 and j != 64:
                    qb = u // 2
                    mf.append(f'{MF} {q4("v", L + 4*qb)}, {q4("v", ONE)}, {q4("v", pb + qb*4)}, {q4("v", L + 4*qb)}')
        n = len(mf)
        gs.append(n)
        es, cs, rs, ns, ds = [], [], [], [], []
        if do_sm:
            b = j % 2
            e = 0
            for kb in range(2):
                for qb in range(4):
                    for h in range(2):
                        s0 = sreg(b, qb, kb) + 2 * h
                        t0 = TMP + 2 * ((e // 2) % 4)
                        pair = []
                        for i in range(2):
                            tg = (e * (n - 2)) // 32
                            it = It(f'v_exp_f32 v{t0+i}, v{s0+i}', 2, lo=tg - 1, hi=tg + 1,
                                    after=[cs[e // 2 - 4]] if e >= 8 else None)
                            es.append(it)
                            pair.append(it)
                            e += 1
                        cs.append(It(f'v_cvt_pk_bf16_f32 v{P + b*16 + qb*4 + kb*2 + h}, v{t0}, v{t0+1}', 1,
                                     hi=tg + 6, after=pair))
        bar = None
        for u in range(8):
            if u == 4 and j % 2 == 0 and j <= 62:
                rs.append(It(f'VWAIT K{(T+1) % 4},V{T % 4}', 1, lo=gs[4] - 1, hi=gs[4] + 1))
                bar = It('s_barrier', 1, lo=gs[4] - 1, hi=gs[4] + 1)
                rs.append(bar)
            rd = []
            if u < 4:
                if do_qk:
                    rd += kread(j + 1, u + 4)
                if do_pv:
                    rd += vread(j - 1, u + 4)
            else:
                if j + 2 <= 63:
                    rd += kread(j + 2, u - 4)
                if j <= 63:
                    rd += vread(j, u - 4)
            w = gs[u + 1] - gs[u]
            for i, x in enumerate(rd):
                rs.append(It(x, 1, lo=gs[u] - (2 if u else 0), hi=gs[u] + ((i + 1) * w) // len(rd) - 1))
            if u % 2 == 1:
                f = (u + 1) % 8
                ns.append(It(f'NEED a[{KF+4*f}:{KF+4*f+7}], a[{VF+4*f}:{VF+4*f+7}]', 1, lo=gs[u + 1] - 2, hi=gs[u + 1] - 1))
        special = {58: 0, 60: 1, 61: 2, 62: 3, 63: 4}
        dm = []
        if j in special:
            dm = wodma(special[j])
        elif j < 63:
            if j % 2 == 0:
                dm = [f's_add_u32 m0, s38, {((T+3) % 4)*16384}', 's_add_u32 s41, s41, 16384']
                dm += [f'buffer_load_dwordx4 v{DK+i}, s[8:11], s41 offen offset:{1024*i} lds ;@K{(T+3) % 4}' for i in range(4)]
            else:
                dm = [f's_add_u32 m0, s38, {65536 + ((T+2) % 4)*16384}', f's_sub_u32 s42, s41, {16384 if j < 58 else 0}']
                dm += [f'buffer_load_dwordx4 v{DV + i % 2}, s[12:15], s42 offen offset:{1024*i} lds ;@V{(T+2) % 4}' for i in range(4)]
                if j < 57 and opt.get('pf_moe', True):
                    w = (j % 8) // 2
                    if w < 2:
                        dm.append(f'buffer_load_dword v{PF}, v{PF+2}, s[{PFS[w]}:{PFS[w]+3}], s39 offen')
                    elif w == 2:
                        dm.append(f'buffer_load_dword v{PF}, v{PF+3}, s[{PFS[w]}:{PFS[w]+3}], s34 offen')
                        dm.append(f's_add_u32 s39, s39, {96*9216}')
                        dm.append(f's_add_u32 s34, s34, {96*128}')
                    else:
                        dm.append(f'buffer_load_dwordx2 {q2("v", PF)}, v255, s[56:59], s32 offen')
                        dm.append(f'buffer_load_dwordx2 {q2("v", PF)}, v255, s[56:59], s32 offen offset:512')
                        dm.append('s_add_u32 s32, s32, 768')
        if j % 2 == 0 and 2 <= j <= 56:
            w = (j % 8) // 2
            pf = []
            if w == 0 and opt.get('pf_code', True):
                pf = [f'buffer_load_dword v{PF}, v254, s[4:7], s52 offen']
            elif w == 1 and opt.get('pf_ws', 'no') == 'rd':
                pf = [f'buffer_load_dword v{PF}, v254, s[48:51], s36 offen', f's_add_u32 s36, s36, {8 << 20}']
            elif w == 2 and opt.get('pf_x', True):
                pf = [f'buffer_load_dwordx2 {q2("v", PF)}, v255, s[72:75], s37 offen']
            elif w == 3 and opt.get('pf_x', True):
                pf = [f'buffer_load_dwordx2 {q2("v", PF)}, v255, s[76:79], s37 offen', 's_add_u32 s37, s37, 384']
            if opt.get('pf_ws', 'no') == 'wr':
                pf.append(f'buffer_store_dwordx4 {q4("v", ONE)}, v{OST}, s[24:27], s53 offen sc1')
                if w % 2:
                    pf.append(f'buffer_store_dwordx4 {q4("v", ONE)}, v{OST}, s[24:27], s53 offen offset:1024 sc1')
                pf.append(f's_add_u32 s53, s53, {2048 if w % 2 else 1024}')
            for i, x in enumerate(pf):
                ds.append(It(x, 2 if x.startswith(('buffer', 'global')) else 1, lo=4 + 6 * i, hi=12 + 6 * i))
        ws_ = []
        if 57 <= j <= 62:
            if j % 2 == 0:
                items = {58: wdma('gu', 8) + wdma('d', 4), 60: wdma('d', 5) + wdma('d', 6), 62: wdma('d', 7) + wdma('d', 8)}[j]
                for i, x in enumerate(items):
                    tg = 2 + (i * 28) // len(items)
                    ds.append(It(x, 2 if x.startswith('buffer') else 1, lo=tg - 2, hi=tg + 3, sep=x.startswith('buffer')))
                items = wload('gu', {58: 2, 60: 3, 62: 6}[j]) if j != 58 else []
            else:
                items = {57: wload('gu', 0) + wload('gu', 1), 59: wload('gu', 2), 61: wload('gu', 4) + wload('gu', 5)}[j]
            for i, x in enumerate(items):
                tg = 4 + (i * 58) // len(items)
                ws_.append(It(x, 2 if x.startswith('buffer') else 1, lo=tg - 3, hi=tg + 4))
        if dm:
            lo0 = gs[4] + 2 if j % 2 == 0 else 0
            nb = sum(x.startswith('buffer') for x in dm)
            ib = 0
            for x in dm:
                tg = lo0 + ((n - 1 - lo0) * (ib + 0.6)) // nb
                isb = x.startswith('buffer')
                ds.append(It(x, 2 if isb else 1, lo=(tg - 3 if isb else lo0), hi=min(n - 1, tg + 3), sep=isb,
                             after=[bar] if (bar and isb) else None))
                ib += isb
        return sched(mf, [ns, es, rs, cs, ds, ws_] + (extra or []), stats=stats)

    l0, vq = resolve_vm(step(0), vq)
    l0, q = insert_lgkm(l0, q)
    emit(l0)
    loopctl = [It('s_sub_u32 s40, s40, 1', 1, lo=40, hi=66)]
    body = []
    for j in range(1, 9):
        body += step(j)
    res = []
    for rep in range(2):
        o, vq = resolve_vm(body, vq)
        o, q = insert_lgkm(o, q)
        res.append(o)
    assert len(res[0]) == len(res[1]), 'loop not in steady state'
    for i, (a, b) in enumerate(zip(*res)):
        if a != b:
            ma, mb = re.match(r's_waitcnt (\w+)\((\d+)\)', a), re.match(r's_waitcnt (\w+)\((\d+)\)', b)
            assert ma and mb and ma.group(1) == mb.group(1), (a, b)
            res[0][i] = f's_waitcnt {ma.group(1)}({min(int(ma.group(2)), int(mb.group(2)))})'
    k('.p2align 6')
    k('L_attn_loop:')
    emit(res[0])
    k('s_sub_u32 s40, s40, 1')
    k('s_cmp_lg_u32 s40, 0')
    k('s_cbranch_scc1 L_attn_loop')
    k('L_attn_tail:')
    tail = []
    for j in range(57, 64):
        tail += step(j)
    tail.append('s_nop 1')
    OF = S
    ACC = P
    PK = NM
    RI = TMP
    norm = []
    for qb in range(4):
        norm.append(It(f'v_rcp_f32 v{RI+qb}, v{L+4*qb}', 2, lo=12))
    norm.append(It(f'v_max3_f32 v{TMP+4}, v{L}, v{L+4}, v{L+8}', 1))
    norm.append(It(f'v_max_f32 v{TMP+4}, v{TMP+4}, v{L+12}', 1))
    tv = [1, 3, 4, 5, 6, 7, 252, 253]
    late = []
    for db in range(8):
        blk = []
        for half in range(2):
            for qb in (2 * half, 2 * half + 1):
                for i in range(4):
                    blk.append(f'v_accvgpr_read_b32 v{tv[(qb % 2)*4 + i]}, a{O + qb*32 + db*4 + i}')
            for qb in (2 * half, 2 * half + 1):
                for i in range(4):
                    t = tv[(qb % 2)*4 + i]
                    blk.append(f'v_mul_f32 v{t}, v{t}, v{RI+qb}')
            for qb in (2 * half, 2 * half + 1):
                for i in range(2):
                    blk.append(f'v_cvt_pk_bf16_f32 v{OF + qb*16 + db*2 + i}, v{tv[(qb % 2)*4 + 2*i]}, v{tv[(qb % 2)*4 + 2*i + 1]}')
        if db < 2:
            norm += [It(x, 1, lo=4 + 4 * (db + 1) + 7) for x in blk]
        else:
            late += blk
    tail += step(64, extra=[norm])
    tail += late
    ZR = L
    tail += [f'v_mov_b32 v{ZR+i}, 0' for i in range(4)]
    tail.append('s_nop 1')
    for i in range(16):
        tail.append(f'{MF} {q4("v", L+4)}, {q4("v", ZR)}, {q4("v", OF + 4*i)}, {"0" if i == 0 else q4("v", L+4)}')
        if i == 0:
            tail += ['VWAIT U0,U1', 's_barrier']
    o, vq = resolve_vm(tail, vq)
    o, q = insert_lgkm(o, q)
    emit(o)
    k.stamp()

    def ord_(f):
        nb, ks = f // 8, f % 8
        U = (nb // 4) * 2 + ks // 4
        sl = USLOT[U % 8]
        a = WA + (4 if sl >= 4 else 0) + nb % 4
        off = (sl % 4) * 16384 + (ks % 4) * 4096
        r = KF + 4 * (f % 16)
        return [f'ds_read_b64_tr_b16 {q2("a", r)}, v{a} offset:{off}',
                f'ds_read_b64_tr_b16 {q2("a", r+2)}, v{a} offset:{off + 2048}']

    def omf(f):
        nb, ks = f // 8, f % 8
        out = []
        for rb in range(2):
            acc = ACC + ((nb // 2) % 2) * 16 + (nb % 2) * 8 + rb * 4
            b = OF + ((ks // 4) * 2 + rb) * 16 + (ks % 4) * 4
            c = '0' if ks == 0 else q4('v', acc)
            out.append(f'{MF} {q4("v", acc)}, {q4("a", KF + 4*(f % 16))}, {q4("v", b)}, {c}')
        return out

    def obar(t):
        if t == 8:
            return None
        dm = wodma(2*t+6) + wodma(2*t+7) if (t >= 1 and t + 3 <= 8) else []
        if t == 0:
            dm = wload('gu', 7) + sum((wload('d', b) for b in range(4)), [])
        elif t >= 6:
            dm = sum((wstore('gu', b, 252) for b in range(4 * (t - 6), 4 * (t - 5))), [])
        return f'U{2*t+2},U{2*t+3}', dm, 50

    def flush_pair(p):
        out = []
        par = p % 2
        if p % 4 == 0:
            out.append(f's_mov_b32 s43, {p*1024}')
        for rb in range(2):
            for h in range(2):
                a = ACC + par * 16 + h * 8 + rb * 4
                for i in range(2):
                    out.append(f'v_cvt_pk_bf16_f32 v{PK + par*8 + rb*4 + h*2 + i}, v{a+2*i}, v{a+2*i+1}')
            out.append(f'buffer_store_dwordx4 {q4("v", PK + par*8 + rb*4)}, v{OST+rb}, s[24:27], s43 offen offset:{(p % 4)*1024} sc1')
        return out
    fl = []
    chk = [f's_mov_b32 s3, {hx(f2u(2.0**100))}', f'v_cmp_ngt_f32 vcc, s3, v{TMP+4}',
           f'v_cmp_u_f32 s[28:29], v{L+4}, v{L+4}', 's_lshl_b32 s3, s33, 2', 's_add_u32 s3, s3, 0x20000', 'v_mov_b32 v3, s3',
           's_or_b64 s[28:29], s[28:29], vcc\ns_cselect_b32 s3, 1, 0', 'v_mov_b32 v4, s3', 'ds_write_b32 v3, v4',
           'v_mov_b32 v3, 0x20000', 's_add_u32 s3, s36, 0x8000', f'v_add_u32 v252, s3, v{OST}', 'v_add_u32 v253, 0x10000, v252']
    for i, x in enumerate(chk):
        fl.append(It(x, 1 + x.count('\n'), lo=4 + 2 * i, hi=6 + (5 * i) // 2, sep=True))
    for p in range(17):
        items = flush_pair(p)
        g0 = 32 * (p + 1) + 5
        for i, x in enumerate(items):
            fl.append(It(x, 1, lo=g0, hi=g0 + 3 + (i * 22) // len(items)))
        if p == 8:
            fl.append(It('ds_read_b128 v[4:7], v3', 1, lo=g0, hi=g0 + 27))
    lines = gemm(288, ord_, omf, obar, extra=lambda G: [fl], first_bar_items=wodma(5) + wodma(6) + wodma(7))
    lines = sum((x.split('\n') for x in lines), [])
    lines.append('v_or3_b32 v4, v4, v5, v6')
    lines.append('v_or_b32 v4, v4, v7')
    lines.append('s_nop 5')
    lines.append('v_readfirstlane_b32 s47, v4')
    lines += flush_pair(17)
    lines, vq = resolve_vm(lines, vq)
    lines, _ = insert_lgkm(lines)
    emit(lines)
    fuse = opt.get('fuse', True)
    k('s_andn2_b32 s47, s47, s45')
    if fuse:
        k('s_cbranch_scc1 L_attn_retry')
        emit_tail(k, ID)
    else:
        k('s_cbranch_scc0 L_attn_end')
    k('L_attn_retry:')
    k('s_mov_b32 s45, 1')
    k('s_mov_b32 s46, 0')
    k('s_mov_b32 s41, 0')
    k('L_attn_maxloop:')
    k('s_barrier')
    k('s_mov_b32 m0, s38')
    k('s_nop 0')
    for i in range(4):
        k(f'buffer_load_dwordx4 v{DK+i}, s[8:11], s41 offen offset:{1024*i} lds')
    k('s_waitcnt vmcnt(0)')
    k('s_barrier')
    for ht in range(2):
        lines = []
        for u in range(8):
            lines += kread(ht, u)
        for u in range(8):
            lines += [qk1(0, u, qb, True) for qb in range(4)]
        lines.append('s_nop 7')
        for qb in range(4):
            lines += localmax(0, qb)
        for qb in range(4):
            lines.append(f'v_mov_b32 v{MX+qb}, v{TMP+qb}')
        lines, _ = insert_lgkm(lines)
        emit(lines)
    k('s_add_u32 s41, s41, 16384')
    k(f's_cmp_lt_u32 s41, {hx(524288)}')
    k('s_cbranch_scc1 L_attn_maxloop')
    k('s_barrier')
    lines, _ = resolve_vm(kdma(0) + kdma(1) + kdma(2) + vdma(0) + vdma(1) + ['VWAIT K0', 's_barrier'])
    emit(lines)
    k('s_branch L_attn_entry')
    k('L_attn_end:')
    if DIAG['on']:
        k('v_accvgpr_read_b32 v0, a254')
    k.stamp_end(2)
    k('L_attn_exit:')
    k('s_endpgm')
    k.stats = stats
    return k
```

```python
import re
from lib import regs_of

TRANS = ('v_exp_f32', 'v_log_f32', 'v_rcp_f32', 'v_rsq_f32', 'v_sqrt_f32')


def split_ops(ln):
    parts = ln.split(None, 1)
    if len(parts) < 2:
        return []
    return [x.strip() for x in parts[1].split(',')]


def sregs(s):
    out = set()
    for m in re.finditer(r'\bs(?:\[(\d+):(\d+)\]|(\d+))', s):
        if m.group(1):
            out |= set(range(int(m.group(1)), int(m.group(2)) + 1))
        else:
            out.add(int(m.group(3)))
    if 'vcc' in s:
        out.add('vcc')
    return out


def check(lines, name=''):
    hist = []
    pos = 0
    bad = []
    for ln in lines:
        if ln.endswith(':') or ln.startswith('.'):
            continue
        op = ln.split()[0]
        ops = split_ops(ln)
        ismf = op.startswith('v_mfma')
        isv = op.startswith('v_') and not ismf
        ismem = op.startswith(('ds_', 'buffer_', 'global_'))
        rd, wr = set(), set()
        srd = set()
        if ismf:
            wr = regs_of(ops[0]); A = regs_of(ops[1]) | regs_of(ops[2]); C = regs_of(ops[3]); rd = A | C
        elif isv:
            if op.startswith('v_cmp') or op.startswith('v_readfirstlane') or op.startswith('v_readlane'):
                rd = set().union(*[regs_of(o) for o in ops[1:]])
            elif 'swap' in op:
                rd = wr = regs_of(ops[0]) | regs_of(ops[1])
            else:
                wr = regs_of(ops[0]); rd = set().union(*[regs_of(o) for o in ops[1:]])
                if op.startswith(('v_fmac', 'v_dot2c')) or 'dpp' in op:
                    rd |= wr
            srd = set().union(*[sregs(o) for o in ops[1:]]) if ops[1:] else set()
        elif ismem:
            allr = regs_of(ln)
            if (op.startswith('ds_read') or ('load' in op and not ln.split(';')[0].strip().endswith('lds'))):
                wr = regs_of(ops[0]); rd = set().union(*[regs_of(o) for o in ops[1:]])
            else:
                rd = allr
            srd = sregs(ln)

        def need(kind, regs, n, why):
            for p, kd, rg, tx in hist:
                if kd == kind and rg & regs and pos - p - 1 < n:
                    bad.append(f'{name}: {why}: "{tx}" -> "{ln}" dist {pos-p-1} < {n}')
        if ismf:
            passes = 8 if '32x32' in op else 4
            need('valu', rd, 2, 'VALU->MFMA')
            need('mfd', A, 8, 'MFMA D->A/B')
            for p, kd, rg, tx in hist:
                if kd == 'mfd' and rg & C and rg != C and pos - p - 1 < 6:
                    bad.append(f'{name}: MFMA D->C overlap "{tx}" -> "{ln}"')
        if isv or ismem:
            need('mfd', rd | wr, 8, 'MFMA D->use')
        if isv:
            need('mfc', wr, 3, 'MFMA C WAR')
            if op not in TRANS:
                need('trans', rd, 1, 'trans->use')
            if 'swap' in op or 'dpp' in op:
                need('valu', rd, 2, 'VALU->permlane/dpp')
            if op.startswith(('v_readfirstlane', 'v_readlane')):
                need('valu', rd, 1, 'VALU->readlane')
            need('vsg', srd, 2, 'VALU sgpr->VALU')
            need('st4', wr, 2, 'store data WAR')
            need('dot', rd | wr, 0 if op.startswith('v_dot2') else 3, 'dot->use')
        if ismem:
            need('vsg', srd, 5, 'VALU sgpr->VMEM')
            if ln.split(';')[0].strip().endswith('lds'):
                need('m0', {'m0'}, 1, 'm0->dma')
        if ismf:
            hist.append((pos, 'mfd', wr, ln)); hist.append((pos, 'mfc', C, ln))
        if isv:
            if wr: hist.append((pos, 'valu', wr, ln))
            if op in TRANS: hist.append((pos, 'trans', wr, ln))
            if op.startswith('v_dot2'): hist.append((pos, 'dot', wr, ln))
            if op.startswith(('v_cmp', 'v_readfirstlane', 'v_readlane')):
                hist.append((pos, 'vsg', sregs(ops[0]), ln))
        if op.startswith('buffer_store_dwordx4'):
            hist.append((pos, 'st4', regs_of(ops[0]), ln))
        if op.startswith('s_') and ops and ops[0] == 'm0':
            hist.append((pos, 'm0', {'m0'}, ln))
        pos += (int(ops[0]) + 1) if op == 's_nop' else 1
        hist = [h for h in hist if pos - h[0] < 24]
    return bad
```

```python
from lib import *
from small import *


def code_pf(k, tag, target, nbytes_label_end='L_code_end', r=60):
    k(f's_getpc_b64 s[{r}:{r+1}]')
    k(f'L_pc_{tag}:')
    k(f's_add_u32 s{r}, s{r}, {target}-L_pc_{tag}')
    k(f's_addc_u32 s{r+1}, s{r+1}, 0')
    k(f's_mov_b32 s{r+2}, {nbytes_label_end}-{target}')
    k(f's_mov_b32 s{r+3}, 0x20000')


def gen_mod2():
    k = K('mod_kernel', 184, 576, 2304, nvgpr=64)
    k('s_cmp_ge_u32 s2, 54')
    k('s_cbranch_scc1 L_mod_pf')
    k.stamp()
    k(f's_load_dwordx4 s[4:7], s[0:1], {ARG["c"]}')
    k(f's_load_dwordx2 s[20:21], s[0:1], {ARG["ws"]}')
    code_pf(k, 'mod', 'L_mod_body')
    k('v_lshlrev_b32 v5, 7, v0')
    k('s_mov_b32 s62, 4096')
    k('buffer_load_dword v6, v5, s[60:63], 0 offen')
    k('L_mod_body:')
    k('v_and_b32 v1, 7, v0')
    k('v_lshrrev_b32 v2, 3, v0')
    k(f'v_mul_u32_u24 v3, {8*6912}, v2')
    k('v_lshl_add_u32 v3, v1, 4, v3')
    k('s_lshl_b32 s3, s2, 7')
    k('v_lshlrev_b32 v4, 4, v2')
    k('s_waitcnt lgkmcnt(0)')
    k.stamp()
    k.srd(12, 's6', 's7', 576 * 6912)
    k.srd(8, 's4', 's5', 1152)
    k('buffer_load_dwordx4 v[8:11], v4, s[8:11], 0 offen')
    for i in range(8):
        k(f'buffer_load_dwordx4 v[{32+4*i}:{35+4*i}], v3, s[12:15], s3 offen')
        k('s_add_u32 s3, s3, 6912')
    k.srd(16, 's20', 's21', 13824)
    k('s_waitcnt vmcnt(8)')
    k.stamp()
    C, T = 12, 20
    for i in range(4):
        k(f'v_lshlrev_b32 v{C+2*i}, 16, v{8+i}')
        k(f'v_and_b32 v{C+2*i+1}, 0xffff0000, v{8+i}')
    for i in range(8):
        k(f'v_mul_f32 v{T+i}, {hx(f2u(-LOG2E))}, v{C+i}')
    for i in range(8):
        k(f'v_exp_f32 v{T+i}, v{T+i}')
    for i in range(8):
        k(f'v_add_f32 v{T+i}, 1.0, v{T+i}')
    for i in range(8):
        k(f'v_rcp_f32 v{T+i}, v{T+i}')
    for i in range(8):
        k(f'v_mul_f32 v{C+i}, v{C+i}, v{T+i}')
    rnd8(k, C, T)
    A = 20
    for i in range(8):
        k(f's_waitcnt vmcnt({7-i})')
        for j in range(4):
            w = 32 + 4 * i + j
            k(f'v_lshlrev_b32 v{28+j}, 16, v{w}')
            k(f'v_and_b32 v{w}, 0xffff0000, v{w}')
        for j in range(4):
            w = 32 + 4 * i + j
            op = 'v_mul_f32' if i == 0 else 'v_fmac_f32'
            k(f'{op} v{A+2*j}, v{28+j}, v{C+i}')
            k(f'{op} v{A+2*j+1}, v{w}, v{C+i}')
    k.stamp()
    k('s_nop 1')
    for j in range(8):
        k(f'v_add_f32_dpp v{A+j}, v{A+j}, v{A+j} row_ror:8 row_mask:0xf bank_mask:0xf')
    k('s_nop 0')
    for j in range(0, 8, 2):
        k(f'v_permlane16_swap_b32 v{A+j}, v{A+j+1}')
    for j in range(0, 8, 2):
        k(f'v_add_f32 v{A+j}, v{A+j}, v{A+j+1}')
    k('v_lshrrev_b32 v5, 6, v0')
    k('v_bfe_u32 v7, v0, 4, 2')
    k(f'v_permlane32_swap_b32 v{A}, v{A+2}')
    k(f'v_permlane32_swap_b32 v{A+4}, v{A+6}')
    k('v_lshlrev_b32 v5, 6, v5')
    k('v_lshl_add_u32 v5, v1, 3, v5')
    k('v_add_lshl_u32 v5, v5, v7, 2')
    k(f'v_add_f32 v{A}, v{A}, v{A+2}')
    k(f'v_add_f32 v{A+4}, v{A+4}, v{A+6}')
    k(f'ds_write_b32 v5, v{A}')
    k(f'ds_write_b32 v5, v{A+4} offset:16')
    k('s_waitcnt lgkmcnt(0)')
    k('s_barrier')
    k.stamp()
    k('v_cmp_gt_u32 vcc, 64, v0')
    k('s_and_saveexec_b64 s[30:31], vcc')
    k('s_cbranch_execz L_mod_end')
    k('v_lshlrev_b32 v5, 2, v0')
    for w in range(9):
        k(f'ds_read_b32 v{20+w}, v5 offset:{256*w}')
    k('s_sub_u32 s3, s2, 9')
    k('s_cmp_lt_u32 s3, 9')
    k('s_cselect_b32 s22, 1.0, 0')
    k('s_sub_u32 s3, s2, 36')
    k('s_cmp_lt_u32 s3, 9')
    k('s_cselect_b32 s22, 1.0, s22')
    k('s_lshl_b32 s3, s2, 8')
    k('s_waitcnt lgkmcnt(0)')
    for a, b in ((0, 1), (2, 3), (4, 5), (6, 7), (0, 2), (4, 6), (0, 8), (0, 4)):
        k(f'v_add_f32 v{20+a}, v{20+a}, v{20+b}')
    rnd_one(k, 20)
    k('v_add_f32 v20, s22, v20')
    rnd_one(k, 20)
    k('buffer_store_dword v20, v5, s[16:19], s3 offen sc1')
    k('L_mod_end:')
    k.stamp_end(0)
    k('s_endpgm')
    k('L_mod_pf:')
    k('s_sub_u32 s3, s2, 56')
    k('s_cmp_ge_u32 s3, 128')
    k('s_cbranch_scc1 L_mod_exit')
    k(f's_load_dwordx2 s[4:5], s[0:1], {ARG["x"]}')
    k('s_mul_i32 s3, s3, 18432')
    k('v_lshlrev_b32 v1, 7, v0')
    k('s_waitcnt lgkmcnt(0)')
    k.srd_off(8, 's4', 's5', 's3', 18432)
    k('buffer_load_dword v2, v1, s[8:11], 0 offen')
    k('L_mod_exit:')
    k('s_endpgm')
    return k


def red_g(k, regs, t, op='v_add_f32'):
    for sw in ('v_permlane16_swap_b32', 'v_permlane32_swap_b32'):
        for i, r in enumerate(regs):
            k(f'v_mov_b32 v{t+i}, v{r}')
        k('s_nop 1')
        for i, r in enumerate(regs):
            k(f'{sw} v{r}, v{t+i}')
        for i, r in enumerate(regs):
            k(f'{op} v{r}, v{r}, v{t+i}')


def chan_finish(k, ST, s_, m2, T):
    k(f'v_add_f32 v{s_}, v{ST}, v{ST+2}')
    k(f'v_add_f32 v{m2}, v{ST+1}, v{ST+3}')
    k(f'v_add_f32 v{T}, v{ST+4}, v{ST+6}')
    k(f'v_add_f32 v{T+1}, v{ST+5}, v{ST+7}')
    for i in range(4, 9):
        a = s_ if i % 2 == 0 else T
        k(f'v_add_f32 v{a}, v{a}, v{ST+2*i}')
        a = m2 if i % 2 == 0 else T + 1
        k(f'v_add_f32 v{a}, v{a}, v{ST+2*i+1}')
    k(f'v_add_f32 v{s_}, v{s_}, v{T}')
    k(f'v_add_f32 v{m2}, v{m2}, v{T+1}')
    k(f'v_mul_f32 v{s_}, {hx(f2u(1.0/9))}, v{s_}')
    for i in range(9):
        k(f'v_sub_f32 v{ST+2*i}, v{ST+2*i}, v{s_}')
    k(f'v_mul_f32 v{T}, v{ST}, v{ST}')
    k(f'v_mul_f32 v{T+1}, v{ST+2}, v{ST+2}')
    for i in range(2, 9):
        k(f'v_fmac_f32 v{T + i % 2}, v{ST+2*i}, v{ST+2*i}')
    k(f'v_add_f32 v{T}, v{T}, v{T+1}')
    k(f'v_fmac_f32 v{m2}, {hx(f2u(64.0))}, v{T}')
    k(f'v_mul_f32 v{m2}, {hx(f2u(1.0/576))}, v{m2}')
    rnd_pair(k, s_, m2, T)
    k(f'v_add_f32 v{m2}, {hx(f2u(1e-5))}, v{m2}')
    rnd_one(k, m2)
    k(f'v_sqrt_f32 v{m2}, v{m2}')


def gen_ln1b():
    k = K('ln1_kernel', 192, 576, 1536, nvgpr=96)
    k('s_cmp_ge_u32 s2, 128')
    k('s_cbranch_scc1 L_ln1_pf')
    k.stamp()
    k(f's_load_dwordx2 s[4:5], s[0:1], {ARG["x"]}')
    k(f's_load_dwordx2 s[6:7], s[0:1], {ARG["ws"]}')
    k('v_and_b32 v1, 15, v0')
    k('v_bfe_u32 v2, v0, 4, 2')
    k('v_lshrrev_b32 v3, 6, v0')
    k('v_lshlrev_b32 v4, 7, v3')
    k('v_lshl_add_u32 v4, v2, 4, v4')
    k('v_mul_u32_u24 v5, 1152, v1')
    k('v_add_u32 v5, v5, v4')
    k('v_lshlrev_b32 v4, 1, v4')
    k('s_mul_i32 s3, s2, 18432')
    k('s_waitcnt lgkmcnt(0)')
    k.stamp()
    k.srd(8, 's4', 's5', 2359296)
    k.srd(12, 's6', 's7', 13824)
    XL, SA, C1, X, D, T, ST = 12, 20, 36, 52, 68, 84, 68
    k(f'buffer_load_dwordx4 v[{XL}:{XL+3}], v5, s[8:11], s3 offen')
    k(f'buffer_load_dwordx4 v[{XL+4}:{XL+7}], v5, s[8:11], s3 offen offset:64')
    for h in range(2):
        for i in range(2):
            k(f'buffer_load_dwordx4 v[{C1+8*h+4*i}:{C1+8*h+4*i+3}], v4, s[12:15], 0 offen offset:{2304 + 128*h + 16*i}')
    for h in range(2):
        for i in range(2):
            k(f'buffer_load_dwordx4 v[{SA+8*h+4*i}:{SA+8*h+4*i+3}], v4, s[12:15], 0 offen offset:{128*h + 16*i}')
    k.srd_off(16, 's6', 's7', WS_H, 2359296)
    k('v_and_b32 v6, 63, v0')
    k('v_lshlrev_b32 v6, 4, v6')
    k('v_lshl_add_u32 v6, v3, 11, v6')
    k('v_mul_u32_u24 v9, 96, v1')
    k('v_lshl_add_u32 v8, v3, 3, v9')
    k('s_waitcnt vmcnt(8)')
    k.stamp()
    for i in range(8):
        k(f'v_lshlrev_b32 v{X+2*i}, 16, v{XL+i}')
        k(f'v_and_b32 v{X+2*i+1}, 0xffff0000, v{XL+i}')
    s_, m2 = 10, 11
    for i in range(4):
        k(f'v_add_f32 v{T+i}, v{X+i}, v{X+4+i}')
    for j in (8, 12):
        for i in range(4):
            k(f'v_add_f32 v{T+i}, v{T+i}, v{X+j+i}')
    k(f'v_add_f32 v{T}, v{T}, v{T+1}')
    k(f'v_add_f32 v{T+2}, v{T+2}, v{T+3}')
    k(f'v_add_f32 v{s_}, v{T}, v{T+2}')
    red_g(k, [s_], T)
    k(f'v_mul_f32 v{s_}, {hx(f2u(1.0/64))}, v{s_}')
    for i in range(16):
        k(f'v_sub_f32 v{D+i}, v{X+i}, v{s_}')
    for i in range(4):
        k(f'v_mul_f32 v{T+i}, v{D+i}, v{D+i}')
    for j in (4, 8, 12):
        for i in range(4):
            k(f'v_fmac_f32 v{T+i}, v{D+j+i}, v{D+j+i}')
    k(f'v_add_f32 v{T}, v{T}, v{T+1}')
    k(f'v_add_f32 v{T+2}, v{T+2}, v{T+3}')
    k(f'v_add_f32 v{m2}, v{T}, v{T+2}')
    red_g(k, [m2], T)
    k(f'ds_write_b64 v8, v[{s_}:{m2}]')
    k('s_waitcnt lgkmcnt(0)')
    k('s_barrier')
    k.stamp()
    T = 88
    for i in range(4):
        k(f'ds_read_b128 v[{ST+4*i}:{ST+4*i+3}], v9 offset:{16*i}')
    k(f'ds_read_b64 v[{ST+16}:{ST+17}], v9 offset:64')
    k('s_waitcnt lgkmcnt(0)')
    chan_finish(k, ST, s_, m2, T)
    for i in range(16):
        k(f'v_sub_f32 v{X+i}, v{X+i}, v{s_}')
    rnd_one(k, m2)
    k(f'v_rcp_f32 v{m2}, v{m2}')
    rnd8(k, X, T)
    rnd8(k, X + 8, T + 4)
    for i in range(16):
        k(f'v_mul_f32 v{X+i}, v{X+i}, v{m2}')
    rnd8(k, X, T)
    rnd8(k, X + 8, T + 4)
    k.stamp()
    k('s_waitcnt vmcnt(4)')
    for i in range(16):
        k(f'v_mul_f32 v{X+i}, v{X+i}, v{C1+i}')
    rnd8(k, X, T)
    rnd8(k, X + 8, T + 4)
    k('s_waitcnt vmcnt(0)')
    for h in range(2):
        for i in range(8):
            k(f'v_add_f32 v{X+8*h+i}, v{X+8*h+i}, v{SA+8*h+i}')
        for i in range(4):
            k(f'v_cvt_pk_bf16_f32 v{XL+4*h+i}, v{X+8*h+2*i}, v{X+8*h+2*i+1}')
        k(f'buffer_store_dwordx4 v[{XL+4*h}:{XL+4*h+3}], v6, s[16:19], s3 offen offset:{1024*h} sc1')
    k.stamp()
    k.stamp_end(1)
    k('s_endpgm')
    k('L_ln1_pf:')
    k('s_cmp_ge_u32 s2, 192')
    k('s_cbranch_scc1 L_ln1_exit')
    k(f's_load_dwordx2 s[4:5], s[0:1], {ARG["wq"]}')
    k('s_bfe_u32 s33, s2, 0x30003')
    k('v_cmp_gt_u32 vcc, 192, v0')
    k('s_and_saveexec_b64 s[30:31], vcc')
    k('s_cbranch_execz L_ln1_pf2')
    k('v_lshrrev_b32 v3, 3, v0')
    k('v_lshlrev_b32 v3, 13, v3')
    k('v_and_b32 v4, 7, v0')
    k('v_lshl_add_u32 v3, v4, 7, v3')
    k('s_and_b32 s3, s2, 7')
    k('s_lshl_b32 s3, s3, 10')
    k(f's_mul_i32 s34, s33, {24*8192}')
    k('s_add_u32 s3, s3, s34')
    k('s_waitcnt lgkmcnt(0)')
    k.srd(8, 's4', 's5', 576 * 8192)
    k('buffer_load_dword v5, v3, s[8:11], s3 offen')
    k('s_endpgm')
    k('L_ln1_pf2:')
    k('s_mov_b64 exec, -1')
    code_pf(k, 'ln1', 'attn_kernel')
    k('v_subrev_u32 v1, 192, v0')
    k('v_lshlrev_b32 v1, 7, v1')
    k('s_lshl_b32 s3, s33, 12')
    k('s_add_u32 s62, s3, 4096')
    k('buffer_load_dword v2, v1, s[60:63], s3 offen')
    k('L_ln1_exit:')
    k('s_endpgm')
    return k


def gen_k1(opt=None):
    k = K('prep_kernel', 256, 576, 1536, nvgpr=72)
    k('s_cmp_ge_u32 s2, 128')
    k('s_cbranch_scc1 L_k1_mod')
    k.stamp()
    k(f's_load_dwordx2 s[4:5], s[0:1], {ARG["x"]}')
    k(f's_load_dwordx2 s[6:7], s[0:1], {ARG["ws"]}')
    k('v_and_b32 v1, 15, v0')
    k('v_bfe_u32 v2, v0, 4, 2')
    k('v_lshrrev_b32 v3, 6, v0')
    k('v_lshlrev_b32 v4, 7, v3')
    k('v_lshl_add_u32 v4, v2, 4, v4')
    k('v_mul_u32_u24 v5, 1152, v1')
    k('v_add_u32 v5, v5, v4')
    k('s_mul_i32 s3, s2, 18432')
    k('s_waitcnt lgkmcnt(0)')
    k.srd(8, 's4', 's5', 2359296)
    XL, X, D, T, ST = 12, 20, 36, 56, 36
    k(f'buffer_load_dwordx4 v[{XL}:{XL+3}], v5, s[8:11], s3 offen')
    k(f'buffer_load_dwordx4 v[{XL+4}:{XL+7}], v5, s[8:11], s3 offen offset:64')
    k.srd_off(16, 's6', 's7', WS_H, 2359296)
    k('v_and_b32 v6, 63, v0')
    k('v_lshlrev_b32 v6, 4, v6')
    k('v_lshl_add_u32 v6, v3, 11, v6')
    k('v_mul_u32_u24 v9, 96, v1')
    k('v_lshl_add_u32 v8, v3, 3, v9')
    k('s_waitcnt vmcnt(0)')
    k.stamp()
    for i in range(8):
        k(f'v_lshlrev_b32 v{X+2*i}, 16, v{XL+i}')
        k(f'v_and_b32 v{X+2*i+1}, 0xffff0000, v{XL+i}')
    s_, m2 = 10, 11
    for i in range(4):
        k(f'v_add_f32 v{T+i}, v{X+i}, v{X+4+i}')
    for j in (8, 12):
        for i in range(4):
            k(f'v_add_f32 v{T+i}, v{T+i}, v{X+j+i}')
    k(f'v_add_f32 v{T}, v{T}, v{T+1}')
    k(f'v_add_f32 v{T+2}, v{T+2}, v{T+3}')
    k(f'v_add_f32 v{s_}, v{T}, v{T+2}')
    red_g(k, [s_], T)
    k(f'v_mul_f32 v{s_}, {hx(f2u(1.0/64))}, v{s_}')
    for i in range(16):
        k(f'v_sub_f32 v{D+i}, v{X+i}, v{s_}')
    for i in range(4):
        k(f'v_mul_f32 v{T+i}, v{D+i}, v{D+i}')
    for j in (4, 8, 12):
        for i in range(4):
            k(f'v_fmac_f32 v{T+i}, v{D+j+i}, v{D+j+i}')
    k(f'v_add_f32 v{T}, v{T}, v{T+1}')
    k(f'v_add_f32 v{T+2}, v{T+2}, v{T+3}')
    k(f'v_add_f32 v{m2}, v{T}, v{T+2}')
    red_g(k, [m2], T)
    k(f'ds_write_b64 v8, v[{s_}:{m2}]')
    k('s_waitcnt lgkmcnt(0)')
    k('s_barrier')
    for i in range(4):
        k(f'ds_read_b128 v[{ST+4*i}:{ST+4*i+3}], v9 offset:{16*i}')
    k(f'ds_read_b64 v[{ST+16}:{ST+17}], v9 offset:64')
    k('s_waitcnt lgkmcnt(0)')
    chan_finish(k, ST, s_, m2, T)
    for i in range(16):
        k(f'v_sub_f32 v{X+i}, v{X+i}, v{s_}')
    rnd_one(k, m2)
    k(f'v_rcp_f32 v{m2}, v{m2}')
    rnd8(k, X, T)
    rnd8(k, X + 8, T + 4)
    for h in range(2):
        for i in range(8):
            k(f'v_mul_f32 v{X+8*h+i}, v{X+8*h+i}, v{m2}')
        for i in range(4):
            k(f'v_cvt_pk_bf16_f32 v{XL+4*h+i}, v{X+8*h+2*i}, v{X+8*h+2*i+1}')
        k(f'buffer_store_dwordx4 v[{XL+4*h}:{XL+4*h+3}], v6, s[16:19], s3 offen offset:{1024*h} sc1')
    k.stamp_end(1)
    k('s_endpgm')
    k('L_k1_mod:')
    k.nstamp = 0
    k('s_cmp_ge_u32 s2, 240')
    k('s_cbranch_scc1 L_k1_pf')
    k.stamp()
    k(f's_load_dwordx4 s[4:7], s[0:1], {ARG["c"]}')
    k(f's_load_dwordx2 s[20:21], s[0:1], {ARG["ws"]}')
    k('s_and_b32 s32, s2, 0x70')
    k('s_and_b32 s3, s2, 7')
    k('s_lshl_b32 s3, s3, 1')
    k('s_add_u32 s32, s32, s3')
    k('s_bfe_u32 s3, s2, 0x10003')
    k('s_add_u32 s32, s32, s3')
    k('s_cmp_ge_u32 s32, 108')
    k('s_cbranch_scc1 L_k1_exit')
    k('v_and_b32 v1, 3, v0')
    k('v_lshrrev_b32 v2, 2, v0')
    k(f'v_mul_u32_u24 v3, {4*6912}, v2')
    k('v_lshl_add_u32 v3, v1, 4, v3')
    k('s_lshl_b32 s3, s32, 6')
    k('v_lshlrev_b32 v4, 3, v2')
    k('s_waitcnt lgkmcnt(0)')
    k.srd(12, 's6', 's7', 576 * 6912)
    k.srd(8, 's4', 's5', 1152)
    k('buffer_load_dwordx2 v[8:9], v4, s[8:11], 0 offen')
    for i in range(4):
        k(f'buffer_load_dwordx4 v[{32+4*i}:{35+4*i}], v3, s[12:15], s3 offen')
        k('s_add_u32 s3, s3, 6912')
    k.srd(16, 's20', 's21', 13824)
    k('v_lshrrev_b32 v5, 6, v0')
    k('v_bfe_u32 v7, v0, 4, 2')
    k('v_lshlrev_b32 v5, 5, v5')
    k('v_lshl_add_u32 v5, v1, 3, v5')
    k('v_add_lshl_u32 v5, v5, v7, 2')
    k('s_waitcnt vmcnt(4)')
    k.stamp()
    C, T = 12, 20
    for i in range(2):
        k(f'v_lshlrev_b32 v{C+2*i}, 16, v{8+i}')
        k(f'v_and_b32 v{C+2*i+1}, 0xffff0000, v{8+i}')
    for i in range(4):
        k(f'v_mul_f32 v{T+i}, {hx(f2u(-LOG2E))}, v{C+i}')
    for i in range(4):
        k(f'v_exp_f32 v{T+i}, v{T+i}')
    for i in range(4):
        k(f'v_add_f32 v{T+i}, 1.0, v{T+i}')
    for i in range(4):
        k(f'v_rcp_f32 v{T+i}, v{T+i}')
    for i in range(4):
        k(f'v_mul_f32 v{C+i}, v{C+i}, v{T+i}')
    rnd_pair(k, C, C + 1, T)
    rnd_pair(k, C + 2, C + 3, T + 1)
    A = 20
    for i in range(4):
        k(f's_waitcnt vmcnt({3-i})')
        for j in range(4):
            w = 32 + 4 * i + j
            k(f'v_lshlrev_b32 v{28+j}, 16, v{w}')
            k(f'v_and_b32 v{w}, 0xffff0000, v{w}')
        for j in range(4):
            w = 32 + 4 * i + j
            op = 'v_mul_f32' if i == 0 else 'v_fmac_f32'
            k(f'{op} v{A+2*j}, v{28+j}, v{C+i}')
            k(f'{op} v{A+2*j+1}, v{w}, v{C+i}')
    k.stamp()
    k('s_nop 1')
    for sh in (4, 8):
        for j in range(8):
            k(f'v_add_f32_dpp v{A+j}, v{A+j}, v{A+j} row_ror:{sh} row_mask:0xf bank_mask:0xf')
    k('s_nop 0')
    for j in range(0, 8, 2):
        k(f'v_permlane16_swap_b32 v{A+j}, v{A+j+1}')
    for j in range(0, 8, 2):
        k(f'v_add_f32 v{A+j}, v{A+j}, v{A+j+1}')
    k('s_nop 1')
    k(f'v_permlane32_swap_b32 v{A}, v{A+2}')
    k(f'v_permlane32_swap_b32 v{A+4}, v{A+6}')
    k(f'v_add_f32 v{A}, v{A}, v{A+2}')
    k(f'v_add_f32 v{A+4}, v{A+4}, v{A+6}')
    k(f'ds_write_b32 v5, v{A}')
    k(f'ds_write_b32 v5, v{A+4} offset:16')
    k('s_waitcnt lgkmcnt(0)')
    k('s_barrier')
    k('v_cmp_gt_u32 vcc, 32, v0')
    k('s_and_saveexec_b64 s[30:31], vcc')
    k('s_cbranch_execz L_k1_modend')
    k('v_lshlrev_b32 v5, 2, v0')
    for w in range(9):
        k(f'ds_read_b32 v{20+w}, v5 offset:{128*w}')
    k('s_sub_u32 s3, s32, 18')
    k('s_cmp_lt_u32 s3, 18')
    k('s_cselect_b32 s22, 1.0, 0')
    k('s_sub_u32 s3, s32, 72')
    k('s_cmp_lt_u32 s3, 18')
    k('s_cselect_b32 s22, 1.0, s22')
    k('s_lshl_b32 s3, s32, 7')
    k('s_waitcnt lgkmcnt(0)')
    for a, b in ((0, 1), (2, 3), (4, 5), (6, 7), (0, 2), (4, 6), (0, 8), (0, 4)):
        k(f'v_add_f32 v{20+a}, v{20+a}, v{20+b}')
    rnd_one(k, 20)
    k('v_add_f32 v20, s22, v20')
    rnd_one(k, 20)
    k('s_sub_u32 s23, s32, 18')
    k('s_cmp_lt_u32 s23, 18')
    k('s_cbranch_scc1 L_k1_half')
    k('buffer_store_dword v20, v5, s[16:19], s3 offen sc1')
    k('s_branch L_k1_modend')
    k('L_k1_half:')
    k('s_lshl_b32 s3, s23, 6')
    k('v_lshlrev_b32 v5, 1, v0')
    k('buffer_store_short_d16_hi v20, v5, s[16:19], s3 offen offset:2304 sc1')
    k('L_k1_modend:')
    k.stamp_end(0)
    k('s_endpgm')
    k('L_k1_pf:')
    k('s_cmp_ge_u32 s2, 256')
    k('s_cbranch_scc1 L_k1_exit')
    k(f's_load_dwordx2 s[4:5], s[0:1], {ARG["wq"]}')
    k(f's_load_dwordx2 s[12:13], s[0:1], {ARG["ws"]}')
    k('s_bfe_u32 s33, s2, 0x10003')
    k('v_cmp_gt_u32 vcc, 512, v0')
    k('s_and_saveexec_b64 s[30:31], vcc')
    k('s_cbranch_execz L_k1_pf2')
    k('v_lshrrev_b32 v3, 3, v0')
    k('v_lshlrev_b32 v3, 13, v3')
    k('v_and_b32 v4, 7, v0')
    k('v_lshl_add_u32 v3, v4, 7, v3')
    k('s_and_b32 s3, s2, 7')
    k('s_lshl_b32 s3, s3, 10')
    k('s_lshl_b32 s34, s33, 19')
    k('s_add_u32 s3, s3, s34')
    k('s_waitcnt lgkmcnt(0)')
    k.srd(8, 's4', 's5', 576 * 8192)
    k('buffer_load_dword v5, v3, s[8:11], s3 offen')
    k('s_endpgm')
    k('L_k1_pf2:')
    k('s_mov_b64 exec, -1')
    code_pf(k, 'k1', 'attn_kernel', 'L_attn_tail')
    k('v_and_b32 v1, 63, v0')
    k('v_lshlrev_b32 v8, 4, v1')
    k('v_lshlrev_b32 v1, 7, v1')
    k('s_lshl_b32 s3, s33, 13')
    for i in range(2):
        k(f'buffer_load_dword v{2+i}, v1, s[60:63], s3 offen')
        k('s_add_u32 s3, s3, 0x4000')
    for i in range(4):
        k(f'v_mov_b32 v{4+i}, 0')
    k('s_and_b32 s3, s2, 15')
    k('s_lshl_b32 s3, s3, 10')
    k(f's_add_u32 s3, s3, {WS_R}')
    k('s_mov_b32 s14, 32768')
    k('s_mov_b32 s15, 0x20000')
    k('s_waitcnt lgkmcnt(0)')
    k('buffer_store_dwordx4 v[4:7], v8, s[12:15], s3 offen sc1')
    k('L_k1_exit:')
    k('s_endpgm')
    return k
```

```python
import re
import struct


def f2u(x):
    return struct.unpack('<I', struct.pack('<f', x))[0]


def hx(x):
    return '0x%x' % (x & 0xffffffff)


DIAG = {'on': False}
DIAG_OFF = 128 << 20


class K:
    def __init__(self, name, grid, block, lds, nvgpr=256, nagpr=0, nsgpr=102):
        self.name = name
        self.grid = grid
        self.block = block
        self.lds = lds
        self.nvgpr = nvgpr
        self.nagpr = nagpr
        self.nsgpr = nsgpr
        self.lines = []
        self._lab = 0

    def __call__(self, s):
        for ln in s.split('\n'):
            ln = ln.strip()
            if ln:
                self.lines.append(ln)

    def stamp(self, grp=None):
        if not DIAG['on']:
            return
        if grp is not None and grp != DIAG.get('grp', 'h'):
            return
        n = self.nstamp = getattr(self, 'nstamp', 0) + 1
        assert n <= 11
        self(f's_memrealtime s[{78+2*n}:{79+2*n}]')
        self('s_waitcnt lgkmcnt(0)')

    def stamp_end(self, kid):
        if not DIAG['on']:
            return
        self('s_waitcnt vmcnt(0)')
        self.stamp()
        self('s_mov_b64 exec, -1')
        self(f's_load_dwordx2 s[60:61], s[0:1], 112')
        self('v_lshrrev_b32 v1, 6, v0')
        self('s_nop 1')
        self('v_readfirstlane_b32 s62, v1')
        self('s_waitcnt lgkmcnt(0)')
        self('s_and_b32 s62, s62, 3')
        self(f's_add_u32 s63, s2, {kid*256}')
        self('s_lshl_b32 s63, s63, 2')
        self('s_add_u32 s63, s63, s62')
        self('s_lshl_b32 s63, s63, 6')
        self(f's_add_u32 s63, s63, {hx(DIAG_OFF)}')
        self.srd_off(64, 's60', 's61', 's63', 64)
        self('v_mov_b32 v1, 0')
        for i in range(1, self.nstamp + 1):
            self(f'v_mov_b32 v2, s{78+2*i}')
            self(f'buffer_store_dword v2, v1, s[64:67], 0 offen offset:{4*(i-1)}')

    def label(self, base):
        self._lab += 1
        return f'L_{self.name}_{base}_{self._lab}'

    def srd(self, r, lo, hi, nbytes):
        self(f's_mov_b32 s{r}, {lo}')
        self(f's_mov_b32 s{r+1}, {hi}')
        self(f's_mov_b32 s{r+2}, {nbytes if isinstance(nbytes, str) else hx(nbytes)}')
        self(f's_mov_b32 s{r+3}, 0x20000')

    def srd_off(self, r, lo, hi, off, nbytes):
        o = off if isinstance(off, str) else hx(off)
        self(f's_add_u32 s{r}, {lo}, {o}')
        self(f's_addc_u32 s{r+1}, {hi}, 0')
        self(f's_mov_b32 s{r+2}, {nbytes if isinstance(nbytes, str) else hx(nbytes)}')
        self(f's_mov_b32 s{r+3}, 0x20000')

    def text(self):
        out = [f'.globl {self.name}', '.p2align 8', f'.type {self.name},@function', f'{self.name}:']
        for ln in self.lines:
            if ln.endswith(':') or ln.startswith('.'):
                out.append(ln)
            else:
                out.append('    ' + ln)
        return '\n'.join(out) + '\n'

    def desc(self):
        acc = (self.nvgpr + 3) // 4 * 4
        nfv = acc + self.nagpr if self.nagpr else self.nvgpr
        return f'''.p2align 6
.amdhsa_kernel {self.name}
  .amdhsa_next_free_vgpr {nfv}
  .amdhsa_next_free_sgpr {self.nsgpr}
  .amdhsa_accum_offset {acc}
  .amdhsa_group_segment_fixed_size 0
  .amdhsa_kernarg_size 120
  .amdhsa_user_sgpr_count 2
  .amdhsa_user_sgpr_kernarg_segment_ptr 1
  .amdhsa_system_sgpr_workgroup_id_x 1
.end_amdhsa_kernel
'''


HEADER = '''; Kernarg layout for this problem (120 bytes, ptrs only, base s[0:1]):
'''

ARG = dict(x=0, k=8, v=16, wq=24, wo=32, bx=40, wr=48, wg=56, wu=64, wd=72, c=80, wmod=88, out=96, dbg=104, ws=112)


def assemble(kernels, launches=None):
    launches = launches or kernels
    s = HEADER
    for k in launches:
        s += f'; @launch kernel={k.name} grid=({k.grid},1,1) block=({k.block},1,1) lds={k.lds}\n'
    s += '.amdgcn_target "amdgcn-amd-amdhsa--gfx950"\n.text\n'
    for k in kernels:
        s += k.text()
    s += 'L_code_end:\n'
    s += '.section .rodata,"a"\n'
    for k in kernels:
        s += k.desc()
    return s


def merge(cats):
    items = []
    for ci, c in enumerate(cats):
        tot = sum(x[1] for x in c)
        acc = 0
        for n, (ins, cost) in enumerate(c):
            items.append(((acc + cost / 2) / tot, ci, n, ins, cost))
            acc += cost
    items.sort(key=lambda x: (x[0], x[1], x[2]))
    return [(x[3], x[4]) for x in items]


def place(mf, fill):
    n = len(mf)
    tot = sum(c for _, c in fill)
    out = []
    j = 0
    acc = 0
    for i in range(n):
        out.append(mf[i])
        target = tot * (i + 1) / n
        while j < len(fill) and acc + fill[j][1] / 2 <= target:
            out.append(fill[j][0])
            acc += fill[j][1]
            j += 1
    while j < len(fill):
        out.append(fill[j][0])
        j += 1
    return out


_REG = re.compile(r'\b([va])(?:\[(\d+):(\d+)\]|(\d+))')


def regs_of(opnd):
    out = set()
    for m in _REG.finditer(opnd):
        t = m.group(1)
        if m.group(2):
            for i in range(int(m.group(2)), int(m.group(3)) + 1):
                out.add((t, i))
        else:
            out.add((t, int(m.group(4))))
    return out


def insert_lgkm(lines, pending=None):
    q = list(pending or [])
    out = []
    for ln in lines:
        op = ln.split()[0]
        if op == 's_waitcnt':
            m = re.search(r'lgkmcnt\((\d+)\)', ln)
            if m:
                n = int(m.group(1))
                while len(q) > n:
                    q.pop(0)
            out.append(ln)
            continue
        if ln.endswith(':') or op.startswith('s_') or op.startswith('.'):
            out.append(ln)
            continue
        used = regs_of(ln.split(None, 1)[1]) if ' ' in ln else set()
        need = -1
        for i, d in enumerate(q):
            if d & used:
                need = i
        if need >= 0:
            n = len(q) - need - 1
            assert n <= 15
            out.append(f's_waitcnt lgkmcnt({n})')
            q = q[need + 1:]
        if op == 'NEED':
            continue
        if op.startswith('ds_read'):
            dst = regs_of(ln.split(None, 1)[1].split(',')[0])
            q.append(dst)
            if len(q) > 15:
                raise RuntimeError('too many outstanding LDS ops')
        elif op.startswith('ds_'):
            q.append(set())
        out.append(ln)
    return out, q


class It:
    __slots__ = ('t', 'c', 'lo', 'hi', 'sep', 'after')

    def __init__(self, t, c=1, lo=0, hi=10**9, sep=False, after=None):
        self.t = t
        self.c = c
        self.lo = lo
        self.hi = hi
        self.sep = sep
        self.after = after


def sched(mf, streams, cap=2, stats=None):
    n = len(mf)
    pos = [0] * len(streams)
    last = [-1] * len(streams)
    where = {}
    out = []
    over = 0
    for g in range(n):
        out.append(mf[g])
        room = cap
        while True:
            cand = []
            for si, s in enumerate(streams):
                if pos[si] >= len(s):
                    continue
                it = s[pos[si]]
                if it.lo > g and g != n - 1:
                    continue
                if it.sep and last[si] == g:
                    if g != n - 1:
                        continue
                if it.after and any(where.get(id(a), 10**9) >= g for a in it.after):
                    if g != n - 1 or any(id(a) not in where for a in it.after):
                        continue
                forced = it.hi <= g or g == n - 1
                if it.c <= room or forced:
                    cand.append((it.hi, si))
            if not cand:
                break
            cand.sort()
            si = cand[0][1]
            it = streams[si][pos[si]]
            if g == n - 1 and ((it.sep and last[si] == g) or (it.after and any(where[id(a)] == g for a in it.after))):
                out.append('s_nop 0')
                room -= 1
            out.append(it.t)
            where[id(it)] = g
            pos[si] += 1
            last[si] = g
            room -= it.c
        if room < 0:
            over += -room
    if stats is not None:
        stats.append(over)
    return out


def resolve_vm(lines, queue=None):
    q = list(queue or [])
    out = []
    for ln in lines:
        op = ln.split()[0]
        if op == 'VWAIT':
            tags = set(ln.split()[1].split(','))
            idx = [i for i, t in enumerate(q) if t in tags]
            if idx:
                n = len(q) - idx[-1] - 1
                assert n <= 63
                out.append(f's_waitcnt vmcnt({n})')
                q = q[idx[-1] + 1:]
            continue
        if op == 's_waitcnt':
            m = re.search(r'vmcnt\((\d+)\)', ln)
            if m:
                n = int(m.group(1))
                q = q[max(0, len(q) - n):] if n else []
        if op.startswith('buffer_') or op.startswith('global_'):
            tag = None
            if ' ;@' in ln:
                ln, tag = ln.split(' ;@')
            q.append(tag)
            assert len(q) <= 63, 'too many outstanding vmem'
        out.append(ln)
    return out, q
```

```python
from lib import *
from small import *

MF = 'v_mfma_f32_16x16x32_bf16'


def gen_moe1b():
    LG, LU, LD, LX, LH = 0, 36864, 73728, 110592, 114688
    k = K('moe1_kernel', 144, 256, LH + 9216, nvgpr=208)
    k('s_cmp_ge_u32 s2, 144')
    k('s_cbranch_scc1 L_moe1_exit')
    k.stamp()
    k('v_lshrrev_b32 v1, 6, v0')
    k(f's_load_dwordx2 s[38:39], s[0:1], {ARG["ws"]}')
    k('v_readfirstlane_b32 s33, v1')
    k('v_and_b32 v2, 63, v0')
    k('v_lshlrev_b32 v5, 4, v2')
    k('s_lshl_b32 s3, s33, 3')
    k(f's_add_u32 s3, s3, {ARG["wg"] - 8}')
    k('s_load_dwordx2 s[4:5], s[0:1], s3')
    k('s_and_b32 s32, s2, 0xf0')
    k('s_and_b32 s3, s2, 7')
    k('s_lshl_b32 s3, s3, 1')
    k('s_add_u32 s32, s32, s3')
    k('s_bfe_u32 s3, s2, 0x10003')
    k('s_add_u32 s32, s32, s3')
    k('s_cmp_eq_u32 s33, 0')
    k('s_cbranch_scc1 L_moe1_select')
    k('s_cmp_eq_u32 s33, 3')
    k('s_cbranch_scc1 L_moe1_down')
    k('v_lshrrev_b32 v3, 2, v2')
    k('v_mul_u32_u24 v3, 9216, v3')
    k('v_lshrrev_b32 v6, 4, v2')
    k('v_and_b32 v6, 2, v6')
    k('v_and_b32 v4, 3, v2')
    k('v_xor_b32 v4, v4, v6')
    k('v_lshl_add_u32 v3, v4, 4, v3')
    k('s_lshl_b32 s41, s32, 6')
    k('s_mul_i32 s40, s33, 36864')
    k('s_sub_u32 m0, s40, 36864')
    k('s_mov_b32 s6, 5308416')
    k('s_mov_b32 s7, 0x20000')
    k('s_waitcnt lgkmcnt(0)')
    for i in range(36):
        k('buffer_load_dwordx4 v3, s[4:7], s41 offen lds')
        k('s_add_u32 m0, m0, 1024')
        k('s_add_u32 s41, s41, 147456')
    k('s_branch L_moe1_join')
    k('L_moe1_down:')
    k('v_lshrrev_b32 v4, 3, v2')
    k('v_mul_u32_u24 v4, 1152, v4')
    k('v_lshrrev_b32 v3, 4, v2')
    k('v_lshlrev_b32 v3, 1, v3')
    k('v_and_b32 v6, 7, v2')
    k('v_xor_b32 v3, v3, v6')
    k('v_lshl_add_u32 v4, v3, 4, v4')
    k('s_mul_i32 s42, s32, 36864')
    k(f's_mov_b32 m0, {LD}')
    k('s_mov_b32 s6, 5308416')
    k('s_mov_b32 s7, 0x20000')
    k('s_waitcnt lgkmcnt(0)')
    for i in range(9):
        for j in range(4):
            k('buffer_load_dwordx4 v4, s[4:7], s42 offen lds')
            k('s_add_u32 m0, m0, 1024')
            if j < 3:
                k('s_add_u32 s42, s42, 9216')
            else:
                k(f's_sub_u32 s42, s42, {3*9216 - 128}')
    k('s_branch L_moe1_join')
    k('L_moe1_select:')
    k('s_movk_i32 s3, 0x1000')
    k('s_waitcnt lgkmcnt(0)')
    k.srd_off(20, 's38', 's39', WS_R, 8192)
    R = 16
    for i in range(8):
        k(f'buffer_load_dwordx4 v[{R+4*i}:{R+4*i+3}], v5, s[20:23], {"0" if i < 4 else "s3"} offen offset:{1024*(i % 4)}')
    k.srd_off(24, 's38', 's39', WS_H2, 2359296)
    k.srd_off(44, 's38', 's39', WS_IDX, 32)
    k('s_cmp_lg_u32 s2, 0')
    k('s_cselect_b32 s46, 0, 32')
    k('v_mov_b32 v7, -1')
    k('v_and_b32 v10, 7, v2')
    k('v_mov_b32 v11, 0')
    k('v_lshrrev_b32 v13, 3, v2')
    k('s_waitcnt vmcnt(0)')
    TT = 48
    for rnd in range(8):
        for i in range(32):
            k(f'v_sub_u32 v{TT+i}, v7, v{R+i}')
        k(f'v_min_u32 v8, v{TT}, v{TT+1}')
        k(f'v_min_u32 v9, v{TT+2}, v{TT+3}')
        for i in range(4, 32, 4):
            k(f'v_min3_u32 v8, v8, v{TT+i}, v{TT+i+1}')
            k(f'v_min3_u32 v9, v9, v{TT+i+2}, v{TT+i+3}')
        k('v_min_u32 v8, v8, v9')
        red32(k, 8, 9, 'v_min_u32')
        k('v_mov_b32 v9, v8')
        k(f'v_cmp_eq_u32 vcc, {rnd}, v10')
        k('s_nop 0')
        k('v_permlane32_swap_b32 v8, v9')
        k('v_min_u32 v8, v8, v9')
        k('v_sub_u32 v8, v7, v8')
        k('v_subrev_u32 v7, 1, v8')
        k('v_cndmask_b32 v11, v11, v8, vcc')
    k('v_and_b32 v12, 0x7ff, v11')
    k('v_mul_u32_u24 v12, 1152, v12')
    k(f's_mov_b32 m0, {LH}')
    k('v_lshl_add_u32 v12, v13, 4, v12')
    for p in range(9):
        k(f'buffer_load_dwordx4 v12, s[24:27], 0 offen offset:{128*p} lds')
        k(f's_add_u32 m0, m0, {1024 - 128}')
        k('s_nop 0')
    k('v_lshlrev_b32 v8, 2, v2')
    k('buffer_store_dword v11, v8, s[44:47], 0 offen sc1')
    k('L_moe1_join:')
    k.stamp()
    k('s_mul_i32 s34, s32, 18432')
    k(f's_add_u32 s34, s34, {WS_Y}')
    k.srd_off(28, 's38', 's39', 's34', 18432)
    k('v_lshrrev_b32 v13, 4, v2')
    k('v_bfe_u32 v3, v2, 2, 2')
    k('v_lshl_add_u32 v3, v13, 3, v3')
    k('v_lshlrev_b32 v3, 6, v3')
    k('v_and_b32 v9, 3, v2')
    k('v_lshl_add_u32 v3, v9, 3, v3')
    k('v_xor_b32 v4, v13, v1')
    k('v_and_b32 v4, 1, v4')
    k('v_lshl_add_u32 v3, v4, 5, v3')
    k('s_lshr_b32 s3, s33, 1')
    k('s_mul_i32 s3, s3, 36864')
    k('v_add_u32 v3, s3, v3')
    k('v_lshrrev_b32 v14, 2, v2')
    k('v_lshlrev_b32 v14, 7, v14')
    k('v_lshl_add_u32 v14, v9, 3, v14')
    k('v_bfe_u32 v4, v2, 3, 2')
    k('v_xor_b32 v4, v4, v1')
    k('v_lshl_add_u32 v14, v4, 5, v14')
    k(f'v_add_u32 v14, {LD}, v14')
    k('v_and_b32 v4, 7, v2')
    k('v_lshlrev_b32 v15, 4, v4')
    k('v_lshl_add_u32 v15, v13, 7, v15')
    k(f'v_add_u32 v12, {LH}, v15')
    k('v_lshl_add_u32 v15, v1, 9, v15')
    k('v_and_b32 v4, 8, v2')
    k('v_lshl_add_u32 v15, v4, 16, v15')
    k('v_lshlrev_b32 v9, 4, v0')
    k(f'v_add_u32 v9, {LX}, v9')
    k(f'v_add_u32 v10, {LX}, v5')
    k('s_waitcnt vmcnt(0)')
    k.stamp()
    k('s_barrier')
    k.stamp()
    B = 16
    A = 88
    DN = 160
    lines = []
    rd = []
    for kk in range(18):
        rd.append([f'ds_read_b128 v[{B+4*kk}:{B+4*kk+3}], v12 offset:{512*kk}',
                   f'ds_read_b64_tr_b16 v[{A+4*kk}:{A+4*kk+1}], v3 offset:{2048*kk}',
                   f'ds_read_b64_tr_b16 v[{A+4*kk+2}:{A+4*kk+3}], v3 offset:{2048*kk+256}'])
    dn = []
    for i in range(9):
        dn.append(f'ds_read_b64_tr_b16 v[{DN+4*i}:{DN+4*i+1}], v14 offset:{4096*i}')
        dn.append(f'ds_read_b64_tr_b16 v[{DN+4*i+2}:{DN+4*i+3}], v14 offset:{4096*i+2048}')
    rd += [dn[0:3], dn[3:6], dn[6:9], dn[9:12]]
    for kk in range(4):
        lines += rd[kk]
    for j in range(18):
        lines += rd[j + 4]
        lines.append(f'{MF} v[4:7], v[{A+4*j}:{A+4*j+3}], v[{B+4*j}:{B+4*j+3}], {"0" if j == 0 else "v[4:7]"}')
    lines.append('s_waitcnt lgkmcnt(6)')
    lines += dn[12:]
    lines.append('s_nop 1')
    lines.append('ds_write_b128 v9, v[4:7]')
    lines.append('s_waitcnt lgkmcnt(0)')
    lines.append('s_barrier')
    lines, _ = insert_lgkm(lines)
    for ln in lines:
        k(ln)
    for t in range(4):
        k(f'ds_read_b128 v[{16+4*t}:{19+4*t}], v10 offset:{1024*t}')
    k('s_waitcnt lgkmcnt(2)')
    rnd8(k, 16, 32)
    for i in range(8):
        k(f'v_mul_f32 v{32+i}, {hx(f2u(-LOG2E))}, v{16+i}')
    for i in range(8):
        k(f'v_exp_f32 v{32+i}, v{32+i}')
    for i in range(8):
        k(f'v_add_f32 v{32+i}, 1.0, v{32+i}')
    for i in range(8):
        k(f'v_rcp_f32 v{32+i}, v{32+i}')
    k('s_waitcnt lgkmcnt(0)')
    rnd8(k, 24, 44)
    for i in range(8):
        k(f'v_mul_f32 v{16+i}, v{16+i}, v{32+i}')
    rnd8(k, 16, 32)
    for i in range(8):
        k(f'v_mul_f32 v{16+i}, v{16+i}, v{24+i}')
    for i in range(0, 8, 2):
        k(f'v_cvt_pk_bf16_f32 v{40+i//2}, v{16+i}, v{17+i}')
    k('s_nop 1')
    Y = 48
    for i in range(9):
        k(f'{MF} v[{Y+4*i}:{Y+4*i+3}], v[{DN+4*i}:{DN+4*i+3}], v[40:43], 0')
    for i in range(9):
        if i % 2 == 0:
            k(f's_movk_i32 s3, {2048*i}')
        if i == 8:
            k('s_nop 0')
        k(f'buffer_store_dwordx4 v[{Y+4*i}:{Y+4*i+3}], v15, s[28:31], s3 offen offset:{2048*(i % 2)} sc1')
    k.stamp_end(5)
    k('L_moe1_exit:')
    k('s_endpgm')
    return k


def gen_moe2b():
    k = K('moe2_kernel', 72, 256, 1024, nvgpr=64)
    k('s_cmp_ge_u32 s2, 72')
    k('s_cbranch_scc1 L_moe2_exit')
    k.stamp()
    k(f's_load_dwordx2 s[38:39], s[0:1], {ARG["ws"]}')
    k(f's_load_dwordx2 s[36:37], s[0:1], {ARG["out"]}')
    k('v_and_b32 v1, 15, v0')
    k('v_lshrrev_b32 v2, 4, v0')
    k(f'v_mul_u32_u24 v3, {9*18432}, v2')
    k('v_lshlrev_b32 v6, 4, v1')
    k('v_add_u32 v3, v3, v6')
    k('s_lshl_b32 s3, s2, 8')
    k('v_and_b32 v4, 7, v0')
    k('v_lshlrev_b32 v4, 2, v4')
    k('s_waitcnt lgkmcnt(0)')
    k.srd_off(12, 's38', 's39', WS_IDX, 32)
    k.srd_off(8, 's38', 's39', WS_Y, 144 * 18432)
    k('buffer_load_dword v5, v4, s[12:15], 0 offen')
    for i in range(9):
        k(f'buffer_load_dwordx4 v[{16+4*i}:{19+4*i}], v3, s[8:11], s3 offen')
        k('s_add_u32 s3, s3, 18432')
    k.srd(28, 's38', 's39', 13824)
    k('v_and_b32 v7, 8, v0')
    k('v_lshlrev_b32 v15, 1, v7')
    k('s_lshl_b32 s41, s2, 5')
    k(f's_add_u32 s41, s41, {5*2304}')
    k('buffer_load_dwordx4 v[52:55], v15, s[28:31], s41 offen')
    k.srd_off(20, 's38', 's39', WS_X1, 2 * 2359296)
    k.srd(24, 's36', 's37', 2359296)
    k('s_lshl_b32 s42, s2, 4')
    k(f's_add_u32 s43, s42, 2359296')
    k('s_waitcnt vmcnt(10)')
    k('v_and_b32 v9, 0x7ff, v5')
    k('v_mul_u32_u24 v9, 1152, v9')
    k('v_add_u32 v9, v9, v7')
    k('buffer_load_dwordx2 v[10:11], v9, s[20:23], s42 offen')
    k('buffer_load_dwordx2 v[12:13], v9, s[20:23], s43 offen')
    k('v_not_b32 v7, v5')
    k('v_ashrrev_i32 v7, 31, v7')
    k('v_or_b32 v7, 0x80000000, v7')
    k('v_xor_b32 v8, v5, v7')
    rnd_one(k, 8)
    k(f'v_mul_f32 v8, {hx(f2u(-LOG2E))}, v8')
    k('v_exp_f32 v8, v8')
    k('v_lshrrev_b32 v14, 6, v0')
    k('v_add_f32 v8, 1.0, v8')
    k('v_rcp_f32 v8, v8')
    k('v_lshl_add_u32 v14, v14, 8, v6')
    rnd_one(k, 8)
    k('s_waitcnt vmcnt(3)')
    for a, b in ((0, 1), (2, 3), (4, 5), (6, 7), (0, 2), (4, 6), (0, 8), (0, 4)):
        for j in range(4):
            k(f'v_add_f32 v{16+4*a+j}, v{16+4*a+j}, v{16+4*b+j}')
    for sw in ('v_permlane16_swap_b32', 'v_permlane32_swap_b32'):
        for j in range(4):
            k(f'v_mov_b32 v{20+j}, v{16+j}')
        k('s_nop 0')
        for j in range(4):
            k(f'{sw} v{16+j}, v{20+j}')
        for j in range(4):
            k(f'v_add_f32 v{16+j}, v{16+j}, v{20+j}')
    k('ds_write_b128 v14, v[16:19]')
    k('s_waitcnt lgkmcnt(0)')
    k('s_barrier')
    k('v_cmp_gt_u32 vcc, 16, v0')
    k('s_and_saveexec_b64 s[44:45], vcc')
    k('s_cbranch_execz L_moe2_end')
    for w in range(4):
        k(f'ds_read_b128 v[{16+4*w}:{19+4*w}], v6 offset:{256*w}')
    k('s_waitcnt vmcnt(0)')
    for j in range(2):
        k(f'v_lshlrev_b32 v{32+2*j}, 16, v{12+j}')
        k(f'v_and_b32 v{33+2*j}, 0xffff0000, v{12+j}')
        k(f'v_lshlrev_b32 v{36+2*j}, 16, v{10+j}')
        k(f'v_and_b32 v{37+2*j}, 0xffff0000, v{10+j}')
    k('s_waitcnt lgkmcnt(0)')
    for j in range(4):
        k(f'v_add_f32 v{16+j}, v{16+j}, v{20+j}')
        k(f'v_add_f32 v{24+j}, v{24+j}, v{28+j}')
    for j in range(4):
        k(f'v_add_f32 v{16+j}, v{16+j}, v{24+j}')

    def r4():
        k('v_cvt_pk_bf16_f32 v20, v16, v17')
        k('v_cvt_pk_bf16_f32 v21, v18, v19')
        k('v_lshlrev_b32 v16, 16, v20')
        k('v_and_b32 v17, 0xffff0000, v20')
        k('v_lshlrev_b32 v18, 16, v21')
        k('v_and_b32 v19, 0xffff0000, v21')
    r4()
    for j in range(4):
        k(f'v_mul_f32 v{16+j}, v{16+j}, v8')
    r4()
    for j in range(4):
        k(f'v_add_f32 v{16+j}, v{16+j}, v{32+j}')
    r4()
    for j in range(4):
        k(f'v_mul_f32 v{16+j}, v{16+j}, v{52+j}')
    r4()
    for j in range(4):
        k(f'v_add_f32 v{16+j}, v{16+j}, v{36+j}')
    k('v_cvt_pk_bf16_f32 v20, v16, v17')
    k('v_cvt_pk_bf16_f32 v21, v18, v19')
    k('buffer_store_dwordx2 v[20:21], v9, s[24:27], s42 offen')
    k('L_moe2_end:')
    k.stamp_end(6)
    k('L_moe2_exit:')
    k('s_endpgm')
    return k
```

```python
from lib import *

WS_MOD = 0
WS_IDX = 14336
WS_R = 16384
WS_H = 32768
WS_X1 = WS_H + 2359296
WS_H2 = WS_X1 + 2359296
WS_O = WS_H2 + 2359296
WS_PART = WS_O
WS_Y = WS_PART + 16 * 2359296
WS_END = WS_Y + 144 * 18432

LOG2E = 1.4426950408889634


def rnd_pair(k, a, b, t):
    k(f'v_cvt_pk_bf16_f32 v{t}, v{a}, v{b}')
    k(f'v_lshlrev_b32 v{a}, 16, v{t}')
    k(f'v_and_b32 v{b}, 0xffff0000, v{t}')


def rnd_one(k, a):
    k(f'v_cvt_pk_bf16_f32 v{a}, v{a}, v{a}')
    k(f'v_and_b32 v{a}, 0xffff0000, v{a}')


def red32(k, r, t, op='v_add_f32'):
    for sh in (1, 2, 4, 8):
        k('s_nop 1')
        k(f'{op}_dpp v{r}, v{r}, v{r} row_ror:{sh} row_mask:0xf bank_mask:0xf')
    k(f'v_mov_b32 v{t}, v{r}')
    k('s_nop 1')
    k(f'v_permlane16_swap_b32 v{r}, v{t}')
    k(f'{op} v{r}, v{r}, v{t}')


def gen_mod():
    k = K('mod_kernel', 108, 256, 512, nvgpr=72)
    k('s_cmp_ge_u32 s2, 108')
    k('s_cbranch_scc1 L_mod_exit')
    k.stamp()
    k(f's_load_dwordx4 s[4:7], s[0:1], {ARG["c"]}')
    k(f's_load_dwordx2 s[20:21], s[0:1], {ARG["ws"]}')
    k('v_and_b32 v1, 3, v0')
    k('v_lshrrev_b32 v2, 2, v0')
    k('v_mul_u32_u24 v3, 6912, v2')
    k('v_lshl_add_u32 v3, v1, 4, v3')
    k('s_lshl_b32 s3, s2, 6')
    k('v_add_u32 v3, s3, v3')
    k('v_lshlrev_b32 v4, 1, v2')
    for i in range(9):
        k(f's_mov_b32 s{40+i}, {hx(i * 64 * 6912)}')
    k('s_waitcnt lgkmcnt(0)')
    k.srd(8, 's4', 's5', 1152)
    k.srd(12, 's6', 's7', 576 * 6912)
    k.srd(16, 's20', 's21', 13824)
    for i in range(9):
        k(f'buffer_load_ushort v{8+i}, v4, s[8:11], 0 offen offset:{128*i}')
    for i in range(9):
        k(f'buffer_load_dwordx4 v[{32+4*i}:{35+4*i}], v3, s[12:15], s{40+i} offen')
    k('s_waitcnt vmcnt(9)')
    for i in range(9):
        k(f'v_lshlrev_b32 v{8+i}, 16, v{8+i}')
    for i in range(9):
        k(f'v_mul_f32 v{18+i}, {hx(f2u(-LOG2E))}, v{8+i}')
    for i in range(9):
        k(f'v_exp_f32 v{18+i}, v{18+i}')
    for i in range(9):
        k(f'v_add_f32 v{18+i}, 1.0, v{18+i}')
    for i in range(9):
        k(f'v_rcp_f32 v{18+i}, v{18+i}')
    for i in range(9):
        k(f'v_mul_f32 v{8+i}, v{8+i}, v{18+i}')
    for i in range(9):
        rnd_one(k, 8 + i)
    for i in range(9):
        k(f's_waitcnt vmcnt({8-i})')
        for j in range(4):
            w = 32 + 4 * i + j
            k(f'v_lshlrev_b32 v28, 16, v{w}')
            k(f'v_and_b32 v29, 0xffff0000, v{w}')
            if i == 0:
                k(f'v_mul_f32 v{20+2*j}, v28, v8')
                k(f'v_mul_f32 v{21+2*j}, v29, v8')
            else:
                k(f'v_fmac_f32 v{20+2*j}, v28, v{8+i}')
                k(f'v_fmac_f32 v{21+2*j}, v29, v{8+i}')
    k('s_nop 1')
    for sh in (4, 8):
        for j in range(8):
            k(f'v_add_f32_dpp v{20+j}, v{20+j}, v{20+j} row_ror:{sh} row_mask:0xf bank_mask:0xf')
    k('s_nop 1')
    for j in range(0, 8, 2):
        k(f'v_permlane16_swap_b32 v{20+j}, v{21+j}')
    for j in range(0, 8, 2):
        k(f'v_add_f32 v{20+j}, v{20+j}, v{21+j}')
    k('s_nop 1')
    k('v_permlane32_swap_b32 v20, v22')
    k('v_permlane32_swap_b32 v24, v26')
    k('v_add_f32 v20, v20, v22')
    k('v_add_f32 v24, v24, v26')
    k('v_lshrrev_b32 v5, 6, v0')
    k('v_bfe_u32 v6, v0, 4, 2')
    k('v_lshlrev_b32 v5, 5, v5')
    k('v_lshl_add_u32 v5, v1, 3, v5')
    k('v_add_lshl_u32 v5, v5, v6, 2')
    k('ds_write_b32 v5, v20')
    k('ds_write_b32 v5, v24 offset:16')
    k('s_waitcnt lgkmcnt(0)')
    k('s_barrier')
    k('v_cmp_gt_u32 vcc, 32, v0')
    k('s_and_saveexec_b64 s[30:31], vcc')
    k('s_cbranch_execz L_mod_end')
    k('v_lshlrev_b32 v5, 2, v0')
    for w in range(4):
        k(f'ds_read_b32 v{20+w}, v5 offset:{128*w}')
    k('s_waitcnt lgkmcnt(0)')
    k('v_add_f32 v20, v20, v21')
    k('v_add_f32 v22, v22, v23')
    k('v_add_f32 v20, v20, v22')
    rnd_one(k, 20)
    k('s_lshl_b32 s3, s2, 7')
    k('buffer_store_dword v20, v5, s[16:19], s3 offen')
    k('L_mod_end:')
    k.stamp_end(0)
    k('L_mod_exit:')
    k('s_endpgm')
    return k


def emit_ln(k, X, T):
    s, t, m, mb = T, T + 1, T + 2, T + 3
    D = T + 4
    k(f'v_add_f32 v{s}, v{X}, v{X+1}')
    k(f'v_add_f32 v{t}, v{X+2}, v{X+3}')
    for i in range(4, 18, 2):
        k(f'v_add_f32 v{s}, v{s}, v{X+i}')
        k(f'v_add_f32 v{t}, v{t}, v{X+i+1}')
    k(f'v_add_f32 v{s}, v{s}, v{t}')
    red32(k, s, t)
    k(f'v_mul_f32 v{m}, {hx(f2u(1.0/576))}, v{s}')
    for i in range(18):
        k(f'v_sub_f32 v{D+i}, v{X+i}, v{m}')
    k(f'v_mul_f32 v{s}, v{D}, v{D}')
    k(f'v_mul_f32 v{t}, v{D+1}, v{D+1}')
    for i in range(2, 18, 2):
        k(f'v_fmac_f32 v{s}, v{D+i}, v{D+i}')
        k(f'v_fmac_f32 v{t}, v{D+i+1}, v{D+i+1}')
    k(f'v_add_f32 v{s}, v{s}, v{t}')
    k(f'v_mov_b32 v{mb}, v{m}')
    rnd_one(k, mb)
    for i in range(18):
        k(f'v_sub_f32 v{X+i}, v{X+i}, v{mb}')
    red32(k, s, t)
    k(f'v_mul_f32 v{s}, {hx(f2u(1.0/576))}, v{s}')
    rnd_one(k, s)
    k(f'v_add_f32 v{s}, {hx(f2u(1e-5))}, v{s}')
    rnd_one(k, s)
    k(f'v_sqrt_f32 v{s}, v{s}')
    k('s_nop 0')
    rnd_one(k, s)
    k(f'v_rcp_f32 v{s}, v{s}')
    for i in range(0, 18, 2):
        rnd_pair(k, X + i, X + i + 1, t)
    for i in range(18):
        k(f'v_mul_f32 v{X+i}, v{X+i}, v{s}')
    for i in range(0, 18, 2):
        rnd_pair(k, X + i, X + i + 1, t)


def emit_modulate(k, X, C, S, t, PK):
    for i in range(18):
        k(f'v_add_f32 v{C+i}, 1.0, v{C+i}')
    for i in range(0, 18, 2):
        rnd_pair(k, C + i, C + i + 1, t)
    for i in range(18):
        k(f'v_mul_f32 v{X+i}, v{X+i}, v{C+i}')
    for i in range(0, 18, 2):
        rnd_pair(k, X + i, X + i + 1, t)
    for i in range(18):
        k(f'v_add_f32 v{X+i}, v{X+i}, v{S+i}')
    for i in range(0, 18, 2):
        k(f'v_cvt_pk_bf16_f32 v{PK+i//2}, v{X+i}, v{X+i+1}')


def unpack9(k, src, X):
    for i in range(9):
        k(f'v_lshlrev_b32 v{X+2*i}, 16, v{src+i}')
        k(f'v_and_b32 v{X+2*i+1}, 0xffff0000, v{src+i}')


def gen_ln1():
    k = K('ln1_kernel', 256, 256, 0, nvgpr=112)
    k('s_cmp_ge_u32 s2, 256')
    k('s_cbranch_scc1 L_ln1_exit')
    k.stamp()
    k(f's_load_dwordx2 s[4:5], s[0:1], {ARG["x"]}')
    k(f's_load_dwordx2 s[6:7], s[0:1], {ARG["ws"]}')
    k('v_lshrrev_b32 v1, 5, v0')
    k('s_lshl_b32 s3, s2, 3')
    k('v_add_u32 v1, s3, v1')
    k('v_and_b32 v2, 31, v0')
    k('v_mul_u32_u24 v3, 1152, v1')
    k('v_lshl_add_u32 v3, v2, 2, v3')
    k('v_lshlrev_b32 v4, 3, v2')
    k('v_lshrrev_b32 v5, 4, v1')
    k('v_mul_u32_u24 v5, 18432, v5')
    k('v_lshrrev_b32 v6, 2, v2')
    k('v_lshl_add_u32 v5, v6, 8, v5')
    k('v_and_b32 v6, 15, v1')
    k('v_lshl_add_u32 v5, v6, 4, v5')
    k('v_and_b32 v6, 3, v2')
    k('v_lshl_add_u32 v5, v6, 2, v5')
    k('s_mov_b32 s30, 2304')
    for i in range(9):
        k(f's_mov_b32 s{40+i}, {2048*i}')
    k('s_waitcnt lgkmcnt(0)')
    k.srd(8, 's4', 's5', 2359296)
    k.srd(12, 's6', 's7', 13824)
    k.srd_off(16, 's6', 's7', WS_H, 2359296)
    XL, X, C, S, T = 8, 18, 36, 54, 72
    for i in range(9):
        k(f'buffer_load_dword v{XL+i}, v3, s[8:11], 0 offen offset:{128*i}')
    for i in range(9):
        k(f'buffer_load_dwordx2 v[{S+2*i}:{S+2*i+1}], v4, s[12:15], 0 offen offset:{256*i}')
    for i in range(9):
        k(f'buffer_load_dwordx2 v[{C+2*i}:{C+2*i+1}], v4, s[12:15], s30 offen offset:{256*i}')
    k('s_waitcnt vmcnt(18)')
    unpack9(k, XL, X)
    emit_ln(k, X, T)
    k('s_waitcnt vmcnt(0)')
    emit_modulate(k, X, C, S, T, XL)
    for i in range(9):
        k(f'buffer_store_dword v{XL+i}, v5, s[16:19], s{40+i} offen')
    k('L_ln1_end:')
    k.stamp_end(1)
    k('L_ln1_exit:')
    k('s_endpgm')
    return k


def gen_ln2(nsplit=4):
    k = K('ln2_kernel', 256, 256, 0, nvgpr=224)
    k('s_cmp_ge_u32 s2, 256')
    k('s_cbranch_scc1 L_ln2_exit')
    k.stamp()
    k(f's_load_dwordx2 s[4:5], s[0:1], {ARG["x"]}')
    k(f's_load_dwordx2 s[6:7], s[0:1], {ARG["ws"]}')
    k(f's_load_dwordx2 s[36:37], s[0:1], {ARG["wr"]}')
    k(f's_load_dwordx2 s[38:39], s[0:1], {ARG["out"]}')
    k('v_lshrrev_b32 v1, 5, v0')
    k('s_lshl_b32 s3, s2, 3')
    k('v_add_u32 v1, s3, v1')
    k('v_and_b32 v2, 31, v0')
    k('v_mul_u32_u24 v3, 1152, v1')
    k('v_lshl_add_u32 v3, v2, 2, v3')
    k('v_lshlrev_b32 v4, 3, v2')
    k('v_lshlrev_b32 v5, 1, v3')
    k('v_lshlrev_b32 v6, 2, v2')
    k('v_lshlrev_b32 v7, 2, v1')
    for i in range(4):
        k(f's_mov_b32 s{40+i}, {2304*(i+2)}')
        k(f's_mov_b32 s{44+i}, {4718592*i}')
    k('s_waitcnt lgkmcnt(0)')
    k.srd(8, 's4', 's5', 2359296)
    k.srd(12, 's6', 's7', 13824)
    k.srd_off(16, 's6', 's7', WS_PART, 4718592 * nsplit)
    k.srd(20, 's36', 's37', 1152)
    k.srd(24, 's38', 's39', 2359296)
    k.srd_off(28, 's6', 's7', WS_X1, 2 * 2359296)
    k.srd_off(32, 's6', 's7', WS_R, 8192)
    k(f's_mov_b32 s48, {2359296}')
    XL, WR, P, GA, SB, CB, GB, X, T = 8, 18, 28, 100, 118, 136, 154, 172, 190
    for j in range(nsplit):
        for i in range(9):
            k(f'buffer_load_dwordx2 v[{P+18*j+2*i}:{P+18*j+2*i+1}], v5, s[16:19], s{44+j} offen offset:{256*i}')
    for i in range(9):
        k(f'buffer_load_dword v{XL+i}, v3, s[8:11], 0 offen offset:{128*i}')
    for i in range(9):
        k(f'buffer_load_dwordx2 v[{GA+2*i}:{GA+2*i+1}], v4, s[12:15], s40 offen offset:{256*i}')
    k('s_waitcnt vmcnt(18)')
    k.stamp()
    for j, b in enumerate((SB, CB, GB)):
        for i in range(9):
            k(f'buffer_load_dwordx2 v[{b+2*i}:{b+2*i+1}], v4, s[12:15], s{41+j} offen offset:{256*i}')
    for i in range(9):
        k(f'buffer_load_dword v{WR+i}, v6, s[20:23], 0 offen offset:{128*i}')
    if nsplit == 4:
        for i in range(18):
            k(f'v_add_f32 v{P+i}, v{P+i}, v{P+18+i}')
            k(f'v_add_f32 v{P+36+i}, v{P+36+i}, v{P+54+i}')
        for i in range(18):
            k(f'v_add_f32 v{P+i}, v{P+i}, v{P+36+i}')
    else:
        for j in range(1, nsplit):
            for i in range(18):
                k(f'v_add_f32 v{P+i}, v{P+i}, v{P+18*j+i}')
    for i in range(0, 18, 2):
        rnd_pair(k, P + i, P + i + 1, T)
    k('s_waitcnt vmcnt(36)')
    unpack9(k, XL, X)
    for i in range(18):
        k(f'v_mul_f32 v{P+i}, v{P+i}, v{GA+i}')
    for i in range(0, 18, 2):
        rnd_pair(k, P + i, P + i + 1, T)
    for i in range(18):
        k(f'v_add_f32 v{X+i}, v{X+i}, v{P+i}')
    for i in range(0, 18, 2):
        k(f'v_cvt_pk_bf16_f32 v{XL+i//2}, v{X+i}, v{X+i+1}')
    unpack9(k, XL, X)
    unpack9(k, XL, P)
    for i in range(9):
        k(f'buffer_store_dword v{XL+i}, v3, s[28:31], 0 offen offset:{128*i}')
    emit_ln(k, X, T)
    k('s_waitcnt vmcnt(9)')
    PK = P + 18
    emit_modulate(k, X, CB, SB, T, PK)
    for i in range(9):
        k(f'buffer_store_dword v{PK+i}, v3, s[28:31], s48 offen offset:{128*i}')
    unpack9(k, PK, X)
    W = P + 36
    unpack9(k, WR, W)
    k(f'v_mul_f32 v{T}, v{X}, v{W}')
    k(f'v_mul_f32 v{T+1}, v{X+1}, v{W+1}')
    for i in range(2, 18, 2):
        k(f'v_fmac_f32 v{T}, v{X+i}, v{W+i}')
        k(f'v_fmac_f32 v{T+1}, v{X+i+1}, v{W+i+1}')
    k(f'v_add_f32 v{T}, v{T}, v{T+1}')
    for i in range(18):
        k(f'v_mul_f32 v{X+i}, v{X+i}, v{GB+i}')
    for i in range(0, 18, 2):
        rnd_pair(k, X + i, X + i + 1, T + 2)
    for i in range(18):
        k(f'v_add_f32 v{X+i}, v{X+i}, v{P+i}')
    OUT = P + 54
    for i in range(0, 18, 2):
        k(f'v_cvt_pk_bf16_f32 v{OUT+i//2}, v{X+i}, v{X+i+1}')
    for i in range(9):
        k(f'buffer_store_dword v{OUT+i}, v3, s[24:27], 0 offen offset:{128*i}')
    k.stamp()
    red32(k, T, T + 1)
    k('v_cmp_eq_u32 vcc, 0, v2')
    k('s_and_saveexec_b64 s[50:51], vcc')
    k(f'buffer_store_dword v{T}, v7, s[32:35], 0 offen')
    k('L_ln2_end:')
    k.stamp_end(4)
    k('L_ln2_exit:')
    k('s_endpgm')
    return k


def gen_moe1():
    LG, LU, LD, LX = 0, 36864, 73728, 110592
    k = K('moe1_kernel', 144, 512, 114688, nvgpr=160)
    k('s_cmp_ge_u32 s2, 144')
    k('s_cbranch_scc1 L_moe1_exit')
    k.stamp()
    k(f's_load_dwordx4 s[4:7], s[0:1], {ARG["wg"]}')
    k(f's_load_dwordx2 s[36:37], s[0:1], {ARG["wd"]}')
    k(f's_load_dwordx2 s[38:39], s[0:1], {ARG["ws"]}')
    k('v_lshrrev_b32 v1, 6, v0')
    k('v_and_b32 v2, 63, v0')
    k('v_readfirstlane_b32 s33, v1')
    k('s_and_b32 s32, s2, 0xf0')
    k('s_and_b32 s3, s2, 7')
    k('s_lshl_b32 s3, s3, 1')
    k('s_add_u32 s32, s32, s3')
    k('s_bfe_u32 s3, s2, 0x10003')
    k('s_add_u32 s32, s32, s3')
    k('s_cmp_lt_u32 s33, 4')
    k('s_cbranch_scc1 L_moe1_compute')
    k('s_sub_u32 s33, s33, 4')
    k('v_lshrrev_b32 v3, 2, v2')
    k('v_mul_u32_u24 v3, 9216, v3')
    k('v_and_b32 v4, 3, v2')
    k('v_lshl_add_u32 v3, v4, 4, v3')
    k('v_lshlrev_b32 v4, 4, v2')
    k('s_lshl_b32 s40, s33, 10')
    k('s_mul_i32 s41, s33, 147456')
    k('s_lshl_b32 s3, s32, 6')
    k('s_add_u32 s41, s41, s3')
    k('s_mul_i32 s42, s32, 36864')
    k('s_add_u32 s42, s42, s40')
    k('s_waitcnt lgkmcnt(0)')
    k.srd(8, 's4', 's5', 576 * 9216)
    k.srd(12, 's6', 's7', 576 * 9216)
    k.srd(16, 's36', 's37', 4608 * 1152)
    for i in range(9):
        k(f's_add_u32 m0, s40, {LG + 4096*i}')
        k('s_nop 0')
        k('buffer_load_dwordx4 v3, s[8:11], s41 offen lds')
        k(f's_add_u32 m0, s40, {LU + 4096*i}')
        k('s_nop 0')
        k('buffer_load_dwordx4 v3, s[12:15], s41 offen lds')
        k(f's_add_u32 s41, s41, {4*147456}')
    for i in range(9):
        k(f's_add_u32 m0, s40, {LD + 4096*i}')
        k('s_nop 0')
        k('buffer_load_dwordx4 v4, s[16:19], s42 offen lds')
        k(f's_add_u32 s42, s42, 4096')
    k('s_waitcnt vmcnt(9)')
    k('s_barrier')
    k('s_waitcnt vmcnt(0)')
    k('s_barrier')
    k('s_branch L_moe1_exit')
    k('L_moe1_compute:')
    k('v_lshlrev_b32 v5, 4, v2')
    k('s_waitcnt lgkmcnt(0)')
    k.srd_off(20, 's38', 's39', WS_R, 8192)
    R = 16
    k('s_movk_i32 s3, 0x1000')
    for i in range(8):
        k(f'buffer_load_dwordx4 v[{R+4*i}:{R+4*i+3}], v5, s[20:23], {"0" if i < 4 else "s3"} offen offset:{1024*(i % 4)}')
    k.srd_off(24, 's38', 's39', WS_H2, 2359296)
    k('s_mul_i32 s34, s32, 18432')
    k(f's_add_u32 s34, s34, {WS_Y}')
    k.srd_off(28, 's38', 's39', 's34', 18432)
    k.srd_off(44, 's38', 's39', WS_IDX, 32)
    k('s_waitcnt vmcnt(0)')
    k.stamp()
    k('v_mov_b32 v7, -1')
    k('v_and_b32 v10, 7, v2')
    k('v_mov_b32 v11, 0')
    TT = 48
    for rnd in range(8):
        for i in range(32):
            k(f'v_sub_u32 v{TT+i}, v7, v{R+i}')
        n = 32
        k(f'v_min_u32 v8, v{TT}, v{TT+1}')
        k(f'v_min_u32 v9, v{TT+2}, v{TT+3}')
        for i in range(4, 32, 4):
            k(f'v_min3_u32 v8, v8, v{TT+i}, v{TT+i+1}')
            k(f'v_min3_u32 v9, v9, v{TT+i+2}, v{TT+i+3}')
        k('v_min_u32 v8, v8, v9')
        red32(k, 8, 9, 'v_min_u32')
        k('v_mov_b32 v9, v8')
        k('s_nop 1')
        k('v_permlane32_swap_b32 v8, v9')
        k('v_min_u32 v8, v8, v9')
        k('v_sub_u32 v8, v7, v8')
        k(f'v_cmp_eq_u32 vcc, {rnd}, v10')
        k('v_subrev_u32 v7, 1, v8')
        k('s_nop 0')
        k('v_cndmask_b32 v11, v11, v8, vcc')
    k('s_or_b32 s3, s2, s33')
    k('s_cmp_lg_u32 s3, 0')
    k('s_cbranch_scc1 L_moe1_noidx')
    k('v_lshlrev_b32 v8, 2, v2')
    k('buffer_store_dword v11, v8, s[44:47], 0 offen')
    k('L_moe1_noidx:')
    k.stamp()
    k('v_and_b32 v12, 0x7ff, v11')
    k('v_mul_u32_u24 v12, 1152, v12')
    k('v_lshrrev_b32 v13, 4, v2')
    k('v_lshl_add_u32 v12, v13, 4, v12')
    B = 16
    for kk in range(18):
        k(f'buffer_load_dwordx4 v[{B+4*kk}:{B+4*kk+3}], v12, s[24:27], 0 offen offset:{64*kk}')
    k('v_bfe_u32 v8, v2, 2, 2')
    k('v_lshl_add_u32 v8, v13, 3, v8')
    k('v_lshlrev_b32 v8, 6, v8')
    k('v_and_b32 v9, 3, v2')
    k('v_lshl_add_u32 v8, v9, 3, v8')
    k('s_lshr_b32 s3, s33, 1')
    k('s_mul_i32 s3, s3, 36864')
    k('s_and_b32 s34, s33, 1')
    k('s_lshl_b32 s34, s34, 5')
    k('s_add_u32 s3, s3, s34')
    k('v_add_u32 v8, s3, v8')
    k('v_lshrrev_b32 v14, 2, v2')
    k('v_mul_u32_u24 v14, 1152, v14')
    k('v_lshl_add_u32 v14, v9, 3, v14')
    k('s_mul_i32 s3, s33, 288')
    k(f's_add_u32 s3, s3, {LD}')
    k('v_add_u32 v14, s3, v14')
    k('s_waitcnt vmcnt(0)')
    k.stamp()
    k('s_barrier')
    A = 88
    lines = []
    for kk in range(18):
        lines.append(f'ds_read_b64_tr_b16 v[{A+4*kk}:{A+4*kk+1}], v8 offset:{2048*kk}')
        lines.append(f'ds_read_b64_tr_b16 v[{A+4*kk+2}:{A+4*kk+3}], v8 offset:{2048*kk+256}')
        j = kk - 5
        if j >= 0:
            lines.append(f'v_mfma_f32_16x16x32_bf16 v[4:7], v[{A+4*j}:{A+4*j+3}], v[{B+4*j}:{B+4*j+3}], {"0" if j == 0 else "v[4:7]"}')
    for j in range(13, 18):
        lines.append(f'v_mfma_f32_16x16x32_bf16 v[4:7], v[{A+4*j}:{A+4*j+3}], v[{B+4*j}:{B+4*j+3}], v[4:7]')
    lines, _ = insert_lgkm(lines)
    for ln in lines:
        k(ln)
    k('v_lshlrev_b32 v9, 4, v0')
    k(f'v_add_u32 v9, {LX}, v9')
    k('v_lshlrev_b32 v10, 4, v2')
    k(f'v_add_u32 v10, {LX}, v10')
    k('s_nop 4')
    k('ds_write_b128 v9, v[4:7]')
    k('s_waitcnt lgkmcnt(0)')
    k('s_barrier')
    for t in range(4):
        k(f'ds_read_b128 v[{16+4*t}:{19+4*t}], v10 offset:{1024*t}')
    for i in range(5):
        k(f'ds_read_b64_tr_b16 v[{A+4*i}:{A+4*i+1}], v14 offset:{32*i}')
        k(f'ds_read_b64_tr_b16 v[{A+4*i+2}:{A+4*i+3}], v14 offset:{32*i+16*1152}')
    k('s_waitcnt lgkmcnt(10)')
    for i in range(0, 16, 2):
        rnd_pair(k, 16 + i, 17 + i, 32)
    for i in range(8):
        k(f'v_mul_f32 v{32+i}, {hx(f2u(-LOG2E))}, v{16+i}')
    for i in range(8):
        k(f'v_exp_f32 v{32+i}, v{32+i}')
    for i in range(8):
        k(f'v_add_f32 v{32+i}, 1.0, v{32+i}')
    for i in range(8):
        k(f'v_rcp_f32 v{32+i}, v{32+i}')
    for i in range(8):
        k(f'v_mul_f32 v{16+i}, v{16+i}, v{32+i}')
    for i in range(0, 8, 2):
        rnd_pair(k, 16 + i, 17 + i, 32)
    for i in range(8):
        k(f'v_mul_f32 v{16+i}, v{16+i}, v{24+i}')
    for i in range(0, 8, 2):
        k(f'v_cvt_pk_bf16_f32 v{40+i//2}, v{16+i}, v{17+i}')
    k('s_waitcnt lgkmcnt(0)')
    for i in range(5, 9):
        k(f'ds_read_b64_tr_b16 v[{A+4*i}:{A+4*i+1}], v14 offset:{32*i}')
        k(f'ds_read_b64_tr_b16 v[{A+4*i+2}:{A+4*i+3}], v14 offset:{32*i+16*1152}')
    k('v_and_b32 v8, 15, v2')
    k('v_mul_u32_u24 v8, 2304, v8')
    k('v_lshl_add_u32 v8, v13, 4, v8')
    k('s_mul_i32 s3, s33, 576')
    Y = 48
    for i in range(5):
        k(f'v_mfma_f32_16x16x32_bf16 v[{Y+4*i}:{Y+4*i+3}], v[{A+4*i}:{A+4*i+3}], v[40:43], 0')
    k('s_waitcnt lgkmcnt(0)')
    for i in range(5, 9):
        k(f'v_mfma_f32_16x16x32_bf16 v[{Y+4*i}:{Y+4*i+3}], v[{A+4*i}:{A+4*i+3}], v[40:43], 0')
    k('s_nop 7')
    for i in range(9):
        k(f'buffer_store_dwordx4 v[{Y+4*i}:{Y+4*i+3}], v8, s[28:31], s3 offen offset:{64*i} sc1')
    k('L_moe1_end:')
    k.stamp_end(5)
    k('L_moe1_exit:')
    k('s_endpgm')
    return k


def gen_moe2():
    k = K('moe2_kernel', 72, 256, 1024, nvgpr=64)
    for w in range(72):
        assert (w * 57) >> 9 == w // 9
    k('s_cmp_ge_u32 s2, 72')
    k('s_cbranch_scc1 L_moe2_exit')
    k.stamp()
    k(f's_load_dwordx2 s[38:39], s[0:1], {ARG["ws"]}')
    k(f's_load_dwordx2 s[36:37], s[0:1], {ARG["out"]}')
    k('s_mul_i32 s33, s2, 57')
    k('s_lshr_b32 s33, s33, 9')
    k('s_mul_i32 s34, s33, 9')
    k('s_sub_u32 s34, s2, s34')
    k('v_and_b32 v1, 15, v0')
    k('v_lshrrev_b32 v2, 4, v0')
    k(f'v_mul_u32_u24 v3, {9*18432}, v2')
    k('v_lshl_add_u32 v3, v1, 4, v3')
    k('s_mul_i32 s3, s33, 2304')
    k('s_lshl_b32 s35, s34, 8')
    k('s_add_u32 s3, s3, s35')
    k('v_add_u32 v3, s3, v3')
    k('s_lshl_b32 s40, s33, 2')
    k('v_mov_b32 v4, s40')
    for i in range(9):
        k(f's_mov_b32 s{50+i}, {18432*i}')
    k('s_waitcnt lgkmcnt(0)')
    k.srd_off(8, 's38', 's39', WS_Y, 144 * 18432)
    k.srd_off(12, 's38', 's39', WS_IDX, 32)
    k.srd_off(16, 's38', 's39', WS_R, 8192)
    k.srd_off(20, 's38', 's39', WS_X1, 2 * 2359296)
    k.srd(24, 's36', 's37', 2359296)
    k.srd(28, 's38', 's39', 13824)
    k('buffer_load_dword v5, v4, s[12:15], 0 offen')
    for i in range(9):
        k(f'buffer_load_dwordx4 v[{16+4*i}:{19+4*i}], v3, s[8:11], s{50+i} offen')
    k('v_lshlrev_b32 v6, 4, v1')
    k(f's_add_u32 s41, s35, {5*2304}')
    k('buffer_load_dwordx4 v[52:55], v6, s[28:31], s41 offen')
    k('s_waitcnt vmcnt(10)')
    k('v_not_b32 v7, v5')
    k('v_ashrrev_i32 v7, 31, v7')
    k('v_or_b32 v7, 0x80000000, v7')
    k('v_xor_b32 v8, v5, v7')
    k('v_and_b32 v5, 0x7ff, v5')
    k('v_mul_u32_u24 v9, 1152, v5')
    k('v_lshl_add_u32 v9, v1, 3, v9')
    k('s_lshl_b32 s42, s34, 7')
    k('v_add_u32 v9, s42, v9')
    k(f's_mov_b32 s43, 2359296')
    k('buffer_load_dwordx2 v[10:11], v9, s[20:23], 0 offen')
    k('buffer_load_dwordx2 v[12:13], v9, s[20:23], s43 offen')
    k('s_waitcnt vmcnt(3)')
    for i in range(1, 9):
        for j in range(4):
            k(f'v_add_f32 v{16+j}, v{16+j}, v{16+4*i+j}')
    for j in range(4):
        k(f'v_mov_b32 v{20+j}, v{16+j}')
    k('s_nop 1')
    for j in range(4):
        k(f'v_permlane16_swap_b32 v{16+j}, v{20+j}')
    for j in range(4):
        k(f'v_add_f32 v{16+j}, v{16+j}, v{20+j}')
    for j in range(4):
        k(f'v_mov_b32 v{20+j}, v{16+j}')
    k('s_nop 1')
    for j in range(4):
        k(f'v_permlane32_swap_b32 v{16+j}, v{20+j}')
    for j in range(4):
        k(f'v_add_f32 v{16+j}, v{16+j}, v{20+j}')
    k('v_lshrrev_b32 v14, 6, v0')
    k('v_lshlrev_b32 v14, 8, v14')
    k('v_add_u32 v14, v14, v6')
    k('ds_write_b128 v14, v[16:19]')
    k('s_waitcnt lgkmcnt(0)')
    k('s_barrier')
    k('v_cmp_gt_u32 vcc, 16, v0')
    k('s_and_saveexec_b64 s[44:45], vcc')
    k('s_cbranch_execz L_moe2_end')
    for w in range(4):
        k(f'ds_read_b128 v[{16+4*w}:{19+4*w}], v6 offset:{256*w}')
    k('s_waitcnt vmcnt(0)')
    rnd_one(k, 8)
    k(f'v_mul_f32 v8, {hx(f2u(-LOG2E))}, v8')
    k('v_exp_f32 v8, v8')
    k('s_nop 0')
    k('v_add_f32 v8, 1.0, v8')
    k('v_rcp_f32 v8, v8')
    k('s_nop 0')
    rnd_one(k, 8)
    k('s_waitcnt lgkmcnt(0)')
    for j in range(4):
        k(f'v_add_f32 v{16+j}, v{16+j}, v{20+j}')
        k(f'v_add_f32 v{24+j}, v{24+j}, v{28+j}')
    for j in range(4):
        k(f'v_add_f32 v{16+j}, v{16+j}, v{24+j}')
    rnd_pair(k, 16, 17, 20)
    rnd_pair(k, 18, 19, 20)
    for j in range(4):
        k(f'v_mul_f32 v{16+j}, v{16+j}, v8')
    rnd_pair(k, 16, 17, 20)
    rnd_pair(k, 18, 19, 20)
    for j in range(2):
        k(f'v_lshlrev_b32 v{24+2*j}, 16, v{12+j}')
        k(f'v_and_b32 v{25+2*j}, 0xffff0000, v{12+j}')
        k(f'v_lshlrev_b32 v{28+2*j}, 16, v{10+j}')
        k(f'v_and_b32 v{29+2*j}, 0xffff0000, v{10+j}')
    for j in range(4):
        k(f'v_add_f32 v{16+j}, v{16+j}, v{24+j}')
    rnd_pair(k, 16, 17, 20)
    rnd_pair(k, 18, 19, 20)
    for j in range(4):
        k(f'v_mul_f32 v{16+j}, v{16+j}, v{52+j}')
    rnd_pair(k, 16, 17, 20)
    rnd_pair(k, 18, 19, 20)
    for j in range(4):
        k(f'v_add_f32 v{16+j}, v{16+j}, v{28+j}')
    k('v_cvt_pk_bf16_f32 v20, v16, v17')
    k('v_cvt_pk_bf16_f32 v21, v18, v19')
    k('buffer_store_dwordx2 v[20:21], v9, s[24:27], 0 offen')
    k('L_moe2_end:')
    k.stamp_end(6)
    k('L_moe2_exit:')
    k('s_endpgm')
    return k


def red_q8(k, regs, t, op='v_add_f32'):
    k('s_nop 1')
    for r in regs:
        k(f'{op}_dpp v{r}, v{r}, v{r} row_ror:8 row_mask:0xf bank_mask:0xf')
    for sw in ('v_permlane16_swap_b32', 'v_permlane32_swap_b32'):
        for i, r in enumerate(regs):
            k(f'v_mov_b32 v{t+i}, v{r}')
        k('s_nop 1')
        for i, r in enumerate(regs):
            k(f'{sw} v{r}, v{t+i}')
        for i, r in enumerate(regs):
            k(f'{op} v{r}, v{r}, v{t+i}')


def rnd8(k, X, t):
    for i in range(4):
        k(f'v_cvt_pk_bf16_f32 v{t+i}, v{X+2*i}, v{X+2*i+1}')
    for i in range(4):
        k(f'v_lshlrev_b32 v{X+2*i}, 16, v{t+i}')
        k(f'v_and_b32 v{X+2*i+1}, 0xffff0000, v{t+i}')


def gen_ln2b(opt=None):
    k = K('ln2_kernel', 256, 576, 1536, nvgpr=136)
    k('s_cmp_ge_u32 s2, 256')
    k('s_cbranch_scc1 L_ln2_exit')
    k.stamp()
    k(f's_load_dwordx2 s[6:7], s[0:1], {ARG["ws"]}')
    k(f's_load_dwordx2 s[4:5], s[0:1], {ARG["x"]}')
    k(f's_load_dwordx2 s[36:37], s[0:1], {ARG["wr"]}')
    k(f's_load_dwordx2 s[38:39], s[0:1], {ARG["out"]}')
    k('v_and_b32 v1, 7, v0')
    k('v_lshrrev_b32 v2, 3, v0')
    k('v_lshlrev_b32 v3, 8, v2')
    k('v_lshl_add_u32 v3, v1, 4, v3')
    k('s_lshr_b32 s3, s2, 1')
    k('s_mul_i32 s3, s3, 18432')
    k('s_and_b32 s33, s2, 1')
    k('s_lshl_b32 s33, s33, 7')
    k('s_add_u32 s3, s3, s33')
    k('s_waitcnt lgkmcnt(0)')
    k.srd_off(16, 's6', 's7', WS_PART, 16 * 2359296)
    P = 16
    for j in range(16):
        k(f'buffer_load_dwordx4 v[{P+4*j}:{P+4*j+3}], v3, s[16:19], s3 offen {(opt or {}).get("ln2flag", "sc0 sc1")}')
        k(f's_add_u32 s3, s3, 2359296')
    k('v_lshrrev_b32 v4, 2, v2')
    k('v_lshlrev_b32 v4, 6, v4')
    k('v_and_b32 v5, 1, v2')
    k('v_lshl_add_u32 v4, v5, 5, v4')
    k('v_and_b32 v5, 2, v2')
    k('v_lshl_add_u32 v4, v5, 3, v4')
    k('v_lshlrev_b32 v5, 1, v4')
    k('s_lshl_b32 s3, s2, 3')
    k('v_add_u32 v6, s3, v1')
    k('v_mul_u32_u24 v7, 1152, v6')
    k('v_add_u32 v7, v7, v4')
    k.srd(8, 's4', 's5', 2359296)
    k.srd(12, 's6', 's7', 13824)
    k.srd(20, 's36', 's37', 1152)
    XL, WR, GA, SB, CB, GB, X, T = 80, 84, 88, 96, 104, 112, 120, 128
    k(f'buffer_load_dwordx4 v[{XL}:{XL+3}], v7, s[8:11], 0 offen')
    for j, b in enumerate((GA, SB, CB, GB)):
        k(f's_mov_b32 s40, {2304*(j+2)}')
        k(f'buffer_load_dwordx4 v[{b}:{b+3}], v5, s[12:15], s40 offen')
        k(f'buffer_load_dwordx4 v[{b+4}:{b+7}], v5, s[12:15], s40 offen offset:16')
    k(f'buffer_load_dwordx4 v[{WR}:{WR+3}], v4, s[20:23], 0 offen')
    k.srd(24, 's38', 's39', 2359296)
    k.srd_off(28, 's6', 's7', WS_X1, 2 * 2359296)
    k.srd_off(32, 's6', 's7', WS_R, 8192)
    k('s_mov_b32 s48, 2359296')
    k('v_lshrrev_b32 v8, 6, v0')
    k('v_mul_u32_u24 v9, 96, v1')
    k('v_lshl_add_u32 v8, v8, 3, v9')
    A = 8 + 2
    A = X
    for j in range(16):
        k(f's_waitcnt vmcnt({10 + 15 - j})')
        for i in range(4):
            w = P + 4 * j + i
            if j == 0:
                k(f'v_lshlrev_b32 v{A+2*i}, 16, v{w}')
                k(f'v_and_b32 v{A+2*i+1}, 0xffff0000, v{w}')
            else:
                k(f'v_lshlrev_b32 v{T+i}, 16, v{w}')
                k(f'v_and_b32 v{w}, 0xffff0000, v{w}')
        if j:
            for i in range(4):
                k(f'v_add_f32 v{A+2*i}, v{A+2*i}, v{T+i}')
                k(f'v_add_f32 v{A+2*i+1}, v{A+2*i+1}, v{P+4*j+i}')
    k.stamp()
    for i in range(4):
        k(f'v_cvt_pk_bf16_f32 v{T+i}, v{A+2*i}, v{A+2*i+1}')
    k(f'v_mov_b32 v{T+4}, v{T+2}')
    k(f'v_mov_b32 v{T+5}, v{T+3}')
    k(f'v_mov_b32_dpp v{T+2}, v{T} row_ror:8 row_mask:0xf bank_mask:0x3')
    k(f'v_mov_b32_dpp v{T+3}, v{T+1} row_ror:8 row_mask:0xf bank_mask:0x3')
    k(f'v_mov_b32_dpp v{T}, v{T+4} row_ror:8 row_mask:0xf bank_mask:0xc')
    k(f'v_mov_b32_dpp v{T+1}, v{T+5} row_ror:8 row_mask:0xf bank_mask:0xc')
    for i in (2, 3, 0, 1):
        k(f'v_lshlrev_b32 v{A+2*i}, 16, v{T+i}')
        k(f'v_and_b32 v{A+2*i+1}, 0xffff0000, v{T+i}')
    k('s_waitcnt vmcnt(0)')
    for i in range(8):
        k(f'v_mul_f32 v{A+i}, v{A+i}, v{GA+i}')
    X0, X1, D, PKX = 16, 24, 32, 40
    for i in range(4):
        k(f'v_lshlrev_b32 v{X0+2*i}, 16, v{XL+i}')
        k(f'v_and_b32 v{X0+2*i+1}, 0xffff0000, v{XL+i}')
    rnd8(k, A, T)
    for i in range(8):
        k(f'v_add_f32 v{X1+i}, v{X0+i}, v{A+i}')
    rnd8(k, X1, PKX)
    k(f'buffer_store_dwordx4 v[{PKX}:{PKX+3}], v7, s[28:31], 0 offen sc1')
    s_, m2 = 10, 11
    k(f'v_add_f32 v{T}, v{X1}, v{X1+1}')
    k(f'v_add_f32 v{T+1}, v{X1+2}, v{X1+3}')
    k(f'v_add_f32 v{T+2}, v{X1+4}, v{X1+5}')
    k(f'v_add_f32 v{T+3}, v{X1+6}, v{X1+7}')
    k(f'v_add_f32 v{T}, v{T}, v{T+1}')
    k(f'v_add_f32 v{T+2}, v{T+2}, v{T+3}')
    k(f'v_add_f32 v{s_}, v{T}, v{T+2}')
    red_q8(k, [s_], T)
    k(f'v_mul_f32 v{s_}, {hx(f2u(1.0/64))}, v{s_}')
    for i in range(8):
        k(f'v_sub_f32 v{D+i}, v{X1+i}, v{s_}')
    k(f'v_mul_f32 v{m2}, v{D}, v{D}')
    k(f'v_mul_f32 v{T}, v{D+1}, v{D+1}')
    for i in range(2, 8, 2):
        k(f'v_fmac_f32 v{m2}, v{D+i}, v{D+i}')
        k(f'v_fmac_f32 v{T}, v{D+i+1}, v{D+i+1}')
    k(f'v_add_f32 v{m2}, v{m2}, v{T}')
    red_q8(k, [m2], T)
    k(f'ds_write_b64 v8, v[{s_}:{m2}]')
    W = 48
    for i in range(4):
        k(f'v_lshlrev_b32 v{W+2*i}, 16, v{WR+i}')
        k(f'v_and_b32 v{W+2*i+1}, 0xffff0000, v{WR+i}')
    k('s_waitcnt lgkmcnt(0)')
    k('s_barrier')
    ST = 56
    for i in range(4):
        k(f'ds_read_b128 v[{ST+4*i}:{ST+4*i+3}], v9 offset:{16*i}')
    k(f'ds_read_b64 v[{ST+16}:{ST+17}], v9 offset:64')
    k('s_waitcnt lgkmcnt(0)')
    k(f'v_add_f32 v{s_}, v{ST}, v{ST+2}')
    k(f'v_add_f32 v{m2}, v{ST+1}, v{ST+3}')
    for i in range(2, 9):
        k(f'v_add_f32 v{s_}, v{s_}, v{ST+2*i}')
        k(f'v_add_f32 v{m2}, v{m2}, v{ST+2*i+1}')
    k(f'v_mul_f32 v{s_}, {hx(f2u(1.0/9))}, v{s_}')
    for i in range(9):
        k(f'v_sub_f32 v{ST+2*i}, v{ST+2*i}, v{s_}')
    k(f'v_mul_f32 v{T}, v{ST}, v{ST}')
    k(f'v_mul_f32 v{T+1}, v{ST+2}, v{ST+2}')
    for i in range(2, 9):
        k(f'v_fmac_f32 v{T + i % 2}, v{ST+2*i}, v{ST+2*i}')
    k(f'v_add_f32 v{T}, v{T}, v{T+1}')
    k(f'v_fmac_f32 v{m2}, {hx(f2u(64.0))}, v{T}')
    k(f'v_mul_f32 v{m2}, {hx(f2u(1.0/576))}, v{m2}')
    rnd_pair(k, s_, m2, T)
    k(f'v_add_f32 v{m2}, {hx(f2u(1e-5))}, v{m2}')
    for i in range(8):
        k(f'v_sub_f32 v{D+i}, v{X1+i}, v{s_}')
    rnd_one(k, m2)
    k(f'v_sqrt_f32 v{m2}, v{m2}')
    rnd8(k, D, T)
    rnd_one(k, m2)
    k(f'v_rcp_f32 v{m2}, v{m2}')
    k('s_nop 0')
    for i in range(8):
        k(f'v_mul_f32 v{D+i}, v{D+i}, v{m2}')
    rnd8(k, D, T)
    for i in range(8):
        k(f'v_mul_f32 v{D+i}, v{D+i}, v{CB+i}')
    rnd8(k, D, T)
    for i in range(8):
        k(f'v_add_f32 v{D+i}, v{D+i}, v{SB+i}')
    PKH = 44
    rnd8(k, D, PKH)
    k(f'buffer_store_dwordx4 v[{PKH}:{PKH+3}], v7, s[28:31], s48 offen sc1')
    k(f'v_mul_f32 v{s_}, v{D}, v{W}')
    k(f'v_mul_f32 v{m2}, v{D+1}, v{W+1}')
    for i in range(2, 8, 2):
        k(f'v_fmac_f32 v{s_}, v{D+i}, v{W+i}')
        k(f'v_fmac_f32 v{m2}, v{D+i+1}, v{W+i+1}')
    k(f'v_add_f32 v{s_}, v{s_}, v{m2}')
    red_q8(k, [s_], T)
    k(f'ds_write_b32 v8, v{s_} offset:768')
    for i in range(8):
        k(f'v_mul_f32 v{D+i}, v{D+i}, v{GB+i}')
    rnd8(k, D, T)
    for i in range(8):
        k(f'v_add_f32 v{D+i}, v{D+i}, v{X1+i}')
    for i in range(4):
        k(f'v_cvt_pk_bf16_f32 v{T+i}, v{D+2*i}, v{D+2*i+1}')
    k(f'buffer_store_dwordx4 v[{T}:{T+3}], v7, s[24:27], 0 offen sc1')
    k('s_waitcnt lgkmcnt(0)')
    k('s_barrier')
    k('v_cmp_gt_u32 vcc, 8, v0')
    k('s_and_saveexec_b64 s[50:51], vcc')
    k('s_cbranch_execz L_ln2_end')
    for i in range(4):
        k(f'ds_read_b128 v[{ST+4*i}:{ST+4*i+3}], v9 offset:{768+16*i}')
    k(f'ds_read_b64 v[{ST+16}:{ST+17}], v9 offset:{768+64}')
    k('v_lshlrev_b32 v5, 2, v6')
    k('s_mov_b32 s3, 0xfffff800')
    k('s_waitcnt lgkmcnt(0)')
    k(f'v_add_f32 v{s_}, v{ST}, v{ST+2}')
    k(f'v_add_f32 v{m2}, v{ST+4}, v{ST+6}')
    for i in range(4, 9):
        k(f'v_add_f32 v{s_ + i % 2}, v{s_ + i % 2}, v{ST+2*i}')
    k(f'v_add_f32 v{s_}, v{s_}, v{m2}')
    k(f'v_ashrrev_i32 v{m2}, 31, v{s_}')
    k(f'v_or_b32 v{m2}, 0x80000000, v{m2}')
    k(f'v_xor_b32 v{s_}, v{s_}, v{m2}')
    k(f'v_and_or_b32 v{s_}, v{s_}, s3, v6')
    k(f'buffer_store_dword v{s_}, v5, s[32:35], 0 offen sc1')
    k('L_ln2_end:')
    k.stamp_end(4)
    k('L_ln2_exit:')
    k('s_endpgm')
    return k
```

```python
from lib import *
from small import *

MF = 'v_mfma_f32_16x16x32_bf16'
WS_PFLAG = 24576
WS_YFLAG = 28672
SPIN = 1 << 20


def wreg(kind, b):
    if kind == 'd':
        return 8 + 4 * b
    m = 0 if kind == 'g' else 1
    return 192 + 8 * b + 4 * m if b < 7 else 4 * m


def wload(kind, b):
    if kind == 'gu':
        return [f's_mov_b32 s39, {b*589824}',
                f'buffer_load_dwordx4 a[{wreg("g", b)}:{wreg("g", b)+3}], v0, s[60:63], s39 offen ;@E',
                f'buffer_load_dwordx4 a[{wreg("u", b)}:{wreg("u", b)+3}], v0, s[64:67], s39 offen ;@E']
    return [f'buffer_load_dwordx4 a[{wreg("d", b)}:{wreg("d", b)+3}], v2, s[68:71], 0 offen offset:{b*128} ;@E']


def wstore(kind, b, va):
    if kind == 'd':
        return [f'ds_write_b128 v{va+1}, a[{wreg("d", b)}:{wreg("d", b)+3}] offset:{4096*b}']
    return [f'ds_write_b128 v{va}, a[{wreg(x, b)}:{wreg(x, b)+3}] offset:{4096*b + 32768*m}' for m, x in enumerate('gu')]


def q4(t, r):
    return f'{t}[{r}:{r+3}]'


def poll(k, name, loads, regs):
    k(f's_mov_b32 s40, {SPIN}')
    k(f'L_poll_{name}:')
    for ln in loads:
        k(ln)
    k('s_waitcnt vmcnt(0)')
    t = regs[0]
    if len(regs) > 1:
        t = 3
        k(f'v_min_u32 v3, v{regs[0]}, v{regs[1]}')
        for i in range(2, len(regs), 2):
            k(f'v_min3_u32 v3, v3, v{regs[i]}, v{regs[min(i+1, len(regs)-1)]}')
    k(f'v_cmp_eq_u32 vcc, 0, v{t}')
    k('s_sub_u32 s40, s40, 1')
    k('s_cselect_b64 vcc, 0, vcc')
    k(f's_cbranch_vccnz L_poll_{name}')


def emit_tail(k, ID):
    k('s_barrier')
    for b in range(4):
        k(wstore('d', b, 252)[0])
    k(f's_load_dwordx2 s[20:21], s[0:1], {ARG["wr"]}')
    k('s_and_b32 s34, s2, 7')
    k('s_lshl_b32 s34, s34, 1')
    k('s_bfe_u32 s3, s2, 0x10003')
    k('s_add_u32 s34, s34, s3')
    k('s_lshl_b32 s32, s35, 4')
    k('s_add_u32 s32, s32, s34')
    k.srd(8, 's30', 's31', 32768)
    k('s_lshl_b32 s3, s35, 2')
    k('s_add_u32 s3, s3, s33')
    k('s_lshl_b32 s3, s3, 4')
    k('s_add_u32 s3, s3, s34')
    k('s_lshl_b32 s3, s3, 2')
    k(f's_add_u32 s3, s3, {WS_PFLAG}')
    k('v_mov_b32 v4, 0')
    k('v_mov_b32 v5, 1')
    k('v_mbcnt_lo_u32_b32 v2, -1, 0')
    k('v_mbcnt_hi_u32_b32 v2, -1, v2')
    k('s_waitcnt vmcnt(0)')
    k('buffer_store_dword v5, v4, s[8:11], s3 offen sc1')
    k.stamp()
    k.srd_off(48, 's30', 's31', WS_Y, 144 * 18432)
    k('s_sub_u32 s37, s32, 144')
    k('s_cmp_ge_u32 s37, 72')
    k('s_cbranch_scc1 L_tail_noclear')
    k('v_lshrrev_b32 v3, 4, v2')
    k('s_lshl_b32 s3, s33, 2')
    k('v_add_u32 v3, s3, v3')
    k(f'v_mul_u32_u24 v0, {9*18432}, v3')
    k('v_and_b32 v3, 15, v2')
    k('v_lshl_add_u32 v0, v3, 4, v0')
    k('s_lshl_b32 s3, s37, 8')
    k('v_add_u32 v0, s3, v0')
    for i in range(4):
        k(f'v_mov_b32 v{240+i}, -1')
    k('s_mov_b32 s3, 0')
    for i in range(9):
        k('buffer_store_dwordx4 v[240:243], v0, s[48:51], s3 offen sc1')
        k('s_add_u32 s3, s3, 18432')
    k('L_tail_noclear:')
    k('s_cmp_eq_u32 s33, 3')
    k('s_cbranch_scc1 L_tail_loader')
    NU = 3
    XL, WR, GA, SB, CB, GB = 16, 28, 40, 64, 88, 112
    A, X1, D, T = 136, 160, 184, 208
    k('v_and_b32 v1, 7, v2')
    k('v_lshrrev_b32 v3, 3, v2')
    k('v_lshlrev_b32 v6, 8, v3')
    k('v_lshl_add_u32 v6, v1, 4, v6')
    k('v_lshrrev_b32 v7, 5, v2')
    k('v_lshlrev_b32 v7, 6, v7')
    k('v_and_b32 v8, 1, v3')
    k('v_lshl_add_u32 v7, v8, 5, v7')
    k('v_and_b32 v8, 2, v3')
    k('v_lshl_add_u32 v7, v8, 3, v7')
    k('s_mul_i32 s3, s33, 384')
    k('v_add_u32 v7, s3, v7')
    k('v_lshlrev_b32 v8, 1, v7')
    k('s_lshl_b32 s3, s32, 3')
    k('v_add_u32 v9, s3, v1')
    k('v_mul_u32_u24 v10, 1152, v9')
    k('v_add_u32 v10, v10, v7')
    for u in range(NU):
        k(f'buffer_load_dwordx4 {q4("v", XL + 4*u)}, v10, s[72:75], 0 offen offset:{128*u}')
    for j, b in enumerate((GA, SB, CB, GB)):
        k(f's_movk_i32 s3, {2304*(j+2)}')
        for u in range(NU):
            for h in range(2):
                k(f'buffer_load_dwordx4 {q4("v", b + 8*u + 4*h)}, v8, s[8:11], s3 offen offset:{256*u + 16*h}')
    k('s_waitcnt lgkmcnt(0)')
    k('s_mov_b32 s22, 1152')
    k('s_mov_b32 s23, 0x20000')
    for u in range(NU):
        k(f'buffer_load_dwordx4 {q4("v", WR + 4*u)}, v7, s[20:23], 0 offen offset:{128*u}')
    k.srd_off(16, 's30', 's31', WS_PART, 16 * 2359296)
    k.srd_off(24, 's30', 's31', WS_X1, 2 * 2359296)
    k('s_lshr_b32 s41, s32, 1')
    k('s_mul_i32 s41, s41, 18432')
    k('s_and_b32 s3, s32, 1')
    k('s_lshl_b32 s3, s3, 7')
    k('s_add_u32 s41, s41, s3')
    k('s_mul_i32 s3, s33, 6144')
    k('s_add_u32 s41, s41, s3')
    k('v_add_u32 v11, 4096, v6')
    k('s_lshr_b32 s3, s32, 2')
    k('s_lshl_b32 s3, s3, 6')
    k(f's_add_u32 s42, s3, {WS_PFLAG}')
    k('v_and_b32 v12, 15, v2')
    k('v_lshlrev_b32 v12, 2, v12')
    k('v_mul_u32_u24 v14, 32, v1')
    k(f'v_add_u32 v14, {LS}, v14')
    k('s_lshl_b32 s3, s33, 3')
    k('v_add_u32 v15, s3, v14')
    X0, W = D, 232
    for i in range(24):
        k(f'v_mov_b32 v{A+i}, 0')
    k('s_mov_b32 s44, 0')
    k('s_mov_b32 s45, 0')
    k(f's_mov_b32 s40, {SPIN}')

    def loads(j):
        k(f's_add_u32 s3, s41, {j*2359296}')
        for u in range(NU):
            k(f'buffer_load_dwordx4 {q4("a", 12*j + 4*u)}, v{6 if u < 2 else 11}, s[16:19], s3 offen offset:{2048*(u % 2)} sc1')

    def sums(j):
        for u in range(NU):
            for t in range(2):
                acc = A + 8 * u + 4 * t
                k(f'{MF} {q4("v", acc)}, {q4("a", ID + 2*t)}, {q4("a", 12*j + 4*u)}, {q4("v", acc)}')

    def unpack():
        for src, dst in ((XL, X0), (WR, W)):
            for u in range(NU):
                for i in range(4):
                    k(f'v_lshlrev_b32 v{dst+8*u+2*i}, 16, v{src+4*u+i}')
                    k(f'v_and_b32 v{dst+8*u+2*i+1}, 0xffff0000, v{src+4*u+i}')
    k('L_poll_part:')
    k('buffer_load_dword v13, v12, s[8:11], s42 offen sc1')
    k('s_waitcnt vmcnt(0)')
    k('v_cmp_ne_u32 vcc, 0, v13')
    k('s_sub_u32 s40, s40, 1')
    k('s_cselect_b32 s46, -1, vcc_lo')
    k('s_and_b32 s46, s46, 0xffff')
    k('s_andn2_b32 s46, s46, s44')
    k('s_cmp_eq_u32 s46, 0xffff')
    k('s_cbranch_scc1 L_part_all')
    for j in range(16):
        k(f's_bitcmp1_b32 s46, {j}')
        k(f's_cbranch_scc0 L_part_l{j}')
        loads(j)
        k(f'L_part_l{j}:')
    k('L_part_sum:')
    k('s_cmp_eq_u32 s45, 0')
    k('s_cbranch_scc1 L_part_nosum')
    for j in range(16):
        k(f's_bitcmp1_b32 s45, {j}')
        k(f's_cbranch_scc0 L_part_s{j}')
        sums(j)
        k(f'L_part_s{j}:')
    k('L_part_nosum:')
    k('s_cmp_eq_u32 s44, 0xffff')
    k('s_cbranch_scc1 L_part_done')
    k('s_mov_b32 s45, s46')
    k('s_or_b32 s44, s44, s46')
    k('s_cmp_lg_u32 s44, 0xffff')
    k('s_cbranch_scc1 L_poll_part')
    k.stamp()
    unpack()
    k('s_waitcnt vmcnt(0)')
    k('s_branch L_part_sum')
    k('L_part_all:')
    if DIAG['on']:
        k.nstamp -= 1
    k.stamp()
    for j in range(16):
        loads(j)
    unpack()
    for j in range(16):
        k(f's_waitcnt vmcnt({3*(15-j)})')
        sums(j)
    k('L_part_done:')
    k.stamp()
    k('s_nop 7')

    def each(fmt, n=8):
        for u in range(NU):
            for i in range(n):
                k(fmt(u, i))

    def rnd(X, P):
        each(lambda u, i: f'v_cvt_pk_bf16_f32 v{P+(8 if P == T else 4)*u+i}, v{X+8*u+2*i}, v{X+8*u+2*i+1}', 4)
        for u in range(NU):
            for i in range(4):
                p = P + (8 if P == T else 4) * u + i
                k(f'v_lshlrev_b32 v{X+8*u+2*i}, 16, v{p}')
                k(f'v_and_b32 v{X+8*u+2*i+1}, s47, v{p}')
    k('s_mov_b32 s47, 0xffff0000')
    each(lambda u, i: f'v_cvt_pk_bf16_f32 v{T+8*u+i}, v{A+8*u+2*i}, v{A+8*u+2*i+1}', 4)
    each(lambda u, i: f'v_mov_b32 v{T+8*u+4+i}, v{T+8*u+2+i}', 2)
    each(lambda u, i: f'v_mov_b32_dpp v{T+8*u+2+i}, v{T+8*u+i} row_ror:8 row_mask:0xf bank_mask:0x3', 2)
    each(lambda u, i: f'v_mov_b32_dpp v{T+8*u+i}, v{T+8*u+4+i} row_ror:8 row_mask:0xf bank_mask:0xc', 2)
    for u in range(NU):
        for i in range(4):
            k(f'v_lshlrev_b32 v{A+8*u+2*i}, 16, v{T+8*u+i}')
            k(f'v_and_b32 v{A+8*u+2*i+1}, s47, v{T+8*u+i}')
    each(lambda u, i: f'v_mul_f32 v{A+8*u+i}, v{A+8*u+i}, v{GA+8*u+i}')
    rnd(A, T)
    each(lambda u, i: f'v_add_f32 v{X1+8*u+i}, v{X0+8*u+i}, v{A+8*u+i}')
    rnd(X1, XL)
    for u in range(NU):
        k(f'buffer_store_dwordx4 {q4("v", XL + 4*u)}, v10, s[24:27], 0 offen offset:{128*u} sc1')
    s_, m2 = 4, 5

    def tree(src, dst, op='v_add_f32'):
        for i in range(8):
            k(f'v_add_f32 v{T+i}, v{src+i}, v{src+8+i}')
        for i in range(8):
            k(f'v_add_f32 v{T+i}, v{T+i}, v{src+16+i}')
        for n in (4, 2):
            for i in range(n):
                k(f'v_add_f32 v{T+i}, v{T+i}, v{T+n+i}')
        k(f'v_add_f32 v{dst}, v{T}, v{T+1}')

    def dot(a, b, dst):
        for i in range(4):
            k(f'v_mul_f32 v{T+i}, v{a+i}, v{b+i}')
        for i in range(4, 24):
            k(f'v_fmac_f32 v{T + i % 4}, v{a+i}, v{b+i}')
        k(f'v_add_f32 v{T}, v{T}, v{T+1}')
        k(f'v_add_f32 v{T+2}, v{T+2}, v{T+3}')
        k(f'v_add_f32 v{dst}, v{T}, v{T+2}')
    tree(X1, s_)
    red_q8(k, [s_], T)
    k(f'v_mul_f32 v{s_}, {hx(f2u(1.0/192))}, v{s_}')
    each(lambda u, i: f'v_sub_f32 v{D+8*u+i}, v{X1+8*u+i}, v{s_}')
    dot(D, D, m2)
    red_q8(k, [m2], T)
    k(f'ds_write_b64 v15, v[{s_}:{m2}]')
    k('s_waitcnt lgkmcnt(0)')
    k('s_barrier')
    ST = T + 8
    k(f'ds_read_b128 {q4("v", ST)}, v14')
    k(f'ds_read_b64 v[{ST+4}:{ST+5}], v14 offset:16')
    k('s_waitcnt lgkmcnt(0)')
    k(f'v_add_f32 v{s_}, v{ST}, v{ST+2}')
    k(f'v_add_f32 v{m2}, v{ST+1}, v{ST+3}')
    k(f'v_add_f32 v{s_}, v{s_}, v{ST+4}')
    k(f'v_add_f32 v{m2}, v{m2}, v{ST+5}')
    k(f'v_mul_f32 v{s_}, {hx(f2u(1.0/3))}, v{s_}')
    for i in range(3):
        k(f'v_sub_f32 v{ST+2*i}, v{ST+2*i}, v{s_}')
    k(f'v_mul_f32 v{T}, v{ST}, v{ST}')
    k(f'v_fmac_f32 v{T}, v{ST+2}, v{ST+2}')
    k(f'v_fmac_f32 v{T}, v{ST+4}, v{ST+4}')
    k(f'v_fmac_f32 v{m2}, {hx(f2u(192.0))}, v{T}')
    k(f'v_mul_f32 v{m2}, {hx(f2u(1.0/576))}, v{m2}')
    rnd_pair(k, s_, m2, T)
    k(f'v_add_f32 v{m2}, {hx(f2u(1e-5))}, v{m2}')
    rnd_one(k, m2)
    k(f'v_sqrt_f32 v{m2}, v{m2}')
    each(lambda u, i: f'v_sub_f32 v{D+8*u+i}, v{X1+8*u+i}, v{s_}')
    rnd_one(k, m2)
    k(f'v_rcp_f32 v{m2}, v{m2}')
    rnd(D, T)
    each(lambda u, i: f'v_mul_f32 v{D+8*u+i}, v{D+8*u+i}, v{m2}')
    rnd(D, T)
    each(lambda u, i: f'v_mul_f32 v{D+8*u+i}, v{D+8*u+i}, v{CB+8*u+i}')
    rnd(D, T)
    each(lambda u, i: f'v_add_f32 v{D+8*u+i}, v{D+8*u+i}, v{SB+8*u+i}')
    rnd(D, WR)
    k('s_mov_b32 s3, 2359296')
    for u in range(NU):
        k(f'buffer_store_dwordx4 {q4("v", WR + 4*u)}, v10, s[24:27], s3 offen offset:{128*u} sc1')
    each(lambda u, i: f'v_mul_f32 v{A+8*u+i}, v{D+8*u+i}, v{GB+8*u+i}')
    rnd(A, T)
    each(lambda u, i: f'v_add_f32 v{A+8*u+i}, v{A+8*u+i}, v{X1+8*u+i}')
    each(lambda u, i: f'v_cvt_pk_bf16_f32 v{GA+4*u+i}, v{A+8*u+2*i}, v{A+8*u+2*i+1}', 4)
    for u in range(NU):
        k(f'buffer_store_dwordx4 {q4("v", GA + 4*u)}, v10, s[76:79], 0 offen offset:{128*u} sc1')
    dot(D, W, s_)
    red_q8(k, [s_], T)
    k(f'ds_write_b32 v15, v{s_} offset:256')
    k('s_waitcnt vmcnt(0) lgkmcnt(0)')
    k('s_barrier')
    k('s_cmp_lg_u32 s33, 0')
    k('s_cbranch_scc1 L_tail_moe')
    k(f'ds_read_b128 {q4("v", ST)}, v14 offset:256')
    k(f'ds_read_b32 v{ST+4}, v14 offset:272')
    k('v_lshlrev_b32 v6, 2, v9')
    k('s_mov_b32 s3, 0xfffff800')
    k(f's_movk_i32 s41, {WS_R}')
    k('s_waitcnt lgkmcnt(0)')
    k(f'v_add_f32 v{s_}, v{ST}, v{ST+2}')
    k(f'v_add_f32 v{s_}, v{s_}, v{ST+4}')
    k(f'v_ashrrev_i32 v{m2}, 31, v{s_}')
    k(f'v_or_b32 v{m2}, 0x80000000, v{m2}')
    k(f'v_xor_b32 v{s_}, v{s_}, v{m2}')
    k(f'v_max_u32 v{s_}, 0x800, v{s_}')
    k(f'v_and_or_b32 v{s_}, v{s_}, s3, v9')
    k(f'buffer_store_dword v{s_}, v6, s[8:11], s41 offen sc1')
    k('s_branch L_tail_moe')
    k('L_tail_loader:')
    k('s_waitcnt vmcnt(0) lgkmcnt(0)')
    if DIAG['on']:
        n = k.nstamp
        k(f's_memrealtime s[{78+2*n}:{79+2*n}]')
        k(f's_memrealtime s[{76+2*n}:{77+2*n}]')
        k('s_waitcnt lgkmcnt(0)')
    k('s_barrier')
    k('s_barrier')
    k('L_tail_moe:')
    k.stamp()
    k('s_cmp_ge_u32 s32, 216')
    k('s_cbranch_scc1 L_attn_end')
    k('v_mov_b32 v1, s33')
    k('v_lshrrev_b32 v13, 4, v2')
    k('v_lshlrev_b32 v5, 4, v2')
    k('v_and_b32 v10, 7, v2')
    k.srd_off(24, 's30', 's31', WS_X1, 2 * 2359296)
    k('s_cmp_ge_u32 s32, 144')
    k('s_cbranch_scc1 L_tail_fprep')
    k('v_bfe_u32 v3, v2, 2, 2')
    k('v_lshl_add_u32 v3, v13, 3, v3')
    k('v_lshlrev_b32 v3, 6, v3')
    k('v_and_b32 v9, 3, v2')
    k('v_lshl_add_u32 v3, v9, 3, v3')
    k('v_xor_b32 v4, v13, v1')
    k('v_and_b32 v4, 1, v4')
    k('v_lshl_add_u32 v3, v4, 5, v3')
    k('s_lshr_b32 s3, s33, 1')
    k('s_lshl_b32 s41, s3, 12')
    k(f's_add_u32 s41, s41, {LG8}')
    k('v_add_u32 v8, s41, v3')
    k('s_lshl_b32 s3, s3, 15')
    k(f's_add_u32 s3, s3, {LG}')
    k('v_add_u32 v3, s3, v3')
    AF, DN = 0, 72
    lines = []
    for kk in range(18):
        a, o = (3, 2048 * kk) if kk < 16 else (8, 2048 * (kk - 16))
        lines.append(f'ds_read_b64_tr_b16 a[{AF+4*kk}:{AF+4*kk+1}], v{a} offset:{o}')
        lines.append(f'ds_read_b64_tr_b16 a[{AF+4*kk+2}:{AF+4*kk+3}], v{a} offset:{o+256}')
    for i in range(9):
        o = 4096 * i if i < 4 else LD2 - LD + 4096 * (i - 4)
        lines.append(f'ds_read_b64_tr_b16 a[{DN+4*i}:{DN+4*i+1}], v14 offset:{o}')
        lines.append(f'ds_read_b64_tr_b16 a[{DN+4*i+2}:{DN+4*i+3}], v14 offset:{o+2048}')
    k('v_lshrrev_b32 v14, 2, v2')
    k('v_lshlrev_b32 v14, 7, v14')
    k('v_lshl_add_u32 v14, v9, 3, v14')
    k('v_bfe_u32 v4, v2, 3, 2')
    k('v_xor_b32 v4, v4, v1')
    k('v_lshl_add_u32 v14, v4, 5, v14')
    k(f'v_add_u32 v14, {LD}, v14')
    k('s_mul_i32 s3, s32, 18432')
    k(f's_add_u32 s3, s3, {WS_Y}')
    k.srd_off(16, 's30', 's31', 's3', 18432)
    k('v_mov_b32 v4, 0')
    k('buffer_load_dword v60, v4, s[16:19], 0 offen sc1')
    for i, ln in enumerate(lines):
        k(ln)
        if i % 6 == 5 and i >= 11:
            k('s_waitcnt lgkmcnt(8)')
    k('v_lshlrev_b32 v15, 4, v10')
    k('v_lshl_add_u32 v15, v13, 7, v15')
    k('v_lshl_add_u32 v15, v1, 9, v15')
    k('v_and_b32 v4, 8, v2')
    k('v_lshl_add_u32 v15, v4, 20, v15')
    k('v_lshlrev_b32 v12, 3, v4')
    k('v_lshl_add_u32 v12, v13, 4, v12')
    k('s_branch L_tail_select')
    k('L_tail_fprep:')
    k('v_and_b32 v12, 8, v2')
    k('v_lshlrev_b32 v15, 1, v12')
    k('s_lshl_b32 s41, s37, 5')
    k(f's_add_u32 s41, s41, {5*2304}')
    k('buffer_load_dwordx4 v[52:55], v15, s[8:11], s41 offen')
    k('v_and_b32 v14, 15, v2')
    k('v_lshlrev_b32 v14, 4, v14')
    k('v_lshl_add_u32 v13, v1, 8, v14')
    k('L_tail_select:')
    k('s_lshl_b32 s41, s33, 11')
    k(f's_add_u32 s41, s41, {WS_R}')
    k('v_lshlrev_b32 v6, 2, v10')
    k('v_lshl_add_u32 v61, v1, 6, v6')
    k(f'v_add_u32 v61, {LC + 128}, v61')
    k('v_lshl_add_u32 v6, v1, 5, v6')
    k(f'v_add_u32 v6, {LC}, v6')
    k('v_and_b32 v62, 31, v2')
    k('v_lshlrev_b32 v62, 2, v62')
    k(f'v_add_u32 v62, {LC}, v62')
    k(f'v_mov_b32 v63, {LC}')
    k('s_lshl_b32 s38, s33, 6')
    k(f's_add_u32 s38, s38, {LC + 128}')
    k('v_mov_b32 v7, -1')
    k('v_mov_b32 v11, 0')
    R = 16
    poll(k, 'keys', [f'buffer_load_dwordx4 {q4("v", R)}, v5, s[8:11], s41 offen sc1',
                     f'buffer_load_dwordx4 {q4("v", R+4)}, v5, s[8:11], s41 offen offset:1024 sc1'], list(range(R, R + 8)))
    k.stamp()
    TT = 24
    for rnd_ in range(8):
        for i in range(8):
            k(f'v_sub_u32 v{TT+i}, v7, v{R+i}')
        k(f'v_min3_u32 v8, v{TT}, v{TT+1}, v{TT+2}')
        k(f'v_min3_u32 v9, v{TT+3}, v{TT+4}, v{TT+5}')
        k(f'v_min3_u32 v8, v8, v{TT+6}, v{TT+7}')
        k('v_min_u32 v8, v8, v9')
        red32(k, 8, 9, 'v_min_u32')
        k('v_mov_b32 v9, v8')
        k(f'v_cmp_eq_u32 vcc, {rnd_}, v10')
        k('s_nop 0')
        k('v_permlane32_swap_b32 v8, v9')
        k('v_min_u32 v8, v8, v9')
        k('v_sub_u32 v8, v7, v8')
        k('v_subrev_u32 v7, 1, v8')
        k('v_cndmask_b32 v11, v11, v8, vcc')
    k('ds_write_b32 v6, v11')
    k('s_waitcnt lgkmcnt(0)')
    k('s_barrier')
    k('ds_read_b32 v11, v62')
    for i in range(8):
        k(f'ds_read_b128 {q4("v", 16 + 4*i)}, v63 offset:{16*i}')
    k('v_mov_b32 v7, 0')
    k('v_mov_b32 v8, 0')
    sp = ['s[40:41]', 's[42:43]', 's[44:45]', 's[46:47]']
    for i in range(0, 32, 4):
        k(f's_waitcnt lgkmcnt({7 - i//4})')
        for j in range(4):
            k(f'v_cmp_gt_u32 {sp[j]}, v{16+i+j}, v11')
        for j in range(4):
            k(f'v_addc_co_u32 v{7 + j % 2}, vcc, 0, v{7 + j % 2}, {sp[j]}')
    k('v_add_u32 v7, v7, v8')
    k('v_min_u32 v7, 8, v7')
    k('v_lshl_add_u32 v7, v7, 2, s38')
    k('ds_write_b32 v7, v11')
    k('ds_read_b32 v11, v61')
    k('s_waitcnt lgkmcnt(0)')
    k.stamp('t')
    k('v_and_b32 v7, 0x7ff, v11')
    k('v_mul_u32_u24 v7, 1152, v7')
    k('v_add_u32 v12, v12, v7')
    k('s_cmp_ge_u32 s32, 144')
    k('s_cbranch_scc1 L_tail_final')
    B = 16
    k('s_mov_b32 s3, 2359296')
    for p in range(9):
        k(f'buffer_load_dwordx4 {q4("v", B + 4*p)}, v12, s[24:27], s3 offen offset:{128*p} sc1')
    if DIAG['on'] or True:
        k('v_lshlrev_b32 v8, 2, v10')
        k(f's_movk_i32 s39, {WS_IDX}')
        k('s_or_b32 s3, s32, s33')
        k('s_cselect_b32 s3, 0x10000, s39')
        k('buffer_store_dword v11, v8, s[8:11], s3 offen')
    k('v_lshl_add_u32 v9, v1, 10, v5')
    k('v_and_b32 v4, 8, v2')
    k('v_lshl_add_u32 v10, v4, 7, v5')
    for p in range(9):
        k(f's_waitcnt vmcnt({9 - p})')
        for h in range(2):
            k(f'{MF} {q4("v", 64 + 4*h)}, {q4("a", AF + 8*p + 4*h)}, {q4("v", B + 4*p)}, {"0" if p == 0 else q4("v", 64 + 4*h)}')
    k.stamp('t')
    k('s_nop 7')
    for i in range(4):
        k(f'v_mov_b32_dpp v{64+i}, v{68+i} quad_perm:[0,1,2,3] row_mask:0xf bank_mask:0xc')
    k('s_nop 0')
    for i in range(4):
        k(f'v_add_f32_dpp v{4+i}, v{64+i}, v{64+i} row_ror:8 row_mask:0xf bank_mask:0xf')
    k('ds_write_b128 v9, v[4:7]')
    k('s_waitcnt lgkmcnt(0)')
    k('s_barrier')
    k('ds_read_b128 v[16:19], v10')
    k('ds_read_b128 v[20:23], v10 offset:2048')
    k('s_waitcnt lgkmcnt(0)')
    rnd8(k, 16, 32)
    for i in range(4):
        k(f'v_mul_f32 v{32+i}, {hx(f2u(-LOG2E))}, v{16+i}')
    for i in range(4):
        k(f'v_exp_f32 v{32+i}, v{32+i}')
    for i in range(4):
        k(f'v_add_f32 v{32+i}, 1.0, v{32+i}')
    for i in range(4):
        k(f'v_rcp_f32 v{32+i}, v{32+i}')
    for i in range(4):
        k(f'v_mul_f32 v{16+i}, v{16+i}, v{32+i}')

    def r4():
        k('v_cvt_pk_bf16_f32 v24, v16, v17')
        k('v_cvt_pk_bf16_f32 v25, v18, v19')
        k('v_lshlrev_b32 v16, 16, v24')
        k('v_and_b32 v17, 0xffff0000, v24')
        k('v_lshlrev_b32 v18, 16, v25')
        k('v_and_b32 v19, 0xffff0000, v25')
    r4()
    for i in range(4):
        k(f'v_mul_f32 v{16+i}, v{16+i}, v{20+i}')
    k('v_cvt_pk_bf16_f32 v40, v16, v17')
    k('v_cvt_pk_bf16_f32 v41, v18, v19')
    k('s_nop 0')
    k('v_mov_b32_dpp v42, v40 row_ror:8 row_mask:0xf bank_mask:0xf')
    k('v_mov_b32_dpp v43, v41 row_ror:8 row_mask:0xf bank_mask:0xf')
    k('s_nop 1')
    Y = 48
    for i in range(9):
        k(f'{MF} {q4("v", Y + 4*i)}, {q4("a", DN + 4*i)}, v[40:43], 0')
    for i in range(9):
        if i % 2 == 0:
            k(f's_movk_i32 s3, {2048*i}')
        k(f'buffer_store_dwordx4 {q4("v", Y + 4*i)}, v15, s[16:19], s3 offen offset:{2048*(i % 2)} sc1')
    k.stamp('t')
    k('s_branch L_attn_end')
    k('L_tail_final:')
    k('s_lshl_b32 s42, s37, 4')
    k(f's_add_u32 s43, s42, 2359296')
    k('buffer_load_dwordx2 v[58:59], v12, s[24:27], s42 offen sc1')
    k('buffer_load_dwordx2 v[56:57], v12, s[24:27], s43 offen sc1')
    k('v_not_b32 v7, v11')
    k('v_ashrrev_i32 v7, 31, v7')
    k('v_or_b32 v7, 0x80000000, v7')
    k('v_xor_b32 v8, v11, v7')
    rnd_one(k, 8)
    k(f'v_mul_f32 v8, {hx(f2u(-LOG2E))}, v8')
    k('v_exp_f32 v8, v8')
    k('s_nop 0')
    k('v_add_f32 v8, 1.0, v8')
    k('v_rcp_f32 v8, v8')
    k('s_nop 0')
    rnd_one(k, 8)
    k('s_waitcnt vmcnt(0)')
    for j in range(2):
        k(f'v_lshlrev_b32 v{64+2*j}, 16, v{56+j}')
        k(f'v_and_b32 v{65+2*j}, 0xffff0000, v{56+j}')
        k(f'v_lshlrev_b32 v{68+2*j}, 16, v{58+j}')
        k(f'v_and_b32 v{69+2*j}, 0xffff0000, v{58+j}')
    k(f's_mov_b32 s40, {SPIN}')
    k('L_poll_y:')
    k('s_mov_b32 s3, 0')
    for i in range(9):
        k(f'buffer_load_dwordx4 v[{16+4*i}:{19+4*i}], v0, s[48:51], s3 offen sc1')
        k('s_add_u32 s3, s3, 18432')
    for i in range(9):
        k(f's_waitcnt vmcnt({8-i})')
        if i == 0:
            k('v_max_u32 v3, v16, v17')
            k('v_max_u32 v4, v18, v19')
        else:
            k(f'v_max3_u32 v3, v3, v{16+4*i}, v{17+4*i}')
            k(f'v_max3_u32 v4, v4, v{18+4*i}, v{19+4*i}')
    k('v_max_u32 v3, v3, v4')
    k('v_cmp_eq_u32 vcc, -1, v3')
    k('s_sub_u32 s40, s40, 1')
    k('s_cselect_b64 vcc, 0, vcc')
    k('s_cbranch_vccnz L_poll_y')
    if DIAG['on']:
        n = k.nstamp
        k(f's_memrealtime s[{78+2*n}:{79+2*n}]')
        k('s_waitcnt lgkmcnt(0)')
    for a, b in ((0, 1), (2, 3), (4, 5), (6, 7), (0, 2), (4, 6), (0, 8), (0, 4)):
        for j in range(0, 4, 2):
            k(f'v_pk_add_f32 v[{16+4*a+j}:{17+4*a+j}], v[{16+4*a+j}:{17+4*a+j}], v[{16+4*b+j}:{17+4*b+j}]')
    for sw in ('v_permlane16_swap_b32', 'v_permlane32_swap_b32'):
        for j in range(4):
            k(f'v_mov_b32 v{20+j}, v{16+j}')
        k('s_nop 0')
        for j in range(4):
            k(f'{sw} v{16+j}, v{20+j}')
        for j in range(4):
            k(f'v_add_f32 v{16+j}, v{16+j}, v{20+j}')
    k('ds_write_b128 v13, v[16:19]')
    k('s_waitcnt lgkmcnt(0)')
    k('s_barrier')
    k('s_cmp_lg_u32 s33, 0')
    k('s_cbranch_scc1 L_attn_end')
    for w in range(1, 4):
        k(f'ds_read_b128 v[{28+4*w}:{31+4*w}], v14 offset:{256*w}')
    k('s_waitcnt lgkmcnt(0)')
    for j in range(4):
        k(f'v_add_f32 v{16+j}, v{16+j}, v{32+j}')
        k(f'v_add_f32 v{36+j}, v{36+j}, v{40+j}')
    for j in range(4):
        k(f'v_add_f32 v{16+j}, v{16+j}, v{36+j}')
    r4()
    for j in range(4):
        k(f'v_mul_f32 v{16+j}, v{16+j}, v8')
    r4()
    for j in range(4):
        k(f'v_add_f32 v{16+j}, v{16+j}, v{64+j}')
    r4()
    for j in range(4):
        k(f'v_mul_f32 v{16+j}, v{16+j}, v{52+j}')
    r4()
    for j in range(4):
        k(f'v_add_f32 v{16+j}, v{16+j}, v{68+j}')
    k('v_cvt_pk_bf16_f32 v20, v16, v17')
    k('v_cvt_pk_bf16_f32 v21, v18, v19')
    k('buffer_store_dwordx2 v[20:21], v12, s[76:79], s42 offen sc1')
    k('s_branch L_attn_end')
```

```python
import sys
from lib import *
from small import *
from attn import *
from head import *
from moe import *
def build(opt=None):
    a = gen_attn(opt)
    print('sched overflow:', a.stats, file=sys.stderr)
    ks = [gen_k1(opt), a, gen_ln2b(opt), gen_moe1b(), gen_moe2b()]
    if (opt or {}).get('fuse', True):
        ks = ks[:2]
    import hazard
    for kk in ks:
        for b in hazard.check(kk.lines, kk.name):
            print('HAZARD', b, file=sys.stderr)
    return assemble(ks)
if __name__ == '__main__':
    out = sys.argv[1]
    DIAG['on'] = 'diag' in sys.argv[2:]
    opt = {}
    for a in sys.argv[2:]:
        if '=' in a:
            kk, v = a.split('=')
            opt[kk] = eval(v)
    DIAG['grp'] = opt.get('grp', 'h')
    open(out, 'w').write(build(opt))
```

```python
from lib import *
from small import *
from tail import emit_tail, wdma, wload, wstore, LDS_TOTAL

MF = 'v_mfma_f32_16x16x32_bf16'
SCALE = 128 ** -0.5


def q4(t, r):
    return f'{t}[{r}:{r+3}]'


def q2(t, r):
    return f'{t}[{r}:{r+1}]'


def gen_attn(opt=None):
    opt = opt or {}
    dbl = opt.get('dbl', True)
    bias = opt.get('bias', 0.0)
    CSB = 131072 + 256
    k = K('attn_kernel', 256, 256, LDS_TOTAL, nvgpr=256, nagpr=256)
    O, KF, VF = 0, 128, 160
    KA, VA, DK, DV = 8, 12, 20, 24
    OST = 26
    MX = 28
    TMP = 32
    ONE = 40
    NM = 44
    L = 60
    P = 76
    S = 108
    QA = 44
    WA, DW, PF = 172, 180, 184
    Q = HR = 188
    WA2 = TMP
    TMP2 = 0
    stats = []
    E = k

    def emit(lines):
        for ln in lines:
            k(ln)

    k('s_cmp_ge_u32 s2, 256')
    k('s_cbranch_scc1 L_attn_exit')
    k.stamp()
    k(f's_load_dwordx4 s[52:55], s[0:1], {ARG["wq"]}')
    k(f's_load_dwordx2 s[30:31], s[0:1], {ARG["ws"]}')
    k(f's_load_dwordx4 s[4:7], s[0:1], {ARG["k"]}')
    k('v_lshrrev_b32 v1, 6, v0')
    k('v_and_b32 v2, 63, v0')
    k('v_readfirstlane_b32 s33, v1')
    hx_ = opt.get('hx', 1)
    k(f's_bfe_u32 s34, s2, {hx((4 - hx_) << 16)}')
    k(f's_lshl_b32 s34, s34, {hx_}')
    k(f's_bfe_u32 s3, s2, {hx((hx_ << 16) | 3)}')
    k('s_add_u32 s34, s34, s3')
    k(f's_lshr_b32 s35, s2, {3 + hx_}')
    if hx_ > 1:
        k(f's_bfe_u32 s3, s2, {hx(((hx_ - 1) << 16) | (4 - hx_))}')
        k(f's_lshl_b32 s3, s3, {5 - hx_}')
        k('s_add_u32 s35, s35, s3')
    k('v_lshrrev_b32 v3, 5, v2')
    k('v_and_b32 v4, 1, v1')
    k('v_lshl_add_u32 v4, v4, 2, v3')
    k('v_lshlrev_b32 v4, 1, v4')
    k('v_and_b32 v5, 31, v2')
    k('v_xor_b32 v4, v4, v5')
    k('v_lshl_add_u32 v3, v1, 3, v3')
    k('v_lshlrev_b32 v3, 13, v3')
    k(f'v_lshl_add_u32 v{DW}, v4, 4, v3')
    k(f'v_xor_b32 v{DW+1}, 64, v{DW}')
    k(f'v_add_u32 v{DW+1}, {2*8192-1024}, v{DW+1}')
    k(f'v_add_u32 v{DW+2}, {4*8192-2048}, v{DW}')
    k(f'v_add_u32 v{DW+3}, {4*8192-2048}, v{DW+1}')
    k(f'v_lshlrev_b32 v{OST}, 4, v2')
    k(f'v_add_u32 v{OST+1}, 18432, v{OST}')
    k('s_lshl_b32 s3, s34, 9')
    k(f's_sub_u32 s18, {hx(576*8192)}, s3')
    k('s_lshl_b32 s37, s35, 3')
    k('s_lshl_b32 s36, s33, 1')
    k('s_add_u32 s37, s37, s36')
    k('s_mul_i32 s36, s37, 18432')
    k(f's_add_u32 s36, s36, {hx(WS_H)}')
    k('s_lshl_b32 s38, s33, 12')
    k('s_waitcnt lgkmcnt(0)')
    k.srd_off(16, 's52', 's53', 's3', 's18')
    k.srd_off(20, 's30', 's31', 's36', 2 * 18432)

    def wslot(t):
        return ((t + 3) % 4) * 32768

    def pgroup(t):
        g = [f's_mov_b32 s43, {hx(t*2048)}']
        for h in range(2):
            for rb in range(2):
                r = HR + (t % 4) * 16 + h * 8 + rb * 4
                g.append(f'buffer_load_dwordx4 {q4("v", r)}, v{OST+rb}, s[20:23], s43 offen offset:{1024*h} ;@X{t}')
        for h in range(2):
            kk = 2 * t + h
            g.append(f's_add_u32 m0, s38, {wslot(t) + h*16384}')
            g.append(f's_mov_b32 s42, {hx(kk*262144)}')
            for i in range(4):
                g.append(f'buffer_load_dwordx4 v{DW+i}, s[16:19], s42 offen offset:{1024*i} nt lds ;@W{t}')
        return g
    k('s_lshl_b32 s3, s33, 10')
    k(f's_add_u32 m0, s3, {CSB}')
    k.srd(24, 's30', 's31', 3456)
    k(f'buffer_load_dwordx4 v{OST}, s[24:27], s3 offen lds')
    lines, vq = resolve_vm(pgroup(0))
    emit(lines)
    k(f's_load_dwordx4 s[44:47], s[0:1], {ARG["wg"]}')
    k(f's_load_dwordx2 s[72:73], s[0:1], {ARG["x"]}')
    k(f's_load_dwordx2 s[76:77], s[0:1], {ARG["out"]}')
    k(f's_load_dwordx2 s[28:29], s[0:1], {ARG["wd"]}')
    k('s_lshl_b32 s3, s34, 19')
    k.srd_off(8, 's4', 's5', 's3', 524288)
    k.srd_off(12, 's6', 's7', 's3', 524288)
    k('s_lshl_b32 s3, s34, 7')
    k('s_add_u32 s3, s3, s37')
    k('s_mul_i32 s3, s3, 18432')
    k(f's_add_u32 s3, s3, {hx(WS_PART)}')
    k.srd_off(24, 's30', 's31', 's3', 2 * 18432)
    k(f's_mul_i32 s3, s34, {256*1152}')
    k.srd_off(56, 's54', 's55', 's3', 256 * 1152)
    k('s_mov_b32 s54, s34')
    k('v_and_b32 v3, 15, v2')
    k('v_lshrrev_b32 v4, 4, v2')
    k('v_xor_b32 v5, v3, v4')
    k('v_lshlrev_b32 v6, 8, v3')
    for s in range(4):
        k(f'v_xor_b32 v7, {4*s}, v5')
        k(f'v_lshl_add_u32 v{KA+s}, v7, 4, v6')
    k('s_lshl_b32 s3, s33, 4')
    k('v_add_u32 v6, s3, v4')
    k('v_lshlrev_b32 v6, 8, v6')
    for i in range(4):
        k(f'v_xor_b32 v7, {4*i}, v5')
        k(f'v_lshl_add_u32 v{DK+i}, v7, 4, v6')
    for i in range(2):
        k(f'v_add_u32 v7, {4*i}, v4')
        k('v_lshlrev_b32 v7, 1, v7')
        k('v_xor_b32 v7, v7, v3')
        k(f'v_lshl_add_u32 v{DV+i}, v7, 4, v6')
    k('v_lshrrev_b32 v3, 2, v2')
    k('v_and_b32 v4, 3, v2')
    k('v_lshlrev_b32 v5, 8, v3')
    k('v_lshl_add_u32 v5, v4, 3, v5')
    k('v_add_u32 v5, 0x10000, v5')
    k('v_and_b32 v6, 7, v3')
    for db in range(8):
        k(f'v_xor_b32 v7, {db}, v6')
        k(f'v_lshl_add_u32 v{VA+db}, v7, 5, v5')
    k('v_bfe_u32 v3, v2, 2, 2')
    k('v_lshrrev_b32 v5, 4, v2')
    k('v_lshl_add_u32 v6, v5, 3, v3')
    k('v_lshlrev_b32 v6, 9, v6')
    k('v_lshl_add_u32 v6, v4, 3, v6')
    k('v_and_b32 v5, 1, v5')
    k('v_lshl_add_u32 v5, v5, 2, v3')
    for u in range(8):
        k(f'v_xor_b32 v7, {u}, v5')
        k(f'v_lshl_add_u32 v{WA+u}, v7, 5, v6')
        k(f'v_add_u32 v{WA2+u}, 0x10000, v{WA+u}')
    for i in range(12):
        k(f'v_accvgpr_write_b32 a{192+i}, v{KA+i}')
    lines, vq = resolve_vm(pgroup(1), vq)
    emit(lines)
    k('v_lshrrev_b32 v3, 3, v2')
    k('v_lshl_add_u32 v3, v1, 5, v3')
    k('v_mul_u32_u24 v3, 1152, v3')
    k('v_lshrrev_b32 v4, 4, v2')
    k('v_lshlrev_b32 v4, 1, v4')
    k('v_and_b32 v5, 7, v2')
    k('v_xor_b32 v4, v4, v5')
    k('v_lshl_add_u32 v252, v4, 4, v3')
    k('v_lshrrev_b32 v3, 2, v2')
    k('v_lshlrev_b32 v3, 7, v3')
    k('v_and_b32 v4, 3, v2')
    k('v_lshl_add_u32 v3, v4, 3, v3')
    k('v_bfe_u32 v4, v2, 3, 2')
    k('v_lshl_add_u32 v253, v4, 5, v3')
    k('s_waitcnt lgkmcnt(0)')
    k.srd(60, 's44', 's45', 576 * 9216)
    k.srd(64, 's46', 's47', 576 * 9216)
    k.srd(68, 's28', 's29', 4608 * 1152)
    k('s_mov_b32 s74, 2359296')
    k('s_mov_b32 s75, 0x20000')
    k('s_mov_b32 s78, 2359296')
    k('s_mov_b32 s79, 0x20000')
    k.srd_off(48, 's30', 's31', WS_X1, WS_END - WS_X1)
    PFS = {0: 60, 1: 64, 2: 68}
    k('v_lshlrev_b32 v254, 7, v2')
    k('v_lshlrev_b32 v255, 3, v2')
    k('s_getpc_b64 s[4:5]')
    k('L_attn_pc:')
    k('s_add_u32 s4, s4, 0x3000')
    k('s_addc_u32 s5, s5, 0')
    k('s_mov_b32 s6, L_code_end-L_attn_pc-0x3000')
    k('s_mov_b32 s7, 0x20000')
    k('s_bfe_u32 s3, s2, 0x10003')
    k('s_lshl_b32 s3, s3, 2')
    k('s_add_u32 s3, s3, s33')
    k('s_lshl_b32 s52, s3, 13')
    k('s_add_u32 s52, s52, L_attn_tail-L_attn_pc-0x3000')
    k('s_mov_b32 s53, 0')
    k('s_lshl_b32 s39, s2, 2')
    k('s_add_u32 s39, s39, s33')
    k('s_lshl_b32 s36, s39, 13')
    k('s_mul_i32 s37, s39, 2304')
    k('s_lshr_b32 s3, s2, 3')
    k('s_lshl_b32 s3, s3, 2')
    k('s_add_u32 s3, s3, s33')
    k('s_min_u32 s3, s3, 95')
    k('s_and_b32 s53, s2, 7')
    k('s_mul_i32 s39, s3, 9216')
    k('s_lshl_b32 s34, s53, 7')
    k('s_add_u32 s39, s39, s34')
    k(f's_mul_i32 s34, s53, 73728')
    k('s_lshl_b32 s3, s3, 7')
    k('s_add_u32 s34, s34, s3')
    k('v_and_b32 v4, 31, v2')
    k('v_min_u32 v4, 8, v4')
    k(f'v_lshlrev_b32 v{PF+2}, 10, v4')
    k(f'v_mul_u32_u24 v{PF+3}, {8*73728}, v4')
    if opt.get('pf64', False):
        k('v_and_b32 v4, 32, v2')
        k(f'v_lshl_add_u32 v{PF+2}, v4, 1, v{PF+2}')
        k(f'v_lshl_add_u32 v{PF+3}, v4, 1, v{PF+3}')
    k('s_lshl_b32 s32, s35, 2')
    k('s_add_u32 s32, s32, s33')
    k('s_mul_i32 s32, s32, 4608')
    k('s_mov_b32 s45, 0')
    k(f's_mov_b32 s44, {hx(f2u(SCALE * LOG2E))}')
    k(f's_mov_b32 s46, {hx(f2u(bias))}')

    def kdma(T, tag=None):
        g = [f's_add_u32 m0, s38, {(T % 4)*16384}', f's_mov_b32 s42, {hx(T*16384)}']
        for i in range(4):
            g.append(f'buffer_load_dwordx4 v{DK+i}, s[8:11], s42 offen offset:{1024*i} nt lds ;@K{T % 4}')
        return g

    def vdma(T):
        g = [f's_add_u32 m0, s38, {65536 + (T % 4)*16384}', f's_mov_b32 s42, {hx(T*16384)}']
        for i in range(4):
            g.append(f'buffer_load_dwordx4 v{DV + i % 2}, s[12:15], s42 offen offset:{1024*i} nt lds ;@V{T % 4}')
        return g

    def gemm(nf, rd, mf_of, at_bar, extra=None, first_bar_items=None, LA=6, chain=False):
        pre = []
        for f in range(LA):
            pre += rd(f)
        mf = []
        G = []
        for f in range(nf):
            G.append(len(mf))
            mf += mf_of(f)
        if chain:
            for f in range(0, nf, 2):
                mf[G[f] + 1], mf[G[f + 1]] = mf[G[f + 1]], mf[G[f] + 1]
        rs, ns, ds = [], [], []
        if first_bar_items:
            n = len(first_bar_items)
            for i, x in enumerate(first_bar_items):
                ds.append(It(x, 1, lo=(i * 60) // n - 2, hi=2 + (i * 60) // n, sep=x.startswith('buffer')))
        for f in range(nf):
            g = G[f]
            if (f + LA) % 32 == 0:
                ab = at_bar(f // 32)
                if ab:
                    tags, dm, span = ab
                    rs.append(It(f'VWAIT {tags}', 1, lo=g - 2, hi=g))
                    b = It('s_barrier', 1, lo=g - 2, hi=g)
                    rs.append(b)
                    n = len(dm)
                    nb = sum(x.startswith('buffer') for x in dm)
                    ib = 0
                    for i, x in enumerate(dm):
                        p = g + 3 + (ib * span) // nb
                        isb = x.startswith('buffer')
                        ds.append(It(x, 1, lo=p - 2 if isb else g, hi=p + 3 if isb else p + 1, sep=isb, after=[b]))
                        ib += isb
            if f + LA < nf:
                for i, x in enumerate(rd(f + LA)):
                    rs.append(It(x, 1, lo=g - 2 + i, hi=g + i + 2, sep=True))
            nw = opt.get('qwait', 2)
            if f % nw == 0 and f > 0:
                r = KF + 4 * (f % 16)
                ns.append(It(f'NEED a[{r}:{r+4*nw-1}]', 1, lo=g - 1, hi=g - 1))
        streams = [ns, rs, ds] + (extra(G) if extra else [])
        return pre + sched(mf, streams, stats=stats)

    k('s_and_b32 s3, s2, 7')
    k('s_lshl_b32 s3, s3, 1')
    k('s_bfe_u32 s36, s2, 0x10003')
    k('s_add_u32 s3, s3, s36')
    k('s_and_b32 s36, s2, 0xf0')
    k('s_add_u32 s3, s3, s36')
    k('s_mov_b32 s55, s3')
    k('s_lshl_b32 s40, s3, 6')
    k('s_mul_i32 s41, s3, 36864')
    k('s_cmp_lt_u32 s3, 144')
    k('s_cselect_b32 s40, s40, 0x1000000')
    k('v_lshrrev_b32 v3, 2, v0')
    k('v_mul_u32_u24 v3, 9216, v3')
    k('v_lshrrev_b32 v6, 4, v2')
    k('v_and_b32 v7, 2, v6')
    k('v_and_b32 v4, 3, v2')
    k('v_xor_b32 v4, v4, v7')
    k('v_lshl_add_u32 v3, v4, 4, v3')
    k('v_add_u32 v3, s40, v3')
    k('v_lshrrev_b32 v4, 3, v0')
    k('v_mul_u32_u24 v4, 1152, v4')
    k('v_lshlrev_b32 v6, 1, v6')
    k('v_and_b32 v7, 7, v2')
    k('v_xor_b32 v6, v6, v7')
    k('v_lshl_add_u32 v4, v6, 4, v4')
    k('v_add_u32 v4, s41, v4')
    k('v_accvgpr_write_b32 a205, v3')
    k('v_accvgpr_write_b32 a206, v4')
    k('s_lshl_b32 s36, s33, 10')
    M0, M1 = PF, PF + 1
    ID, QS = 248, 216
    c = SCALE * LOG2E
    chi = (f2u(c) + 0x8000) >> 16
    clo = (f2u(c - struct.unpack('<f', struct.pack('<I', chi << 16))[0]) + 0x8000) >> 16
    k('v_and_b32 v3, 1, v2')
    k('v_lshlrev_b32 v3, 4, v3')
    k('v_mov_b32 v4, 0xffff')
    k('v_lshlrev_b32 v3, v3, v4')
    k('v_lshrrev_b32 v4, 4, v2')
    k('v_bfe_u32 v5, v2, 1, 3')
    k('v_lshlrev_b32 v6, 1, v4')
    k('v_or_b32 v7, 1, v6')
    k('v_cmp_eq_u32 vcc, v5, v6')
    k('v_cmp_eq_u32 s[40:41], v5, v7')
    k('s_mov_b32 s47, 0x3f803f80')
    k(f'v_cndmask_b32 v{M0}, 0, v3, vcc')
    k(f'v_cndmask_b32 v{M1}, 0, v3, s[40:41]')
    k('v_and_b32 v6, 3, v2')
    k('v_cmp_eq_u32 vcc, 0, v6')
    k('v_mov_b32 v7, s47')
    k('s_nop 0')
    k('v_cndmask_b32 v6, 0, v7, vcc' if opt.get('ones4', True) else 'v_mov_b32 v6, v7')
    k('v_accvgpr_write_b32 a207, v6')
    k(f'v_and_b32 v6, s47, v{M0}')
    k(f'v_and_b32 v7, s47, v{M1}')
    for i, r in enumerate(('v6', 'v7', '0', '0', 'v6', 'v7')):
        k(f'v_accvgpr_write_b32 a{ID+i}, {r}')
    k('v_bfe_u32 v6, v2, 2, 1')
    k('v_lshlrev_b32 v6, 1, v6')
    k('v_sub_u32 v4, v4, v6')
    k('v_bfe_u32 v6, v2, 3, 1')
    k('v_and_b32 v5, 1, v5')
    k('v_lshl_add_u32 v5, v6, 1, v5')
    k('v_lshl_add_u32 v5, v4, 2, v5')
    k(f'v_and_b32 v6, {hx(chi * 0x10001)}, v3')
    k(f'v_and_b32 v7, {hx(clo * 0x10001)}, v3')
    for code in range(8):
        k(f'v_cmp_eq_u32 vcc, {code}, v5')
        k('s_nop 1')
        k('v_cndmask_b32 v3, 0, v6, vcc')
        k('v_cndmask_b32 v4, 0, v7, vcc')
        k(f'v_accvgpr_write_b32 a{QS+code}, v3')
        k(f'v_accvgpr_write_b32 a{QS+8+code}, v4')
    k('v_lshrrev_b32 v1, 4, v2')
    k('v_lshlrev_b32 v1, 4, v1')
    k('v_accvgpr_write_b32 a254, v0')
    k(f'v_add_u32 v{TMP2}, {CSB + 2304}, v1')
    k('v_lshlrev_b32 v1, 1, v1')
    k(f'v_add_u32 v1, {CSB}, v1')
    k('v_mov_b32 v4, 0')
    k('v_mov_b32 v5, 0')
    lines, vq = resolve_vm(['VWAIT W0', 's_barrier'], vq)
    emit(lines)
    k.stamp('h')

    def prd(f):
        kk, u = f // 16, f % 16
        t = kk // 2
        base = wslot(t) + (kk % 2) * 16384 + (u // 8) * 256
        a = (WA if base < 65536 else WA2) + u % 8
        base %= 65536
        r = KF + 4 * (f % 16)
        return [f'ds_read_b64_tr_b16 {q2("a", r)}, v{a} offset:{base}',
                f'ds_read_b64_tr_b16 {q2("a", r+2)}, v{a} offset:{base + 2048}']

    def pmf(f):
        kk, u = f // 16, f % 16
        t = kk // 2
        out = []
        for rb in range(2):
            acc = QA + ((u // 8) * 2 + rb) * 32 + (u % 8) * 4
            b = HR + (t % 4) * 16 + (kk % 2) * 8 + rb * 4
            c = '0' if kk == 0 else q4('v', acc)
            out.append(f'{MF} {q4("v", acc)}, {q4("a", KF + 4*(f % 16))}, {q4("v", b)}, {c}')
        return out

    def pbar(t):
        if t + 3 <= 8:
            return f'W{t+1}', pgroup(t + 3), opt.get('qspan', 76)
        if t == 6:
            return 'W7', kdma(0) + kdma(1), 50
        if t == 7:
            return 'W8', kdma(2), 30
        return 'K0', vdma(0) + vdma(1), 9
    CQ, SQ, DG = 8, 12, 2
    OUT = [28, 40]

    def xreg(kk, rb):
        return HR + ((kk // 2) % 4) * 16 + (kk % 2) * 8 + rb * 4

    def m1(kk, rb):
        return [f'{MF} {q4("v", OUT[T])}, {q4("v", DG + 2*T)}, {q4("v", xreg(kk, rb))}, 0' for T in range(2)]

    def m2(kk, rb):
        return [f'{MF} {q4("v", OUT[T])}, {q4("a", ID + 2*T)}, {q4("v", xreg(kk, rb))}, {q4("v", SQ + 4*T)}' for T in range(2)]

    def mcvt(kk, rb):
        return [f'v_cvt_pk_bf16_f32 v{xreg(kk, rb) + d}, v{OUT[d // 2] + 2*(d % 2)}, v{OUT[d // 2] + 2*(d % 2) + 1}' for d in range(4)]

    def cread(kk):
        return [f'ds_read_b128 {q4("v", CQ)}, v{TMP2} offset:{kk*64}']

    def sread(kk):
        return [f'ds_read_b128 {q4("v", SQ + 4*T)}, v1 offset:{kk*128 + T*16}' for T in range(2)]

    def diag():
        return [f'v_and_b32 v{DG + (0, 1, 4, 5)[d]}, v{CQ + d}, v{(M0, M1)[d % 2]}' for d in range(4)]
    MPOS = {0: (m1, 0), 4: (m2, 0), 8: (m1, 1), 12: (m2, 1)}

    def pmf2(f):
        kk, u = f // 16, f % 16
        out = pmf(f)
        if u in MPOS and kk + 1 < 18:
            fn, rb = MPOS[u]
            out += fn(kk + 1, rb)
        return out

    def mstreams(G):
        cv, tb = [], []
        for kk in range(1, 18):
            f0 = 16 * (kk - 1)
            for u in (0, 4, 8, 12):
                for i, x in enumerate(mcvt(kk, MPOS[u][1])):
                    cv.append(It(x, 1, lo=G[f0 + u + 2] + 1, hi=G[f0 + u + 3] + (i // 2) - (1 if u == 12 else 0)))
            if kk + 1 < 18:
                tb.append(It(cread(kk + 1)[0], 1, lo=G[f0 + 2], hi=G[f0 + 6]))
                for i, x in enumerate(diag()):
                    tb.append(It(x, 1, lo=G[f0 + 9], hi=G[f0 + 13] + i // 2))
                if (kk + 1) % 2 == 0:
                    tb.append(It(f'VWAIT X{(kk+1)//2}', 1, lo=G[f0 + 13], hi=G[f0 + 16]))
                for x in sread(kk + 1):
                    tb.append(It(x, 1, lo=G[f0 + 14] + 1, hi=G[f0 + 17] + 1))
        return [cv, tb]
    body = gemm(288, prd, pmf2, pbar, extra=mstreams, first_bar_items=pgroup(2), LA=opt.get('qla', 6))
    OUT2 = [QA, QA + 4]
    NP = 2 * opt.get('qla', 6)
    first = cread(0) + sread(0) + body[:NP-2] + diag() + body[NP-2:NP] + cread(1) + ['s_nop 0'] + m1(0, 0)
    sw = lambda L: [x.replace(q4('v', OUT[0]), q4('v', OUT2[0])).replace(q4('v', OUT[1]), q4('v', OUT2[1])) for x in L]
    cv2 = [f'v_cvt_pk_bf16_f32 v{xreg(0, 1) + d}, v{QA + 2*d}, v{QA + 2*d + 1}' for d in range(4)]
    first += sw(m1(0, 1)) + ['s_nop 5'] + mcvt(0, 0) + cv2 + m2(0, 0) + sw(m2(0, 1)) + diag() + ['s_nop 1'] + mcvt(0, 0) + cv2
    first += sread(1)
    lines = first + body[NP:]
    lines, vq = resolve_vm(lines, vq)
    lines, _ = insert_lgkm(lines)
    emit(lines)
    k.stamp('h')

    def sreg(buf, qb, kb):
        return S + buf * 32 + qb * 8 + kb * 4

    ORD = opt.get('order', 'pC')

    def kmap(u):
        return (u % 2, u // 2) if ORD in ('qB', 'pB') else (u // 4, u % 4)

    def kread(j, u):
        T, ht = j // 2, j % 2
        kb, s = kmap(u)
        off = (T % 4) * 16384 + (ht * 2 + kb) * 4096
        return [f'ds_read_b128 {q4("a", KF + 4*u)}, v{KA + s} offset:{off}']

    def vread(j, u):
        T, ht = j // 2, j % 2
        off = (T % 4) * 16384 + ht * 8192
        return [f'ds_read_b64_tr_b16 {q2("a", VF + 4*u)}, v{VA + u} offset:{off}',
                f'ds_read_b64_tr_b16 {q2("a", VF + 4*u + 2)}, v{VA + u} offset:{off + 4096}']

    def qk1(j, u, qb, czero=False):
        kb, s = kmap(u)
        d = sreg(j % 2, qb, kb)
        if s == 0:
            c = '0' if czero else q4('v', NM + 4 * qb)
        else:
            c = q4('v', d)
        return f'{MF} {q4("v", d)}, {q4("a", KF + 4*u)}, {q4("v", Q + qb*16 + s*4)}, {c}'

    USLOT = [0, 1, 4, 2, 5, 3, 6, 7]

    def wodma(U):
        src = (U % 2) * 128 * 1152 + (U // 2) * 128
        g = [f's_add_u32 m0, s38, {USLOT[U % 8]*16384}', f's_mov_b32 s42, {hx(src)}']
        for i in range(4):
            g.append(f'buffer_load_dwordx4 v{DW+i}, s[56:59], s42 offen offset:{1024*i} {opt.get("wof", "")} lds ;@U{U}')
        return g

    def localmax(buf, qb):
        r = sreg(buf, qb, 0)
        out = [f'v_max3_f32 v{TMP+qb}, v{r}, v{r+1}, v{MX+qb}']
        for i in range(2, 8, 2):
            out.append(f'v_max3_f32 v{TMP+qb}, v{r+i}, v{r+i+1}, v{TMP+qb}')
        return out

    def crossmax():
        out = []
        for op in ('v_permlane16_swap_b32', 'v_permlane32_swap_b32'):
            for qb in range(4):
                out.append(f'v_mov_b32 v{TMP+4+qb}, v{TMP+qb}')
            out.append('s_nop 0')
            for qb in range(4):
                out.append(f'{op} v{TMP+qb}, v{TMP+4+qb}')
            for qb in range(4):
                out.append(f'v_max_f32 v{TMP+qb}, v{TMP+qb}, v{TMP+4+qb}')
        return out
    order = [2, 0, 1, 3]
    misc = [f'v_accvgpr_read_b32 v{KA+i}, a{192+i}' for i in range(12)]
    for u in range(8):
        misc += kread(0, u)
    misc2 = []
    for i in range(4):
        misc2 += [f'v_accvgpr_read_b32 v{ONE+i}, a207', f'v_mov_b32 v{MX+i}, 0xff800000']
    misc2 += ['v_accvgpr_read_b32 v0, a205', 'v_accvgpr_read_b32 v2, a206']
    misc2.append(f'v_mov_b32 v{DW}, v252')
    for i in range(1, 4):
        misc2.append(f'v_add_u32 v{DW+i}, {i*(8*1152-1024)}, v252')
    for nbl in range(4):
        misc2.append(f'v_xor_b32 v{WA+nbl}, {nbl*32}, v253')

    def ucvt(qb, s):
        a, d = QA + qb * 32 + s * 8, Q + qb * 16 + s * 4
        return [f'v_cvt_pk_bf16_f32 v{d+j}, v{a+2*j}, v{a+2*j+1}' for j in range(4)]

    def umf(qb, s):
        a, d = QA + qb * 32 + s * 8, Q + qb * 16 + s * 4
        return [f'{MF} {q4("v", a + 4*(j % 2))}, {q4("a", QS + 4*j)}, {q4("v", d)}, {"0" if j < 2 else q4("v", a + 4*(j % 2))}'
                for j in range(4)]
    mf, upos, qpos = [], {}, {}
    for i, qb in enumerate(order):
        for s_ in range(4):
            upos[qb, s_] = len(mf)
            mf += umf(qb, s_)
        if i >= 1:
            qpos[order[i - 1]] = len(mf)
            mf += [qk1(0, u, order[i - 1], True) for u in range(8)]
    qpos[3] = len(mf)
    mf += [qk1(0, u, 3, True) for u in range(8)]
    pre_s, post_s = [], []
    units = [(qb, s_) for qb in order for s_ in range(4)]
    for n, (qb, s_) in enumerate(units):
        p = upos[qb, s_]
        if n >= 1:
            pre_s += [It(x, 1, lo=p - 8, hi=p - 3) for x in ucvt(qb, s_)]
        post_s += [It(x, 1, lo=p + 7, hi=min(p + 12, qpos[qb] - 3 if qb == 2 else qpos[qb] + s_ - 3)) for x in ucvt(qb, s_)]
    fin = localmax(0, 2) + localmax(0, 0) + localmax(0, 1)
    oth = [It(x, 1, lo=0, hi=10 + i) for i, x in enumerate(misc[8:])] + [It(x, 1, lo=0, hi=70) for x in misc2]
    oth += [It(x, 1, lo=qpos[1], hi=200) for x in fin[:8]] + [It(x, 1, lo=qpos[3] + 5, hi=200) for x in fin[8:]]
    lines = misc[:8] + ucvt(*units[0]) + ['s_nop 1'] + sched(mf, [pre_s, post_s, oth], stats=stats)
    lines, _ = insert_lgkm(lines)
    emit(lines)
    k('s_branch L_attn_go')
    k('L_attn_entry:')
    lines = []
    for u in range(8):
        lines += kread(0, u)
    for qb in order:
        for u in range(8):
            lines.append(qk1(0, u, qb, True))
    lines += fin
    lines, _ = insert_lgkm(lines)
    emit(lines)
    k('L_attn_go:')
    lines = []
    for u in range(4):
        lines += kread(1, u)
    lines.append('s_nop 3')
    lines += localmax(0, 3) + crossmax()
    for qb in range(4):
        lines.append(f'v_add_f32 v{TMP+qb}, s46, v{TMP+qb}')
    for qb in range(4):
        for i in range(4):
            lines.append(f'v_sub_f32 v{NM+4*qb+i}, 0, v{TMP+qb}')
    for kb in range(2):
        for qb in range(4):
            for i in range(4):
                r = sreg(0, qb, kb) + i
                lines.append(f'v_sub_f32 v{r}, v{r}, v{TMP+qb}')
    lines, q = insert_lgkm(lines)
    emit(lines)
    k.stamp('h')
    k.stamp('l')
    k(f's_mov_b32 s40, {opt.get("iters", 7)}')
    k(f's_mov_b32 s41, {hx(2*16384)}')

    def step(j, extra=None):
        do_qk = j + 1 <= 63
        do_sm = j <= 63
        do_pv = j >= 1
        T = j // 2
        mf = []
        gs = []
        for u in range(8):
            gs.append(len(mf))
            pb = P + ((j - 1) % 2) * 16
            if do_qk:
                mf += [qk1(j + 1, u, qb) for qb in range(4)]
            if do_pv and j == 64 and u == 0:
                for qb in range(4):
                    mf.append(f'{MF} {q4("v", L + 4*qb)}, {q4("v", ONE)}, {q4("v", pb + qb*4)}, {q4("v", L + 4*qb)}')
            if do_pv:
                for qb in range(4):
                    o = O + qb * 32 + u * 4
                    mf.append(f'{MF} {q4("a", o)}, {q4("a", VF + 4*u)}, {q4("v", pb + qb*4)}, {"0" if j == 1 else q4("a", o)}')
                if u % 2 == 0 and j != 64:
                    qb = u // 2
                    mf.append(f'{MF} {q4("v", L + 4*qb)}, {q4("v", ONE)}, {q4("v", pb + qb*4)}, {"0" if j == 1 else q4("v", L + 4*qb)}')
        n = len(mf)
        gs.append(n)
        quad = ORD[0] == 'q' and do_qk and do_pv
        if ORD[0] == 'p' and do_qk and do_pv:
            for u in range(0, 8, 2):
                blk = mf[gs[u]:gs[u + 2]]
                qa, pa, one, qb_, pb_ = blk[0:4], blk[4:8], blk[8:9], blk[9:13], blk[13:17]
                qq = qa + qb_ if ORD == 'pair' else [x for t in zip(qa, qb_) for x in t]
                pp = [x for t in zip(pa, pb_) for x in t]
                pp[u:u] = one
                mf[gs[u]:gs[u + 2]] = qq + pp
        mix = ORD == 'mC' and do_qk and do_pv
        if mix:
            for h in range(2):
                g4 = [mf[gs[u]:gs[u + 1]] for u in range(4 * h, 4 * h + 4)]
                out = []
                for p in range(2):
                    out += [g[qb] for qb in (2 * p, 2 * p + 1) for g in g4]
                    pp = [x for t in zip(g4[2 * p][4:8], g4[2 * p + 1][4:8]) for x in t]
                    pp[4 * h + 2 * p:4 * h + 2 * p] = [g4[2 * p][8]]
                    out += pp
                mf[gs[4 * h]:gs[4 * h + 4]] = out
        if quad:
            for h in range(2):
                g4 = [mf[gs[u]:gs[u + 1]] for u in range(4 * h, 4 * h + 4)]
                qq = sum((g[:4] for g in g4), []) if ORD == 'qA' else [g[qb] for qb in range(4) for g in g4]
                pp = []
                for qb in range(4):
                    pp += [g[4 + qb] for g in g4]
                    if qb // 2 == h:
                        pp.append(g4[2 * (qb % 2)][8])
                mf[gs[4 * h]:gs[4 * h + 4]] = qq + pp
        es, cs, rs, ns, ds = [], [], [], [], []
        if do_sm:
            b = j % 2
            e = 0
            for kb in range(2):
                for qb in range(4):
                    for h in range(2):
                        s0 = sreg(b, qb, kb) + 2 * h
                        t0 = TMP + 2 * ((e // 2) % 4)
                        pair = []
                        for i in range(2):
                            tg = (e * (n - 2)) // 32
                            it = It(f'v_exp_f32 v{t0+i}, v{s0+i}', 2, lo=tg - 1, hi=tg + 1,
                                    after=[cs[e // 2 - 4]] if e >= 8 else None)
                            es.append(it)
                            pair.append(it)
                            e += 1
                        cs.append(It(f'v_cvt_pk_bf16_f32 v{P + b*16 + qb*4 + kb*2 + h}, v{t0}, v{t0+1}', 1,
                                     hi=tg + 6, after=pair))
        bar = None
        late_v = []
        for u in range(8):
            if u == 4 and j % 2 == 0 and j <= 62:
                rs.append(It(f'VWAIT K{(T+1) % 4},V{T % 4}', 1, lo=gs[4] - 1, hi=gs[4] + 1))
                bar = It('s_barrier', 1, lo=gs[4] - 1, hi=gs[4] + 1)
                rs.append(bar)
            rd = []
            if u < 4:
                if do_qk:
                    rd += kread(j + 1, u + 4)
                if do_pv:
                    rd += vread(j - 1, u + 4)
            else:
                if j + 2 <= 63:
                    rd += kread(j + 2, u - 4)
                if j <= 63:
                    rd += vread(j, u - 4)
            w = gs[u + 1] - gs[u]
            if mix:
                late_v += rd
                if u % 4 == 3:
                    g0 = gs[u - 3]
                    kr = [x for x in late_v if 'b128' in x]
                    vr = [x for x in late_v if 'b128' not in x]
                    seq = kr[:2] + vr[:2] + kr[2:] + vr[2:]
                    for i, x in enumerate(seq):
                        tg = g0 + (i * 32) // len(seq)
                        rs.append(It(x, 1, lo=tg, hi=tg + 3))
                    late_v = []
                    f = u - 3
                    ns.append(It(f'NEED a[{VF+4*f}:{VF+4*f+15}]', 1, lo=g0 + 6, hi=g0 + 7))
                    f = (u + 1) % 8
                    ns.append(It(f'NEED a[{KF+4*f}:{KF+4*f+15}]', 1, lo=gs[u + 1] - 2, hi=gs[u + 1] - 1))
                continue
            if quad:
                g0 = gs[u - u % 4]
                for x in rd:
                    if 'b128' in x:
                        rs.append(It(x, 1, lo=g0 + 3 * (u % 4), hi=g0 + 3 * (u % 4) + 4))
                    else:
                        late_v.append(x)
                if u % 4 == 3:
                    f = u - 3
                    rs.append(It(f'NEED a[{VF+4*f}:{VF+4*f+15}]', 1, lo=g0 + 14, hi=g0 + 15))
                    for i, x in enumerate(late_v):
                        rs.append(It(x, 1, lo=g0 + 15 + 2 * i, hi=g0 + 17 + 2 * i))
                    late_v = []
                    f = (u + 1) % 8
                    ns.append(It(f'NEED a[{KF+4*f}:{KF+4*f+15}]', 1, lo=gs[u + 1] - 2, hi=gs[u + 1] - 1))
                continue
            for i, x in enumerate(rd):
                rs.append(It(x, 1, lo=gs[u] - (2 if u else 0), hi=gs[u] + ((i + 1) * w) // len(rd) - 1, sep=True))
            if u % 2 == 1:
                f = (u + 1) % 8
                ns.append(It(f'NEED a[{KF+4*f}:{KF+4*f+7}], a[{VF+4*f}:{VF+4*f+7}]', 1, lo=gs[u + 1] - 2, hi=gs[u + 1] - 1))
        special = {58: 0, 60: 1, 61: 2, 62: 3}
        dm = []
        if j in special:
            dm = wodma(special[j])
        elif j < 63:
            if j % 2 == 0:
                dm = [f's_add_u32 m0, s38, {((T+3) % 4)*16384}', 's_add_u32 s41, s41, 16384']
                dm += [f'buffer_load_dwordx4 v{DK+i}, s[8:11], s41 offen offset:{1024*i} nt lds ;@K{(T+3) % 4}' for i in range(4)]
            else:
                dm = [f's_add_u32 m0, s38, {65536 + ((T+2) % 4)*16384}', f's_sub_u32 s42, s41, {16384 if j < 58 else 0}']
                dm += [f'buffer_load_dwordx4 v{DV + i % 2}, s[12:15], s42 offen offset:{1024*i} nt lds ;@V{(T+2) % 4}' for i in range(4)]
                if 2 <= j <= 57 and opt.get('pf_moe', True):
                    w = ((j - 2) % 8) // 2
                    if w < 2:
                        dm.append(f'buffer_load_dword v{PF}, v{PF+2}, s[{PFS[w]}:{PFS[w]+3}], s39 offen')
                    elif w == 2:
                        dm.append(f'buffer_load_dword v{PF}, v{PF+3}, s[{PFS[w]}:{PFS[w]+3}], s34 offen')
                        dm.append(f's_add_u32 s39, s39, {96*9216}')
                        dm.append(f's_add_u32 s34, s34, {96*128}')
                    else:
                        dm.append(f'buffer_load_dwordx2 {q2("v", PF)}, v255, s[56:59], s32 offen')
                        dm.append(f'buffer_load_dwordx2 {q2("v", PF)}, v255, s[56:59], s32 offen offset:512')
                        dm.append('s_add_u32 s32, s32, 768')
        if j % 2 == 0 and 2 <= j <= 56:
            w = (j % 8) // 2
            pf = []
            if w == 0 and opt.get('pf_code', True):
                pf = [f'buffer_load_dword v{PF}, v254, s[4:7], s52 offen']
            elif w == 1 and opt.get('pf_ws', 'no') == 'rd':
                pf = [f'buffer_load_dword v{PF}, v254, s[48:51], s36 offen', f's_add_u32 s36, s36, {8 << 20}']
            elif w == 2 and opt.get('pf_x', True):
                pf = [f'buffer_load_dwordx2 {q2("v", PF)}, v255, s[72:75], s37 offen']
            elif w == 3 and opt.get('pf_x', True):
                pf = [f'buffer_load_dwordx2 {q2("v", PF)}, v255, s[76:79], s37 offen', 's_add_u32 s37, s37, 384']
            if opt.get('pf_ws', 'no') == 'wr':
                pf.append(f'buffer_store_dwordx4 {q4("v", ONE)}, v{OST}, s[24:27], s53 offen sc1')
                if w % 2:
                    pf.append(f'buffer_store_dwordx4 {q4("v", ONE)}, v{OST}, s[24:27], s53 offen offset:1024 sc1')
                pf.append(f's_add_u32 s53, s53, {2048 if w % 2 else 1024}')
            for i, x in enumerate(pf):
                ds.append(It(x, 2 if x.startswith(('buffer', 'global')) else 1, lo=4 + 6 * i, hi=12 + 6 * i))
        ws_ = []
        if 58 <= j <= 62:
            if j % 2 == 0:
                items = {58: wdma('gu', 8) + wdma('d', 4), 60: wdma('d', 5) + wdma('d', 6), 62: wdma('d', 7) + wdma('d', 8)}[j]
                for i, x in enumerate(items):
                    tg = 2 + (i * 28) // len(items)
                    ds.append(It(x, 2 if x.startswith('buffer') else 1, lo=tg - 2, hi=tg + 3, sep=x.startswith('buffer')))
                items = wload('gu', {58: 0, 60: 3, 62: 6}[j])
            else:
                items = {59: wload('gu', 1) + wload('gu', 2), 61: wload('gu', 4) + wload('gu', 5)}[j]
            for i, x in enumerate(items):
                tg = 4 + (i * 58) // len(items)
                ws_.append(It(x, 2 if x.startswith('buffer') else 1, lo=tg - 3, hi=tg + 4))
        if dm:
            lo0 = gs[4] + 2 if j % 2 == 0 else 0
            nb = sum(x.startswith('buffer') for x in dm)
            ib = 0
            for x in dm:
                tg = lo0 + ((n - 1 - lo0) * (ib + 0.6)) // nb
                isb = x.startswith('buffer')
                ds.append(It(x, 2 if isb else 1, lo=(tg - 3 if isb else lo0), hi=min(n - 1, tg + 3), sep=isb,
                             after=[bar] if (bar and isb) else None))
                ib += isb
        return sched(mf, [ns, es, rs, cs, ds, ws_] + (extra or []), stats=stats)

    l0, vq = resolve_vm(step(0) + step(1), vq)
    l0, q = insert_lgkm(l0, q)
    emit(l0)
    loopctl = [It('s_sub_u32 s40, s40, 1', 1, lo=40, hi=66)]
    body = []
    for j in range(2, 10):
        body += step(j)
    res = []
    for rep in range(2):
        o, vq = resolve_vm(body, vq)
        o, q = insert_lgkm(o, q)
        res.append(o)
    assert len(res[0]) == len(res[1]), 'loop not in steady state'
    for i, (a, b) in enumerate(zip(*res)):
        if a != b:
            ma, mb = re.match(r's_waitcnt (\w+)\((\d+)\)', a), re.match(r's_waitcnt (\w+)\((\d+)\)', b)
            assert ma and mb and ma.group(1) == mb.group(1), (a, b)
            res[0][i] = f's_waitcnt {ma.group(1)}({min(int(ma.group(2)), int(mb.group(2)))})'
    k.stamp('l')
    k('.p2align 6')
    k('L_attn_loop:')
    emit(res[0])
    k('s_sub_u32 s40, s40, 1')
    k('s_cmp_lg_u32 s40, 0')
    k('s_cbranch_scc1 L_attn_loop')
    k('L_attn_tail:')
    k.stamp('l')
    tail = []
    for j in range(58, 64):
        tail += step(j)
    tail.append('s_nop 1')
    OF = S
    ACC = P
    PK = NM
    RI = TMP
    norm = []
    for qb in range(4):
        norm.append(It(f'v_rcp_f32 v{RI+qb}, v{L+4*qb}', 2, lo=12))
    norm.append(It(f'v_max3_f32 v{TMP+4}, v{L}, v{L+4}, v{L+8}', 1))
    norm.append(It(f'v_max_f32 v{TMP+4}, v{TMP+4}, v{L+12}', 1))
    tv = [1, 3, 4, 5, 6, 7, 252, 253]
    late = []
    for db in range(8):
        blk = []
        for half in range(2):
            for qb in (2 * half, 2 * half + 1):
                for i in range(4):
                    blk.append(f'v_accvgpr_read_b32 v{tv[(qb % 2)*4 + i]}, a{O + qb*32 + db*4 + i}')
            for qb in (2 * half, 2 * half + 1):
                for i in range(4):
                    t = tv[(qb % 2)*4 + i]
                    blk.append(f'v_mul_f32 v{t}, v{t}, v{RI+qb}')
            for qb in (2 * half, 2 * half + 1):
                for i in range(2):
                    blk.append(f'v_cvt_pk_bf16_f32 v{OF + qb*16 + db*2 + i}, v{tv[(qb % 2)*4 + 2*i]}, v{tv[(qb % 2)*4 + 2*i + 1]}')
        if db < 2:
            norm += [It(x, 1, lo=4 + 4 * (db + 1) + 7) for x in blk]
        else:
            late += blk
    tail += step(64, extra=[norm])
    tail += late
    A1, A2 = WA + 4, L + 8
    LA = opt.get('ola', 7)

    def ord_(f):
        nbl, ks = (f // 8) % 4, f % 8
        r = KF + 4 * (f % 16)
        a = (A1 if ks < 4 else A2) + nbl
        return [f'ds_read_b64_tr_b16 {q2("a", r)}, v{a} offset:{(ks % 4)*4096}',
                f'ds_read_b64_tr_b16 {q2("a", r+2)}, v{a} offset:{(ks % 4)*4096 + 2048}']

    def omf(f):
        nb, ks = f // 8, f % 8
        out = []
        for rb in range(2):
            acc = ACC + ((nb // 2) % 2) * 16 + (nb % 2) * 8 + rb * 4
            b = OF + ((ks // 4) * 2 + rb) * 16 + (ks % 4) * 4
            c = '0' if ks == 0 else q4('v', acc)
            out.append(f'{MF} {q4("v", acc)}, {q4("a", KF + 4*(f % 16))}, {q4("v", b)}, {c}')
        return out

    def flush_pair(par, so):
        out = []
        for rb in range(2):
            for h in range(2):
                a = ACC + par * 16 + h * 8 + rb * 4
                for i in range(2):
                    out.append(f'v_cvt_pk_bf16_f32 v{PK + par*8 + rb*4 + h*2 + i}, v{a+2*i}, v{a+2*i+1}')
            out.append(f'buffer_store_dwordx4 {q4("v", PK + par*8 + rb*4)}, v{OST+rb}, s[24:27], {so} offen sc1')
        return out
    ZR = L
    tail += [f'v_mov_b32 v{ZR+i}, 0' for i in range(4)]
    for nbl in range(4):
        tail += [f'v_mov_b32 v{A1+nbl}, v{WA+nbl}', f'v_add_u32 v{A2+nbl}, 0x4000, v{WA+nbl}']
    nanmf = [f'{MF} {q4("v", L+4)}, {q4("v", ZR)}, {q4("v", OF + 4*i)}, {"0" if i == 0 else q4("v", L+4)}' for i in range(16)]
    pk = sum(USLOT[(2 * (t + 2) + h) % 8] << (8 * t + 4 * h) for t in range(4) for h in range(2))
    st1 = [It('VWAIT U0,U1', 1), It('s_barrier', 1)] + [It(x, 1, lo=2 + i, sep=True) for i, x in enumerate(sum((ord_(f) for f in range(LA)), []))]
    st2 = [It(x, 1, lo=1) for x in wload('gu', 7) + sum((wload('d', b) for b in range(4)), [])]
    st2 += [It(x, 1) for x in (f's_mov_b32 s50, {hx(pk)}', f's_mov_b32 s51, {hx(pk)}', 's_movk_i32 s41, 0x100',
                               's_mov_b32 s43, 0x100000', 's_mov_b32 s46, 0', 's_mov_b32 s48, s38',
                               f's_mov_b32 s52, {USLOT[2]*16384}', f's_mov_b32 s53, {USLOT[3]*16384}')]
    tail += sched(nanmf, [st1, st2], stats=stats)
    tail += [f's_mov_b32 s3, {hx(f2u(2.0**100))}', f'v_cmp_ngt_f32 vcc, s3, v{TMP+4}', 's_lshl_b32 s3, s33, 2',
             's_add_u32 s3, s3, 0x20000', 'v_mov_b32 v3, s3', 's_add_u32 s3, s36, 0x8000', f'v_add_u32 v252, s3, v{OST}',
             'v_add_u32 v253, 0x10000, v252', 's_nop 0', f'v_cmp_u_f32 s[28:29], v{L+4}, v{L+4}', 's_nop 0',
             's_or_b64 s[28:29], s[28:29], vcc', 's_cselect_b32 s3, 1, 0', 'v_mov_b32 v4, s3', 'ds_write_b32 v3, v4',
             'v_mov_b32 v3, 0x20000', 'RETAG U2,U3 A', f'NEED a[{KF}:{KF+15}]']
    o, vq = resolve_vm(tail, vq)
    o, q = insert_lgkm(o, q)
    emit(o)
    k.stamp()
    mf = []
    for f in range(0, 32, 2):
        x, y = omf(f), omf(f + 1)
        mf += [x[0], y[0], x[1], y[1]]
    rs, ns = [], []
    for f in range(32):
        if f + LA == 32:
            rs += [It('VWAIT B', 1, lo=2*f - 2, hi=2*f - 1), It('s_barrier', 1, lo=2*f - 2, hi=2*f)]
        for i, x in enumerate(ord_(f + LA)):
            rs.append(It(x, 1, lo=2*f + i - 1, hi=2*f + i, sep=not (f + LA == 32 and i == 0)))
        if f % 4 == 3:
            r = KF + 4 * ((f + 1) % 16)
            ns.append(It(f'NEED a[{r}:{r+15}]', 1, lo=2*f + 1, hi=2*f + 1))
    dm = []
    for h in range(2):
        dm += [f's_bfe_u32 s{28+h}, s50, {hx((3 << 16) | (4*h))}', f's_lshl_b32 s{28+h}, s{28+h}, 14', f's_add_u32 m0, s{28+h}, s48']
        so = 's41' if h == 0 else 's42'
        if h:
            dm.append(f's_add_u32 s42, s41, {128*1152}')
        dm += [f'buffer_load_dwordx4 v{DW+i}, s[56:59], {so} offen offset:{1024*i} lds ;@A' for i in range(4)]
    vp = [3 + (16 * i) // 3 for i in range(12)]
    dpos, spos = [p for i, p in enumerate(vp) if i % 3 != 2], vp[2::3]
    ds = []
    for x in dm:
        if x.startswith('buffer'):
            p = dpos.pop(0)
            ds.append(It(x, 1, lo=p, hi=p + 1, sep=True))
        else:
            ds.append(It(x, 1, lo=0, hi=dpos[0] - 1))
    fl = []
    for par, so, g0 in ((1, 's43', 5), (0, 's46', 37)):
        for x in flush_pair(par, so):
            if x.startswith('buffer'):
                p = spos.pop(0)
                fl.append(It(x, 1, lo=p, hi=p + 1))
            else:
                fl.append(It(x, 1, lo=g0, hi=spos[0] - 1))
        if par:
            fl.append(It('s_add_u32 s43, s46, 1024', 1, hi=36))
    fl.append(It('s_add_u32 s46, s46, 2048', 1, hi=63))
    up = []
    for nbl in range(4):
        for h in range(2):
            lastf = 8 * nbl + 4 * h + 3 - LA
            up.append(It(f'v_add_u32 v{(A1, A2)[h] + nbl}, s{52+h}, v{WA+nbl}', 1, lo=2 * lastf + 2, hi=min(60, 34 + 8 * nbl + 4 * h)))
    up.append(It('s_mov_b64 s[52:53], s[28:29]', 1, hi=63))
    end = ['s_lshr_b64 s[50:51], s[50:51], 8', 's_mov_b32 s51, s50', 's_add_u32 s41, s41, 128', 's_cmp_ge_u32 s41, 1152',
           's_cselect_b32 s48, 0x28000, s48', 's_cselect_b32 s41, 0x1000000, s41']
    en = [It(x, 1, lo=30, hi=48 + 2 * i, after=[ds[-4]]) for i, x in enumerate(end)]
    body = sched(mf, [ns, rs, ds, fl, up, en], stats=stats)
    i0, i1 = body.index(end[3]), body.index(end[5])
    assert not any(x.startswith(('s_add', 's_lsh', 's_bfe', 's_sub')) for x in body[i0:i1]), 'scc clobbered'
    body, vq, q = steady(['RETAG A B'] + body, vq, q)
    k('.p2align 6')
    k('L_oproj_loop:')
    emit(body)
    k(f's_cmp_lt_u32 s46, {9*2048}')
    k('s_cbranch_scc1 L_oproj_loop')
    k.stamp('o')
    k('s_waitcnt lgkmcnt(4)')
    k('ds_read_b128 v[4:7], v3')
    k('s_nop 2')
    emit(flush_pair(1, 's43'))
    k('s_waitcnt lgkmcnt(0)')
    k('v_or3_b32 v4, v4, v5, v6')
    k('v_or_b32 v4, v4, v7')
    k('s_nop 0')
    k('v_readfirstlane_b32 s47, v4')
    fuse = opt.get('fuse', True)
    k('s_andn2_b32 s47, s47, s45')
    if fuse:
        k('s_cbranch_scc1 L_attn_retry')
        emit_tail(k, ID, opt)
    else:
        k('s_cbranch_scc0 L_attn_end')
    k('L_attn_retry:')
    k('s_mov_b32 s45, 1')
    k('s_mov_b32 s46, 0')
    k('s_mov_b32 s41, 0')
    k('L_attn_maxloop:')
    k('s_barrier')
    k('s_mov_b32 m0, s38')
    k('s_nop 0')
    for i in range(4):
        k(f'buffer_load_dwordx4 v{DK+i}, s[8:11], s41 offen offset:{1024*i} lds')
    k('s_waitcnt vmcnt(0)')
    k('s_barrier')
    for ht in range(2):
        lines = []
        for u in range(8):
            lines += kread(ht, u)
        for u in range(8):
            lines += [qk1(0, u, qb, True) for qb in range(4)]
        lines.append('s_nop 7')
        for qb in range(4):
            lines += localmax(0, qb)
        for qb in range(4):
            lines.append(f'v_mov_b32 v{MX+qb}, v{TMP+qb}')
        lines, _ = insert_lgkm(lines)
        emit(lines)
    k('s_add_u32 s41, s41, 16384')
    k(f's_cmp_lt_u32 s41, {hx(524288)}')
    k('s_cbranch_scc1 L_attn_maxloop')
    k('s_barrier')
    lines, _ = resolve_vm(kdma(0) + kdma(1) + kdma(2) + vdma(0) + vdma(1) + ['VWAIT K0', 's_barrier'])
    emit(lines)
    k('s_branch L_attn_entry')
    k('L_attn_end:')
    if DIAG['on']:
        k('v_accvgpr_read_b32 v0, a254')
    k.stamp_end(2)
    k('L_attn_exit:')
    k('s_endpgm')
    k.stats = stats
    return k
```

```python
from lib import *
from small import *


def code_pf(k, tag, target, nbytes_label_end='L_code_end', r=60):
    k(f's_getpc_b64 s[{r}:{r+1}]')
    k(f'L_pc_{tag}:')
    k(f's_add_u32 s{r}, s{r}, {target}-L_pc_{tag}')
    k(f's_addc_u32 s{r+1}, s{r+1}, 0')
    k(f's_mov_b32 s{r+2}, {nbytes_label_end}-{target}')
    k(f's_mov_b32 s{r+3}, 0x20000')


def gen_mod2():
    k = K('mod_kernel', 184, 576, 2304, nvgpr=64)
    k('s_cmp_ge_u32 s2, 54')
    k('s_cbranch_scc1 L_mod_pf')
    k.stamp()
    k(f's_load_dwordx4 s[4:7], s[0:1], {ARG["c"]}')
    k(f's_load_dwordx2 s[20:21], s[0:1], {ARG["ws"]}')
    code_pf(k, 'mod', 'L_mod_body')
    k('v_lshlrev_b32 v5, 7, v0')
    k('s_mov_b32 s62, 4096')
    k('buffer_load_dword v6, v5, s[60:63], 0 offen')
    k('L_mod_body:')
    k('v_and_b32 v1, 7, v0')
    k('v_lshrrev_b32 v2, 3, v0')
    k(f'v_mul_u32_u24 v3, {8*6912}, v2')
    k('v_lshl_add_u32 v3, v1, 4, v3')
    k('s_lshl_b32 s3, s2, 7')
    k('v_lshlrev_b32 v4, 4, v2')
    k('s_waitcnt lgkmcnt(0)')
    k.stamp()
    k.srd(12, 's6', 's7', 576 * 6912)
    k.srd(8, 's4', 's5', 1152)
    k('buffer_load_dwordx4 v[8:11], v4, s[8:11], 0 offen')
    for i in range(8):
        k(f'buffer_load_dwordx4 v[{32+4*i}:{35+4*i}], v3, s[12:15], s3 offen')
        k('s_add_u32 s3, s3, 6912')
    k.srd(16, 's20', 's21', 13824)
    k('s_waitcnt vmcnt(8)')
    k.stamp()
    C, T = 12, 20
    for i in range(4):
        k(f'v_lshlrev_b32 v{C+2*i}, 16, v{8+i}')
        k(f'v_and_b32 v{C+2*i+1}, 0xffff0000, v{8+i}')
    for i in range(8):
        k(f'v_mul_f32 v{T+i}, {hx(f2u(-LOG2E))}, v{C+i}')
    for i in range(8):
        k(f'v_exp_f32 v{T+i}, v{T+i}')
    for i in range(8):
        k(f'v_add_f32 v{T+i}, 1.0, v{T+i}')
    for i in range(8):
        k(f'v_rcp_f32 v{T+i}, v{T+i}')
    for i in range(8):
        k(f'v_mul_f32 v{C+i}, v{C+i}, v{T+i}')
    rnd8(k, C, T)
    A = 20
    for i in range(8):
        k(f's_waitcnt vmcnt({7-i})')
        for j in range(4):
            w = 32 + 4 * i + j
            k(f'v_lshlrev_b32 v{28+j}, 16, v{w}')
            k(f'v_and_b32 v{w}, 0xffff0000, v{w}')
        for j in range(4):
            w = 32 + 4 * i + j
            op = 'v_mul_f32' if i == 0 else 'v_fmac_f32'
            k(f'{op} v{A+2*j}, v{28+j}, v{C+i}')
            k(f'{op} v{A+2*j+1}, v{w}, v{C+i}')
    k.stamp()
    k('s_nop 1')
    for j in range(8):
        k(f'v_add_f32_dpp v{A+j}, v{A+j}, v{A+j} row_ror:8 row_mask:0xf bank_mask:0xf')
    k('s_nop 0')
    for j in range(0, 8, 2):
        k(f'v_permlane16_swap_b32 v{A+j}, v{A+j+1}')
    for j in range(0, 8, 2):
        k(f'v_add_f32 v{A+j}, v{A+j}, v{A+j+1}')
    k('v_lshrrev_b32 v5, 6, v0')
    k('v_bfe_u32 v7, v0, 4, 2')
    k(f'v_permlane32_swap_b32 v{A}, v{A+2}')
    k(f'v_permlane32_swap_b32 v{A+4}, v{A+6}')
    k('v_lshlrev_b32 v5, 6, v5')
    k('v_lshl_add_u32 v5, v1, 3, v5')
    k('v_add_lshl_u32 v5, v5, v7, 2')
    k(f'v_add_f32 v{A}, v{A}, v{A+2}')
    k(f'v_add_f32 v{A+4}, v{A+4}, v{A+6}')
    k(f'ds_write_b32 v5, v{A}')
    k(f'ds_write_b32 v5, v{A+4} offset:16')
    k('s_waitcnt lgkmcnt(0)')
    k('s_barrier')
    k.stamp()
    k('v_cmp_gt_u32 vcc, 64, v0')
    k('s_and_saveexec_b64 s[30:31], vcc')
    k('s_cbranch_execz L_mod_end')
    k('v_lshlrev_b32 v5, 2, v0')
    for w in range(9):
        k(f'ds_read_b32 v{20+w}, v5 offset:{256*w}')
    k('s_sub_u32 s3, s2, 9')
    k('s_cmp_lt_u32 s3, 9')
    k('s_cselect_b32 s22, 1.0, 0')
    k('s_sub_u32 s3, s2, 36')
    k('s_cmp_lt_u32 s3, 9')
    k('s_cselect_b32 s22, 1.0, s22')
    k('s_lshl_b32 s3, s2, 8')
    k('s_waitcnt lgkmcnt(0)')
    for a, b in ((0, 1), (2, 3), (4, 5), (6, 7), (0, 2), (4, 6), (0, 8), (0, 4)):
        k(f'v_add_f32 v{20+a}, v{20+a}, v{20+b}')
    rnd_one(k, 20)
    k('v_add_f32 v20, s22, v20')
    rnd_one(k, 20)
    k('buffer_store_dword v20, v5, s[16:19], s3 offen sc1')
    k('L_mod_end:')
    k.stamp_end(0)
    k('s_endpgm')
    k('L_mod_pf:')
    k('s_sub_u32 s3, s2, 56')
    k('s_cmp_ge_u32 s3, 128')
    k('s_cbranch_scc1 L_mod_exit')
    k(f's_load_dwordx2 s[4:5], s[0:1], {ARG["x"]}')
    k('s_mul_i32 s3, s3, 18432')
    k('v_lshlrev_b32 v1, 7, v0')
    k('s_waitcnt lgkmcnt(0)')
    k.srd_off(8, 's4', 's5', 's3', 18432)
    k('buffer_load_dword v2, v1, s[8:11], 0 offen')
    k('L_mod_exit:')
    k('s_endpgm')
    return k


def red_g(k, regs, t, op='v_add_f32'):
    for sw in ('v_permlane16_swap_b32', 'v_permlane32_swap_b32'):
        for i, r in enumerate(regs):
            k(f'v_mov_b32 v{t+i}, v{r}')
        k('s_nop 1')
        for i, r in enumerate(regs):
            k(f'{sw} v{r}, v{t+i}')
        for i, r in enumerate(regs):
            k(f'{op} v{r}, v{r}, v{t+i}')


def chan_finish(k, ST, s_, m2, T):
    k(f'v_add_f32 v{s_}, v{ST}, v{ST+2}')
    k(f'v_add_f32 v{m2}, v{ST+1}, v{ST+3}')
    k(f'v_add_f32 v{T}, v{ST+4}, v{ST+6}')
    k(f'v_add_f32 v{T+1}, v{ST+5}, v{ST+7}')
    for i in range(4, 9):
        a = s_ if i % 2 == 0 else T
        k(f'v_add_f32 v{a}, v{a}, v{ST+2*i}')
        a = m2 if i % 2 == 0 else T + 1
        k(f'v_add_f32 v{a}, v{a}, v{ST+2*i+1}')
    k(f'v_add_f32 v{s_}, v{s_}, v{T}')
    k(f'v_add_f32 v{m2}, v{m2}, v{T+1}')
    k(f'v_mul_f32 v{s_}, {hx(f2u(1.0/9))}, v{s_}')
    for i in range(9):
        k(f'v_sub_f32 v{ST+2*i}, v{ST+2*i}, v{s_}')
    k(f'v_mul_f32 v{T}, v{ST}, v{ST}')
    k(f'v_mul_f32 v{T+1}, v{ST+2}, v{ST+2}')
    for i in range(2, 9):
        k(f'v_fmac_f32 v{T + i % 2}, v{ST+2*i}, v{ST+2*i}')
    k(f'v_add_f32 v{T}, v{T}, v{T+1}')
    k(f'v_fmac_f32 v{m2}, {hx(f2u(64.0))}, v{T}')
    k(f'v_mul_f32 v{m2}, {hx(f2u(1.0/576))}, v{m2}')
    rnd_pair(k, s_, m2, T)
    k(f'v_add_f32 v{m2}, {hx(f2u(1e-5))}, v{m2}')
    rnd_one(k, m2)
    k(f'v_sqrt_f32 v{m2}, v{m2}')


def gen_ln1b():
    k = K('ln1_kernel', 192, 576, 1536, nvgpr=96)
    k('s_cmp_ge_u32 s2, 128')
    k('s_cbranch_scc1 L_ln1_pf')
    k.stamp()
    k(f's_load_dwordx2 s[4:5], s[0:1], {ARG["x"]}')
    k(f's_load_dwordx2 s[6:7], s[0:1], {ARG["ws"]}')
    k('v_and_b32 v1, 15, v0')
    k('v_bfe_u32 v2, v0, 4, 2')
    k('v_lshrrev_b32 v3, 6, v0')
    k('v_lshlrev_b32 v4, 7, v3')
    k('v_lshl_add_u32 v4, v2, 4, v4')
    k('v_mul_u32_u24 v5, 1152, v1')
    k('v_add_u32 v5, v5, v4')
    k('v_lshlrev_b32 v4, 1, v4')
    k('s_mul_i32 s3, s2, 18432')
    k('s_waitcnt lgkmcnt(0)')
    k.stamp()
    k.srd(8, 's4', 's5', 2359296)
    k.srd(12, 's6', 's7', 13824)
    XL, SA, C1, X, D, T, ST = 12, 20, 36, 52, 68, 84, 68
    k(f'buffer_load_dwordx4 v[{XL}:{XL+3}], v5, s[8:11], s3 offen')
    k(f'buffer_load_dwordx4 v[{XL+4}:{XL+7}], v5, s[8:11], s3 offen offset:64')
    for h in range(2):
        for i in range(2):
            k(f'buffer_load_dwordx4 v[{C1+8*h+4*i}:{C1+8*h+4*i+3}], v4, s[12:15], 0 offen offset:{2304 + 128*h + 16*i}')
    for h in range(2):
        for i in range(2):
            k(f'buffer_load_dwordx4 v[{SA+8*h+4*i}:{SA+8*h+4*i+3}], v4, s[12:15], 0 offen offset:{128*h + 16*i}')
    k.srd_off(16, 's6', 's7', WS_H, 2359296)
    k('v_and_b32 v6, 63, v0')
    k('v_lshlrev_b32 v6, 4, v6')
    k('v_lshl_add_u32 v6, v3, 11, v6')
    k('v_mul_u32_u24 v9, 96, v1')
    k('v_lshl_add_u32 v8, v3, 3, v9')
    k('s_waitcnt vmcnt(8)')
    k.stamp()
    for i in range(8):
        k(f'v_lshlrev_b32 v{X+2*i}, 16, v{XL+i}')
        k(f'v_and_b32 v{X+2*i+1}, 0xffff0000, v{XL+i}')
    s_, m2 = 10, 11
    for i in range(4):
        k(f'v_add_f32 v{T+i}, v{X+i}, v{X+4+i}')
    for j in (8, 12):
        for i in range(4):
            k(f'v_add_f32 v{T+i}, v{T+i}, v{X+j+i}')
    k(f'v_add_f32 v{T}, v{T}, v{T+1}')
    k(f'v_add_f32 v{T+2}, v{T+2}, v{T+3}')
    k(f'v_add_f32 v{s_}, v{T}, v{T+2}')
    red_g(k, [s_], T)
    k(f'v_mul_f32 v{s_}, {hx(f2u(1.0/64))}, v{s_}')
    for i in range(16):
        k(f'v_sub_f32 v{D+i}, v{X+i}, v{s_}')
    for i in range(4):
        k(f'v_mul_f32 v{T+i}, v{D+i}, v{D+i}')
    for j in (4, 8, 12):
        for i in range(4):
            k(f'v_fmac_f32 v{T+i}, v{D+j+i}, v{D+j+i}')
    k(f'v_add_f32 v{T}, v{T}, v{T+1}')
    k(f'v_add_f32 v{T+2}, v{T+2}, v{T+3}')
    k(f'v_add_f32 v{m2}, v{T}, v{T+2}')
    red_g(k, [m2], T)
    k(f'ds_write_b64 v8, v[{s_}:{m2}]')
    k('s_waitcnt lgkmcnt(0)')
    k('s_barrier')
    k.stamp()
    T = 88
    for i in range(4):
        k(f'ds_read_b128 v[{ST+4*i}:{ST+4*i+3}], v9 offset:{16*i}')
    k(f'ds_read_b64 v[{ST+16}:{ST+17}], v9 offset:64')
    k('s_waitcnt lgkmcnt(0)')
    chan_finish(k, ST, s_, m2, T)
    for i in range(16):
        k(f'v_sub_f32 v{X+i}, v{X+i}, v{s_}')
    rnd_one(k, m2)
    k(f'v_rcp_f32 v{m2}, v{m2}')
    rnd8(k, X, T)
    rnd8(k, X + 8, T + 4)
    for i in range(16):
        k(f'v_mul_f32 v{X+i}, v{X+i}, v{m2}')
    rnd8(k, X, T)
    rnd8(k, X + 8, T + 4)
    k.stamp()
    k('s_waitcnt vmcnt(4)')
    for i in range(16):
        k(f'v_mul_f32 v{X+i}, v{X+i}, v{C1+i}')
    rnd8(k, X, T)
    rnd8(k, X + 8, T + 4)
    k('s_waitcnt vmcnt(0)')
    for h in range(2):
        for i in range(8):
            k(f'v_add_f32 v{X+8*h+i}, v{X+8*h+i}, v{SA+8*h+i}')
        for i in range(4):
            k(f'v_cvt_pk_bf16_f32 v{XL+4*h+i}, v{X+8*h+2*i}, v{X+8*h+2*i+1}')
        k(f'buffer_store_dwordx4 v[{XL+4*h}:{XL+4*h+3}], v6, s[16:19], s3 offen offset:{1024*h} sc1')
    k.stamp()
    k.stamp_end(1)
    k('s_endpgm')
    k('L_ln1_pf:')
    k('s_cmp_ge_u32 s2, 192')
    k('s_cbranch_scc1 L_ln1_exit')
    k(f's_load_dwordx2 s[4:5], s[0:1], {ARG["wq"]}')
    k('s_bfe_u32 s33, s2, 0x30003')
    k('v_cmp_gt_u32 vcc, 192, v0')
    k('s_and_saveexec_b64 s[30:31], vcc')
    k('s_cbranch_execz L_ln1_pf2')
    k('v_lshrrev_b32 v3, 3, v0')
    k('v_lshlrev_b32 v3, 13, v3')
    k('v_and_b32 v4, 7, v0')
    k('v_lshl_add_u32 v3, v4, 7, v3')
    k('s_and_b32 s3, s2, 7')
    k('s_lshl_b32 s3, s3, 10')
    k(f's_mul_i32 s34, s33, {24*8192}')
    k('s_add_u32 s3, s3, s34')
    k('s_waitcnt lgkmcnt(0)')
    k.srd(8, 's4', 's5', 576 * 8192)
    k('buffer_load_dword v5, v3, s[8:11], s3 offen')
    k('s_endpgm')
    k('L_ln1_pf2:')
    k('s_mov_b64 exec, -1')
    code_pf(k, 'ln1', 'attn_kernel')
    k('v_subrev_u32 v1, 192, v0')
    k('v_lshlrev_b32 v1, 7, v1')
    k('s_lshl_b32 s3, s33, 12')
    k('s_add_u32 s62, s3, 4096')
    k('buffer_load_dword v2, v1, s[60:63], s3 offen')
    k('L_ln1_exit:')
    k('s_endpgm')
    return k


def gen_k1(opt=None):
    NPF = (opt or {}).get('npf', 2)
    k = K('prep_kernel', 240 + 8 * NPF, 576, 1536, nvgpr=72)
    k('s_cmp_ge_u32 s2, 112')
    k('s_cbranch_scc1 L_k1_x')
    k.stamp()
    k(f's_load_dwordx4 s[4:7], s[0:1], {ARG["c"]}')
    k(f's_load_dwordx2 s[20:21], s[0:1], {ARG["ws"]}')
    k('s_and_b32 s32, s2, 0x70')
    k('s_and_b32 s3, s2, 7')
    k('s_lshl_b32 s3, s3, 1')
    k('s_add_u32 s32, s32, s3')
    k('s_bfe_u32 s3, s2, 0x10003')
    k('s_add_u32 s32, s32, s3')
    k('s_cmp_ge_u32 s32, 108')
    k('s_cbranch_scc1 L_k1_exit')
    k('v_and_b32 v1, 3, v0')
    k('v_lshrrev_b32 v2, 2, v0')
    k(f'v_mul_u32_u24 v3, {4*6912}, v2')
    k('v_lshl_add_u32 v3, v1, 4, v3')
    k('s_lshl_b32 s3, s32, 6')
    k('v_lshlrev_b32 v4, 3, v2')
    k('s_waitcnt lgkmcnt(0)')
    k.srd(12, 's6', 's7', 576 * 6912)
    k.srd(8, 's4', 's5', 1152)
    k('buffer_load_dwordx2 v[8:9], v4, s[8:11], 0 offen')
    for i in range(4):
        k(f'buffer_load_dwordx4 v[{32+4*i}:{35+4*i}], v3, s[12:15], s3 offen nt')
        k('s_add_u32 s3, s3, 6912')
    k.srd(16, 's20', 's21', 13824)
    k('v_lshrrev_b32 v5, 6, v0')
    k('v_bfe_u32 v7, v0, 4, 2')
    k('v_lshlrev_b32 v5, 5, v5')
    k('v_lshl_add_u32 v5, v1, 3, v5')
    k('v_add_lshl_u32 v5, v5, v7, 2')
    k('s_waitcnt vmcnt(4)')
    k.stamp()
    C, T = 12, 20
    for i in range(2):
        k(f'v_lshlrev_b32 v{C+2*i}, 16, v{8+i}')
        k(f'v_and_b32 v{C+2*i+1}, 0xffff0000, v{8+i}')
    for i in range(4):
        k(f'v_mul_f32 v{T+i}, {hx(f2u(-LOG2E))}, v{C+i}')
    for i in range(4):
        k(f'v_exp_f32 v{T+i}, v{T+i}')
    for i in range(4):
        k(f'v_add_f32 v{T+i}, 1.0, v{T+i}')
    for i in range(4):
        k(f'v_rcp_f32 v{T+i}, v{T+i}')
    for i in range(4):
        k(f'v_mul_f32 v{C+i}, v{C+i}, v{T+i}')
    rnd_pair(k, C, C + 1, T)
    rnd_pair(k, C + 2, C + 3, T + 1)
    A = 20
    for i in range(4):
        k(f's_waitcnt vmcnt({3-i})')
        for j in range(4):
            w = 32 + 4 * i + j
            k(f'v_lshlrev_b32 v{28+j}, 16, v{w}')
            k(f'v_and_b32 v{w}, 0xffff0000, v{w}')
        for j in range(4):
            w = 32 + 4 * i + j
            op = 'v_mul_f32' if i == 0 else 'v_fmac_f32'
            k(f'{op} v{A+2*j}, v{28+j}, v{C+i}')
            k(f'{op} v{A+2*j+1}, v{w}, v{C+i}')
    k.stamp()
    k('s_nop 1')
    for sh in (4, 8):
        for j in range(8):
            k(f'v_add_f32_dpp v{A+j}, v{A+j}, v{A+j} row_ror:{sh} row_mask:0xf bank_mask:0xf')
    k('s_nop 0')
    for j in range(0, 8, 2):
        k(f'v_permlane16_swap_b32 v{A+j}, v{A+j+1}')
    for j in range(0, 8, 2):
        k(f'v_add_f32 v{A+j}, v{A+j}, v{A+j+1}')
    k('s_nop 1')
    k(f'v_permlane32_swap_b32 v{A}, v{A+2}')
    k(f'v_permlane32_swap_b32 v{A+4}, v{A+6}')
    k(f'v_add_f32 v{A}, v{A}, v{A+2}')
    k(f'v_add_f32 v{A+4}, v{A+4}, v{A+6}')
    k(f'ds_write_b32 v5, v{A}')
    k(f'ds_write_b32 v5, v{A+4} offset:16')
    k('s_waitcnt lgkmcnt(0)')
    k('s_barrier')
    k('v_cmp_gt_u32 vcc, 32, v0')
    k('s_and_saveexec_b64 s[30:31], vcc')
    k('s_cbranch_execz L_k1_modend')
    k('v_lshlrev_b32 v5, 2, v0')
    for w in range(9):
        k(f'ds_read_b32 v{20+w}, v5 offset:{128*w}')
    k('s_sub_u32 s3, s32, 18')
    k('s_cmp_lt_u32 s3, 18')
    k('s_cselect_b32 s22, 1.0, 0')
    k('s_sub_u32 s3, s32, 72')
    k('s_cmp_lt_u32 s3, 18')
    k('s_cselect_b32 s22, 1.0, s22')
    k('s_lshl_b32 s3, s32, 7')
    k('s_waitcnt lgkmcnt(0)')
    for a, b in ((0, 1), (2, 3), (4, 5), (6, 7), (0, 2), (4, 6), (0, 8), (0, 4)):
        k(f'v_add_f32 v{20+a}, v{20+a}, v{20+b}')
    rnd_one(k, 20)
    k('v_add_f32 v20, s22, v20')
    rnd_one(k, 20)
    k('s_sub_u32 s23, s32, 18')
    k('s_cmp_lt_u32 s23, 18')
    k('s_cbranch_scc1 L_k1_half')
    k('buffer_store_dword v20, v5, s[16:19], s3 offen sc1')
    k('s_branch L_k1_modend')
    k('L_k1_half:')
    k('s_lshl_b32 s3, s23, 6')
    k('v_lshlrev_b32 v5, 1, v0')
    k('buffer_store_short_d16_hi v20, v5, s[16:19], s3 offen offset:2304 sc1')
    k('L_k1_modend:')
    k.stamp_end(0)
    k('s_endpgm')
    k('L_k1_x:')
    k.nstamp = 0
    k('s_cmp_ge_u32 s2, 240')
    k('s_cbranch_scc1 L_k1_pf')
    k.stamp()
    k(f's_load_dwordx2 s[4:5], s[0:1], {ARG["x"]}')
    k(f's_load_dwordx2 s[6:7], s[0:1], {ARG["ws"]}')
    k('v_and_b32 v1, 15, v0')
    k('v_bfe_u32 v2, v0, 4, 2')
    k('v_lshrrev_b32 v3, 6, v0')
    k('v_lshlrev_b32 v4, 7, v3')
    k('v_lshl_add_u32 v4, v2, 4, v4')
    k('v_mul_u32_u24 v5, 1152, v1')
    k('v_add_u32 v5, v5, v4')
    k('s_sub_u32 s3, s2, 112')
    k('s_mul_i32 s3, s3, 18432')
    k('s_waitcnt lgkmcnt(0)')
    k.srd(8, 's4', 's5', 2359296)
    XL, X, D, T, ST = 12, 20, 36, 56, 36
    k(f'buffer_load_dwordx4 v[{XL}:{XL+3}], v5, s[8:11], s3 offen nt')
    k(f'buffer_load_dwordx4 v[{XL+4}:{XL+7}], v5, s[8:11], s3 offen offset:64 nt')
    k.srd_off(16, 's6', 's7', WS_H, 2359296)
    k('v_and_b32 v6, 63, v0')
    k('v_lshlrev_b32 v6, 4, v6')
    k('v_lshl_add_u32 v6, v3, 11, v6')
    k('v_mul_u32_u24 v9, 96, v1')
    k('v_lshl_add_u32 v8, v3, 3, v9')
    k('s_waitcnt vmcnt(0)')
    k.stamp()
    for i in range(8):
        k(f'v_lshlrev_b32 v{X+2*i}, 16, v{XL+i}')
        k(f'v_and_b32 v{X+2*i+1}, 0xffff0000, v{XL+i}')
    s_, m2 = 10, 11
    for i in range(4):
        k(f'v_add_f32 v{T+i}, v{X+i}, v{X+4+i}')
    for j in (8, 12):
        for i in range(4):
            k(f'v_add_f32 v{T+i}, v{T+i}, v{X+j+i}')
    k(f'v_add_f32 v{T}, v{T}, v{T+1}')
    k(f'v_add_f32 v{T+2}, v{T+2}, v{T+3}')
    k(f'v_add_f32 v{s_}, v{T}, v{T+2}')
    red_g(k, [s_], T)
    k(f'v_mul_f32 v{s_}, {hx(f2u(1.0/64))}, v{s_}')
    for i in range(16):
        k(f'v_sub_f32 v{D+i}, v{X+i}, v{s_}')
    for i in range(4):
        k(f'v_mul_f32 v{T+i}, v{D+i}, v{D+i}')
    for j in (4, 8, 12):
        for i in range(4):
            k(f'v_fmac_f32 v{T+i}, v{D+j+i}, v{D+j+i}')
    k(f'v_add_f32 v{T}, v{T}, v{T+1}')
    k(f'v_add_f32 v{T+2}, v{T+2}, v{T+3}')
    k(f'v_add_f32 v{m2}, v{T}, v{T+2}')
    red_g(k, [m2], T)
    k(f'ds_write_b64 v8, v[{s_}:{m2}]')
    k('s_waitcnt lgkmcnt(0)')
    k('s_barrier')
    for i in range(4):
        k(f'ds_read_b128 v[{ST+4*i}:{ST+4*i+3}], v9 offset:{16*i}')
    k(f'ds_read_b64 v[{ST+16}:{ST+17}], v9 offset:64')
    k('s_waitcnt lgkmcnt(0)')
    chan_finish(k, ST, s_, m2, T)
    for i in range(16):
        k(f'v_sub_f32 v{X+i}, v{X+i}, v{s_}')
    rnd_one(k, m2)
    k(f'v_rcp_f32 v{m2}, v{m2}')
    rnd8(k, X, T)
    rnd8(k, X + 8, T + 4)
    for h in range(2):
        for i in range(8):
            k(f'v_mul_f32 v{X+8*h+i}, v{X+8*h+i}, v{m2}')
        for i in range(4):
            k(f'v_cvt_pk_bf16_f32 v{XL+4*h+i}, v{X+8*h+2*i}, v{X+8*h+2*i+1}')
        k(f'buffer_store_dwordx4 v[{XL+4*h}:{XL+4*h+3}], v6, s[16:19], s3 offen offset:{1024*h} sc1')
    k.stamp_end(1)
    k('s_endpgm')
    k('L_k1_pf:')
    k(f's_cmp_ge_u32 s2, {240 + 8*NPF}')
    k('s_cbranch_scc1 L_k1_exit')
    k(f's_load_dwordx2 s[4:5], s[0:1], {ARG["wq"]}')
    k(f's_load_dwordx2 s[12:13], s[0:1], {ARG["ws"]}')
    k('s_sub_u32 s33, s2, 240')
    k('s_lshr_b32 s33, s33, 3')
    k('v_cmp_gt_u32 vcc, 512, v0')
    k('s_and_saveexec_b64 s[30:31], vcc')
    k('s_cbranch_execz L_k1_pf2')
    k('v_lshrrev_b32 v3, 3, v0')
    k('v_lshlrev_b32 v3, 13, v3')
    k('v_and_b32 v4, 7, v0')
    k('v_lshl_add_u32 v3, v4, 7, v3')
    k('s_and_b32 s3, s2, 7')
    k('s_lshl_b32 s3, s3, 10')
    k('s_lshl_b32 s34, s33, 19')
    k('s_add_u32 s3, s3, s34')
    k('s_waitcnt lgkmcnt(0)')
    k.srd(8, 's4', 's5', 576 * 8192)
    k('buffer_load_dword v5, v3, s[8:11], s3 offen nt')
    k('s_endpgm')
    k('L_k1_pf2:')
    k('s_cmp_ge_u32 s33, 2')
    k('s_cbranch_scc1 L_k1_exit')
    k('s_mov_b64 exec, -1')
    code_pf(k, 'k1', 'attn_kernel', 'L_attn_tail')
    k('v_and_b32 v1, 63, v0')
    k('v_lshlrev_b32 v8, 4, v1')
    k('v_lshlrev_b32 v1, 7, v1')
    k('s_lshl_b32 s3, s33, 13')
    for i in range(2):
        k(f'buffer_load_dword v{2+i}, v1, s[60:63], s3 offen')
        k('s_add_u32 s3, s3, 0x4000')
    for i in range(4):
        k(f'v_mov_b32 v{4+i}, 0')
    k('s_and_b32 s3, s2, 15')
    k('s_lshl_b32 s3, s3, 10')
    k(f's_add_u32 s3, s3, {WS_R}')
    k('s_mov_b32 s14, 32768')
    k('s_mov_b32 s15, 0x20000')
    k('s_waitcnt lgkmcnt(0)')
    k('buffer_store_dwordx4 v[4:7], v8, s[12:15], s3 offen sc1')
    k('L_k1_exit:')
    k('s_endpgm')
    return k
```

```python
import re
import struct


def f2u(x):
    return struct.unpack('<I', struct.pack('<f', x))[0]


def hx(x):
    return '0x%x' % (x & 0xffffffff)


DIAG = {'on': False}
DIAG_OFF = 128 << 20


class K:
    def __init__(self, name, grid, block, lds, nvgpr=256, nagpr=0, nsgpr=102):
        self.name = name
        self.grid = grid
        self.block = block
        self.lds = lds
        self.nvgpr = nvgpr
        self.nagpr = nagpr
        self.nsgpr = nsgpr
        self.lines = []
        self._lab = 0

    def __call__(self, s):
        for ln in s.split('\n'):
            ln = ln.strip()
            if ln:
                self.lines.append(ln)

    def stamp(self, grp=None):
        if not DIAG['on']:
            return
        if grp is not None and grp != DIAG.get('grp', 'h'):
            return
        n = self.nstamp = getattr(self, 'nstamp', 0) + 1
        assert n <= 11
        self(f's_memrealtime s[{78+2*n}:{79+2*n}]')
        self('s_waitcnt lgkmcnt(0)')

    def stamp_end(self, kid):
        if not DIAG['on']:
            return
        self('s_waitcnt vmcnt(0)')
        self.stamp()
        self('s_mov_b64 exec, -1')
        self(f's_load_dwordx2 s[60:61], s[0:1], 112')
        self('v_lshrrev_b32 v1, 6, v0')
        self('s_nop 1')
        self('v_readfirstlane_b32 s62, v1')
        self('s_waitcnt lgkmcnt(0)')
        self('s_and_b32 s62, s62, 3')
        self(f's_add_u32 s63, s2, {kid*256}')
        self('s_lshl_b32 s63, s63, 2')
        self('s_add_u32 s63, s63, s62')
        self('s_lshl_b32 s63, s63, 6')
        self(f's_add_u32 s63, s63, {hx(DIAG_OFF)}')
        self.srd_off(64, 's60', 's61', 's63', 64)
        self('v_mov_b32 v1, 0')
        for i in range(1, self.nstamp + 1):
            self(f'v_mov_b32 v2, s{78+2*i}')
            self(f'buffer_store_dword v2, v1, s[64:67], 0 offen offset:{4*(i-1)}')

    def label(self, base):
        self._lab += 1
        return f'L_{self.name}_{base}_{self._lab}'

    def srd(self, r, lo, hi, nbytes):
        self(f's_mov_b32 s{r}, {lo}')
        self(f's_mov_b32 s{r+1}, {hi}')
        self(f's_mov_b32 s{r+2}, {nbytes if isinstance(nbytes, str) else hx(nbytes)}')
        self(f's_mov_b32 s{r+3}, 0x20000')

    def srd_off(self, r, lo, hi, off, nbytes):
        o = off if isinstance(off, str) else hx(off)
        self(f's_add_u32 s{r}, {lo}, {o}')
        self(f's_addc_u32 s{r+1}, {hi}, 0')
        self(f's_mov_b32 s{r+2}, {nbytes if isinstance(nbytes, str) else hx(nbytes)}')
        self(f's_mov_b32 s{r+3}, 0x20000')

    def text(self):
        out = [f'.globl {self.name}', '.p2align 8', f'.type {self.name},@function', f'{self.name}:']
        for ln in self.lines:
            if ln.endswith(':') or ln.startswith('.'):
                out.append(ln)
            else:
                out.append('    ' + ln)
        return '\n'.join(out) + '\n'

    def desc(self):
        acc = (self.nvgpr + 3) // 4 * 4
        nfv = acc + self.nagpr if self.nagpr else self.nvgpr
        return f'''.p2align 6
.amdhsa_kernel {self.name}
  .amdhsa_next_free_vgpr {nfv}
  .amdhsa_next_free_sgpr {self.nsgpr}
  .amdhsa_accum_offset {acc}
  .amdhsa_group_segment_fixed_size 0
  .amdhsa_kernarg_size 120
  .amdhsa_user_sgpr_count 2
  .amdhsa_user_sgpr_kernarg_segment_ptr 1
  .amdhsa_system_sgpr_workgroup_id_x 1
.end_amdhsa_kernel
'''


HEADER = '''; Kernarg layout for this problem (120 bytes, ptrs only, base s[0:1]):
'''

ARG = dict(x=0, k=8, v=16, wq=24, wo=32, bx=40, wr=48, wg=56, wu=64, wd=72, c=80, wmod=88, out=96, dbg=104, ws=112)


def assemble(kernels, launches=None):
    launches = launches or kernels
    s = HEADER
    for k in launches:
        s += f'; @launch kernel={k.name} grid=({k.grid},1,1) block=({k.block},1,1) lds={k.lds}\n'
    s += '.amdgcn_target "amdgcn-amd-amdhsa--gfx950"\n.text\n'
    for k in kernels:
        s += k.text()
    s += 'L_code_end:\n'
    s += '.section .rodata,"a"\n'
    for k in kernels:
        s += k.desc()
    return s


def merge(cats):
    items = []
    for ci, c in enumerate(cats):
        tot = sum(x[1] for x in c)
        acc = 0
        for n, (ins, cost) in enumerate(c):
            items.append(((acc + cost / 2) / tot, ci, n, ins, cost))
            acc += cost
    items.sort(key=lambda x: (x[0], x[1], x[2]))
    return [(x[3], x[4]) for x in items]


def place(mf, fill):
    n = len(mf)
    tot = sum(c for _, c in fill)
    out = []
    j = 0
    acc = 0
    for i in range(n):
        out.append(mf[i])
        target = tot * (i + 1) / n
        while j < len(fill) and acc + fill[j][1] / 2 <= target:
            out.append(fill[j][0])
            acc += fill[j][1]
            j += 1
    while j < len(fill):
        out.append(fill[j][0])
        j += 1
    return out


_REG = re.compile(r'\b([va])(?:\[(\d+):(\d+)\]|(\d+))')


def regs_of(opnd):
    out = set()
    for m in _REG.finditer(opnd):
        t = m.group(1)
        if m.group(2):
            for i in range(int(m.group(2)), int(m.group(3)) + 1):
                out.add((t, i))
        else:
            out.add((t, int(m.group(4))))
    return out


def insert_lgkm(lines, pending=None):
    q = list(pending or [])
    out = []
    for ln in lines:
        op = ln.split()[0]
        if op == 's_waitcnt':
            m = re.search(r'lgkmcnt\((\d+)\)', ln)
            if m:
                n = int(m.group(1))
                while len(q) > n:
                    q.pop(0)
            out.append(ln)
            continue
        if ln.endswith(':') or op.startswith('s_') or op.startswith('.'):
            out.append(ln)
            continue
        used = regs_of(ln.split(None, 1)[1]) if ' ' in ln else set()
        need = -1
        for i, d in enumerate(q):
            if d & used:
                need = i
        if need >= 0:
            n = len(q) - need - 1
            assert n <= 15
            out.append(f's_waitcnt lgkmcnt({n})')
            q = q[need + 1:]
        if op == 'NEED':
            continue
        if op.startswith('ds_read'):
            dst = regs_of(ln.split(None, 1)[1].split(',')[0])
            q.append(dst)
            if len(q) > 15:
                raise RuntimeError('too many outstanding LDS ops')
        elif op.startswith('ds_'):
            q.append(set())
        out.append(ln)
    return out, q


class It:
    __slots__ = ('t', 'c', 'lo', 'hi', 'sep', 'after')

    def __init__(self, t, c=1, lo=0, hi=10**9, sep=False, after=None):
        self.t = t
        self.c = c
        self.lo = lo
        self.hi = hi
        self.sep = sep
        self.after = after


def sched(mf, streams, cap=2, stats=None):
    n = len(mf)
    pos = [0] * len(streams)
    last = [-1] * len(streams)
    where = {}
    out = []
    over = 0
    for g in range(n):
        out.append(mf[g])
        room = cap
        while True:
            cand = []
            for si, s in enumerate(streams):
                if pos[si] >= len(s):
                    continue
                it = s[pos[si]]
                if it.lo > g and g != n - 1:
                    continue
                if it.sep and last[si] == g:
                    if g != n - 1:
                        continue
                if it.after and any(where.get(id(a), 10**9) >= g for a in it.after):
                    if g != n - 1 or any(id(a) not in where for a in it.after):
                        continue
                forced = it.hi <= g or g == n - 1
                if it.c <= room or forced:
                    cand.append((it.hi, si))
            if not cand:
                break
            cand.sort()
            si = cand[0][1]
            it = streams[si][pos[si]]
            if g == n - 1 and ((it.sep and last[si] == g) or (it.after and any(where[id(a)] == g for a in it.after))):
                out.append('s_nop 0')
                room -= 1
            out.append(it.t)
            where[id(it)] = g
            pos[si] += 1
            last[si] = g
            room -= it.c
        if room < 0:
            over += -room
    if stats is not None:
        stats.append(over)
    return out


def resolve_vm(lines, queue=None):
    q = list(queue or [])
    out = []
    for ln in lines:
        op = ln.split()[0]
        if op == 'VWAIT':
            tags = set(ln.split()[1].split(','))
            idx = [i for i, t in enumerate(q) if t in tags]
            if idx:
                n = len(q) - idx[-1] - 1
                assert n <= 63
                out.append(f's_waitcnt vmcnt({n})')
                q = q[idx[-1] + 1:]
            continue
        if op == 'RETAG':
            a, b = ln.split()[1:]
            q = [b if t in a.split(',') else t for t in q]
            continue
        if op == 's_waitcnt':
            m = re.search(r'vmcnt\((\d+)\)', ln)
            if m:
                n = int(m.group(1))
                q = q[max(0, len(q) - n):] if n else []
        if op.startswith('buffer_') or op.startswith('global_'):
            tag = None
            if ' ;@' in ln:
                ln, tag = ln.split(' ;@')
            if tag != '-':
                q.append(tag)
            assert len(q) <= 63, 'too many outstanding vmem'
        out.append(ln)
    return out, q


def steady(body, vq, q, reps=3):
    res = []
    for _ in range(reps):
        o, vq = resolve_vm(body, vq)
        o, q = insert_lgkm(o, q)
        res.append(o)
    out = list(res[0])
    for r in res[1:]:
        assert len(r) == len(out), 'loop not in steady state'
        for i, (a, b) in enumerate(zip(out, r)):
            if a != b:
                ma, mb = re.match(r's_waitcnt (\w+)\((\d+)\)', a), re.match(r's_waitcnt (\w+)\((\d+)\)', b)
                assert ma and mb and ma.group(1) == mb.group(1), (a, b)
                out[i] = f's_waitcnt {ma.group(1)}({min(int(ma.group(2)), int(mb.group(2)))})'
    return out, vq, q
```

```python
from lib import *
from small import *

MF = 'v_mfma_f32_16x16x32_bf16'
WS_PFLAG = 24576
WS_YFLAG = 28672
SPIN = 1 << 20


def wreg(kind, b):
    if kind == 'd':
        return 8 + 4 * b
    m = 0 if kind == 'g' else 1
    return 192 + 8 * b + 4 * m if b < 7 else 4 * m


def wload(kind, b):
    if kind == 'gu':
        return [f's_mov_b32 s39, {b*589824}',
                f'buffer_load_dwordx4 a[{wreg("g", b)}:{wreg("g", b)+3}], v0, s[60:63], s39 offen ;@E',
                f'buffer_load_dwordx4 a[{wreg("u", b)}:{wreg("u", b)+3}], v0, s[64:67], s39 offen ;@E']
    return [f'buffer_load_dwordx4 a[{wreg("d", b)}:{wreg("d", b)+3}], v2, s[68:71], 0 offen offset:{b*128} ;@E']


def wstore(kind, b, va):
    if kind == 'd':
        return [f'ds_write_b128 v{va+1}, a[{wreg("d", b)}:{wreg("d", b)+3}] offset:{4096*b}']
    return [f'ds_write_b128 v{va}, a[{wreg(x, b)}:{wreg(x, b)+3}] offset:{4096*b + 32768*m}' for m, x in enumerate('gu')]


def q4(t, r):
    return f'{t}[{r}:{r+3}]'


def poll(k, name, loads, regs):
    k(f's_mov_b32 s40, {SPIN}')
    k(f'L_poll_{name}:')
    for ln in loads:
        k(ln)
    k('s_waitcnt vmcnt(0)')
    t = regs[0]
    if len(regs) > 1:
        t = 3
        k(f'v_min_u32 v3, v{regs[0]}, v{regs[1]}')
        for i in range(2, len(regs), 2):
            k(f'v_min3_u32 v3, v3, v{regs[i]}, v{regs[min(i+1, len(regs)-1)]}')
    k(f'v_cmp_eq_u32 vcc, 0, v{t}')
    k('s_sub_u32 s40, s40, 1')
    k('s_cselect_b64 vcc, 0, vcc')
    k(f's_cbranch_vccnz L_poll_{name}')


def emit_tail(k, ID, opt):
    k('s_barrier')
    ws = wstore('gu', 7, 252) + [wstore('d', b, 252)[0] for b in range(4)] + sum((wstore('gu', b, 252) for b in range(7)), [])
    for i, ln in enumerate(ws):
        k(ln)
        if i == 11:
            k('s_waitcnt lgkmcnt(4)')
    k('s_waitcnt lgkmcnt(8)')
    k(f's_load_dwordx2 s[20:21], s[0:1], {ARG["wr"]}')
    k('s_mov_b32 s34, s54')
    k('s_lshl_b32 s32, s35, 4')
    k('s_add_u32 s32, s32, s34')
    k.srd(8, 's30', 's31', 32768)
    k('s_lshl_b32 s3, s35, 2')
    k('s_add_u32 s3, s3, s33')
    k('s_lshl_b32 s3, s3, 4')
    k('s_add_u32 s3, s3, s34')
    k('s_lshl_b32 s3, s3, 2')
    k(f's_add_u32 s3, s3, {WS_PFLAG}')
    k('s_lshl_b32 s39, s32, 2')
    k('s_add_u32 s39, s39, s33')
    k('s_lshl_b32 s39, s39, 2')
    k(f's_add_u32 s39, s39, {WS_YFLAG}')
    k('v_mov_b32 v4, 0')
    k('v_mov_b32 v5, 1')
    k('v_mbcnt_lo_u32_b32 v2, -1, 0')
    k('v_mbcnt_hi_u32_b32 v2, -1, v2')
    k('s_waitcnt vmcnt(0)')
    k('buffer_store_dword v5, v4, s[8:11], s3 offen sc1')
    k.stamp()
    k.srd_off(48, 's30', 's31', WS_Y, 144 * 18432)
    k('s_mul_i32 s3, s55, 18432')
    k('buffer_load_dword v13, v4, s[48:51], s3 offen sc1')
    k('s_sub_u32 s37, s55, 144')
    k('s_cmp_ge_u32 s37, 72')
    k('s_cbranch_scc1 L_tail_noclear')
    k('v_lshrrev_b32 v3, 4, v2')
    k('s_lshl_b32 s3, s33, 2')
    k('v_add_u32 v3, s3, v3')
    k(f'v_mul_u32_u24 v0, {9*18432}, v3')
    k('v_and_b32 v3, 15, v2')
    k('v_lshl_add_u32 v0, v3, 4, v0')
    k('s_lshl_b32 s3, s37, 8')
    k('v_add_u32 v0, s3, v0')
    for i in range(4):
        k(f'v_mov_b32 v{240+i}, -1')
    k('s_mov_b32 s3, 0')
    for i in range(9):
        k('buffer_store_dwordx4 v[240:243], v0, s[48:51], s3 offen sc1')
        k('s_add_u32 s3, s3, 18432')
    k('L_tail_noclear:')
    k('s_cmp_eq_u32 s33, 3')
    k('s_cbranch_scc1 L_tail_loader')
    NU = 3
    XL, WR, GA, SB, CB, GB = 16, 28, 40, 64, 88, 112
    A, X1, D, T = 136, 160, 184, 208
    k('v_and_b32 v1, 7, v2')
    k('v_lshrrev_b32 v3, 3, v2')
    k('v_lshlrev_b32 v6, 8, v3')
    k('v_lshl_add_u32 v6, v1, 4, v6')
    k('v_lshrrev_b32 v7, 5, v2')
    k('v_lshlrev_b32 v7, 6, v7')
    k('v_and_b32 v8, 1, v3')
    k('v_lshl_add_u32 v7, v8, 5, v7')
    k('v_and_b32 v8, 2, v3')
    k('v_lshl_add_u32 v7, v8, 3, v7')
    k('s_mul_i32 s3, s33, 384')
    k('v_add_u32 v7, s3, v7')
    k('v_lshlrev_b32 v8, 1, v7')
    k('s_lshl_b32 s3, s32, 3')
    k('v_add_u32 v9, s3, v1')
    k('v_mul_u32_u24 v10, 1152, v9')
    k('v_add_u32 v10, v10, v7')
    for u in range(NU):
        k(f'buffer_load_dwordx4 {q4("v", XL + 4*u)}, v10, s[72:75], 0 offen offset:{128*u}')
    for j, b in enumerate((GA, SB, CB, GB)):
        k(f's_movk_i32 s3, {2304*(j+2)}')
        for u in range(NU):
            for h in range(2):
                k(f'buffer_load_dwordx4 {q4("v", b + 8*u + 4*h)}, v8, s[8:11], s3 offen offset:{256*u + 16*h}')
    k('s_waitcnt lgkmcnt(0)')
    k('s_mov_b32 s22, 1152')
    k('s_mov_b32 s23, 0x20000')
    for u in range(NU):
        k(f'buffer_load_dwordx4 {q4("v", WR + 4*u)}, v7, s[20:23], 0 offen offset:{128*u}')
    k.srd_off(16, 's30', 's31', WS_PART, 16 * 2359296)
    k.srd_off(24, 's30', 's31', WS_X1, 2 * 2359296)
    k('s_lshr_b32 s41, s32, 1')
    k('s_mul_i32 s41, s41, 18432')
    k('s_and_b32 s3, s32, 1')
    k('s_lshl_b32 s3, s3, 7')
    k('s_add_u32 s41, s41, s3')
    k('s_mul_i32 s3, s33, 6144')
    k('s_add_u32 s41, s41, s3')
    k('v_add_u32 v11, 4096, v6')
    k('s_lshr_b32 s3, s32, 2')
    k('s_lshl_b32 s3, s3, 6')
    k(f's_add_u32 s42, s3, {WS_PFLAG}')
    k('v_and_b32 v12, 15, v2')
    k('v_lshlrev_b32 v12, 2, v12')
    k('v_mul_u32_u24 v14, 32, v1')
    k(f'v_add_u32 v14, {LS}, v14')
    k('s_lshl_b32 s3, s33, 3')
    k('v_add_u32 v15, s3, v14')
    X0, W = D, 232
    for i in range(24):
        k(f'v_mov_b32 v{A+i}, 0')
    k('s_mov_b32 s44, 0')
    k('s_mov_b32 s45, 0')
    k(f's_mov_b32 s40, {SPIN}')

    def loads(j):
        k(f's_add_u32 s3, s41, {j*2359296}')
        for u in range(NU):
            k(f'buffer_load_dwordx4 {q4("a", 12*j + 4*u)}, v{6 if u < 2 else 11}, s[16:19], s3 offen offset:{2048*(u % 2)} sc1')

    def sums(j):
        for u in range(NU):
            for t in range(2):
                acc = A + 8 * u + 4 * t
                k(f'{MF} {q4("v", acc)}, {q4("a", ID + 2*t)}, {q4("a", 12*j + 4*u)}, {q4("v", acc)}')

    def unpack():
        for src, dst in ((XL, X0), (WR, W)):
            for u in range(NU):
                for i in range(4):
                    k(f'v_lshlrev_b32 v{dst+8*u+2*i}, 16, v{src+4*u+i}')
                    k(f'v_and_b32 v{dst+8*u+2*i+1}, 0xffff0000, v{src+4*u+i}')
    k('L_poll_part:')
    k('buffer_load_dword v13, v12, s[8:11], s42 offen sc1')
    k('s_waitcnt vmcnt(0)')
    k('v_cmp_ne_u32 vcc, 0, v13')
    k('s_sub_u32 s40, s40, 1')
    k('s_cselect_b32 s46, -1, vcc_lo')
    k('s_and_b32 s46, s46, 0xffff')
    k('s_andn2_b32 s46, s46, s44')
    k('s_cmp_eq_u32 s46, 0xffff')
    k('s_cbranch_scc1 L_part_all')
    if opt.get('early', 1) > 1:
        k('s_or_b32 s3, s46, s44')
        k('s_bcnt1_i32_b32 s3, s3')
        k(f's_cmp_lt_u32 s3, {opt["early"]}')
        k('s_cselect_b32 s46, 0, s46')
    if opt.get('batch', 3):
        k('s_mov_b32 s52, s46')
        for i in range(opt.get('batch', 3)):
            k('s_sub_u32 s3, s52, 1')
            k('s_and_b32 s52, s52, s3')
        k('s_or_b32 s3, s46, s44')
        k('s_cmp_eq_u32 s3, 0xffff')
        k('s_cselect_b32 s52, 0, s52')
        k('s_xor_b32 s46, s46, s52')
    if opt.get('psleep', 0):
        k('s_or_b32 s3, s46, s45')
        k('s_cbranch_scc1 L_part_work')
        k(f's_sleep {opt["psleep"]}')
        k('s_branch L_poll_part')
        k('L_part_work:')
    for j in range(16):
        k(f's_bitcmp1_b32 s46, {j}')
        k(f's_cbranch_scc0 L_part_l{j}')
        loads(j)
        k(f'L_part_l{j}:')
    k('L_part_sum:')
    k('s_cmp_eq_u32 s45, 0')
    k('s_cbranch_scc1 L_part_nosum')
    for j in range(16):
        k(f's_bitcmp1_b32 s45, {j}')
        k(f's_cbranch_scc0 L_part_s{j}')
        sums(j)
        k(f'L_part_s{j}:')
    k('L_part_nosum:')
    k('s_cmp_eq_u32 s44, 0xffff')
    k('s_cbranch_scc1 L_part_done')
    k('s_mov_b32 s45, s46')
    k('s_or_b32 s44, s44, s46')
    k('s_cmp_lg_u32 s44, 0xffff')
    k('s_cbranch_scc1 L_poll_part')
    k.stamp()
    unpack()
    k('s_waitcnt vmcnt(0)')
    k('s_branch L_part_sum')
    k('L_part_all:')
    if DIAG['on']:
        k.nstamp -= 1
    k.stamp()
    for j in range(16):
        loads(j)
    unpack()
    for j in range(16):
        k(f's_waitcnt vmcnt({3*(15-j)})')
        sums(j)
    k('L_part_done:')
    k.stamp()
    k('s_nop 7')

    def each(fmt, n=8):
        for u in range(NU):
            for i in range(n):
                k(fmt(u, i))

    def rnd(X, P):
        each(lambda u, i: f'v_cvt_pk_bf16_f32 v{P+(8 if P == T else 4)*u+i}, v{X+8*u+2*i}, v{X+8*u+2*i+1}', 4)
        for u in range(NU):
            for i in range(4):
                p = P + (8 if P == T else 4) * u + i
                k(f'v_lshlrev_b32 v{X+8*u+2*i}, 16, v{p}')
                k(f'v_and_b32 v{X+8*u+2*i+1}, s47, v{p}')
    k('s_mov_b32 s47, 0xffff0000')
    each(lambda u, i: f'v_cvt_pk_bf16_f32 v{T+8*u+i}, v{A+8*u+2*i}, v{A+8*u+2*i+1}', 4)
    each(lambda u, i: f'v_mov_b32 v{T+8*u+4+i}, v{T+8*u+2+i}', 2)
    each(lambda u, i: f'v_mov_b32_dpp v{T+8*u+2+i}, v{T+8*u+i} row_ror:8 row_mask:0xf bank_mask:0x3', 2)
    each(lambda u, i: f'v_mov_b32_dpp v{T+8*u+i}, v{T+8*u+4+i} row_ror:8 row_mask:0xf bank_mask:0xc', 2)
    for u in range(NU):
        for i in range(4):
            k(f'v_lshlrev_b32 v{A+8*u+2*i}, 16, v{T+8*u+i}')
            k(f'v_and_b32 v{A+8*u+2*i+1}, s47, v{T+8*u+i}')
    s_, m2 = 4, 5

    def pk(op, d, x, y, mod=''):
        for i in range(0, 24, 2):
            if y == 'lo':
                yy = f'v[4:5] op_sel_hi:[1,0]'
            elif y == 'hi':
                yy = f'v[4:5] op_sel:[0,1]'
            else:
                yy = f'v[{y+i}:{y+i+1}]'
            k(f'v_pk_{op}_f32 v[{d+i}:{d+i+1}], v[{x+i}:{x+i+1}], {yy}{mod}')
    NEG = ' neg_lo:[0,1] neg_hi:[0,1]'

    def fold(dst):
        k(f'v_pk_add_f32 v[{T}:{T+1}], v[{T}:{T+1}], v[{T+2}:{T+3}]')
        k(f'v_pk_add_f32 v[{T+4}:{T+5}], v[{T+4}:{T+5}], v[{T+6}:{T+7}]')
        k(f'v_pk_add_f32 v[{T}:{T+1}], v[{T}:{T+1}], v[{T+4}:{T+5}]')
        k(f'v_add_f32 v{dst}, v{T}, v{T+1}')

    def tree(src, dst):
        for i in range(0, 8, 2):
            k(f'v_pk_add_f32 v[{T+i}:{T+i+1}], v[{src+i}:{src+i+1}], v[{src+8+i}:{src+9+i}]')
        for i in range(0, 8, 2):
            k(f'v_pk_add_f32 v[{T+i}:{T+i+1}], v[{T+i}:{T+i+1}], v[{src+16+i}:{src+17+i}]')
        fold(dst)

    def dot(a, b, dst):
        for i in range(0, 8, 2):
            k(f'v_pk_mul_f32 v[{T+i}:{T+i+1}], v[{a+i}:{a+i+1}], v[{b+i}:{b+i+1}]')
        for i in range(8, 24, 2):
            t = T + i % 8
            k(f'v_pk_fma_f32 v[{t}:{t+1}], v[{a+i}:{a+i+1}], v[{b+i}:{b+i+1}], v[{t}:{t+1}]')
        fold(dst)
    pk('mul', A, A, GA)
    rnd(A, T)
    pk('add', X1, X0, A)
    rnd(X1, XL)
    tree(X1, s_)
    red_q8(k, [s_], T)
    k(f'v_mul_f32 v{s_}, {hx(f2u(1.0/192))}, v{s_}')
    pk('add', D, X1, 'lo', NEG)
    dot(D, D, m2)
    red_q8(k, [m2], T)
    k(f'ds_write_b64 v15, v[{s_}:{m2}]')
    for u in range(NU):
        k(f'buffer_store_dwordx4 {q4("v", XL + 4*u)}, v10, s[24:27], 0 offen offset:{128*u} sc1')
    k('s_waitcnt lgkmcnt(0)')
    k('s_barrier')
    ST = T + 8
    k(f'ds_read_b128 {q4("v", ST)}, v14')
    k(f'ds_read_b64 v[{ST+4}:{ST+5}], v14 offset:16')
    k('s_waitcnt lgkmcnt(0)')
    k(f'v_pk_add_f32 v[4:5], v[{ST}:{ST+1}], v[{ST+2}:{ST+3}]')
    k(f'v_pk_add_f32 v[4:5], v[4:5], v[{ST+4}:{ST+5}]')
    k(f'v_mul_f32 v{s_}, {hx(f2u(1.0/3))}, v{s_}')
    for i in range(3):
        k(f'v_sub_f32 v{ST+2*i}, v{ST+2*i}, v{s_}')
    k(f'v_mul_f32 v{T}, v{ST}, v{ST}')
    k(f'v_fmac_f32 v{T}, v{ST+2}, v{ST+2}')
    k(f'v_fmac_f32 v{T}, v{ST+4}, v{ST+4}')
    k(f'v_fmac_f32 v{m2}, {hx(f2u(192.0))}, v{T}')
    k(f'v_mul_f32 v{m2}, {hx(f2u(1.0/576))}, v{m2}')
    rnd_pair(k, s_, m2, T)
    k(f'v_add_f32 v6, {hx(f2u(1e-5))}, v{m2}')
    rnd_one(k, 6)
    k(f'v_sqrt_f32 v6, v6')
    pk('add', D, X1, 'lo', NEG)
    rnd_one(k, 6)
    k(f'v_rcp_f32 v{m2}, v6')
    rnd(D, T)
    pk('mul', D, D, 'hi')
    rnd(D, T)
    pk('mul', D, D, CB)
    rnd(D, T)
    pk('add', D, D, SB)
    rnd(D, WR)
    dot(D, W, s_)
    k('s_mov_b32 s3, 2359296')
    for u in range(NU):
        k(f'buffer_store_dwordx4 {q4("v", WR + 4*u)}, v10, s[24:27], s3 offen offset:{128*u} sc1')
    red_q8(k, [s_], T)
    k(f'ds_write_b32 v15, v{s_} offset:256')
    k('s_waitcnt lgkmcnt(0)')
    k('s_barrier')
    k(f'ds_read_b128 {q4("v", ST)}, v14 offset:256')
    k(f'ds_read_b32 v{ST+4}, v14 offset:272')
    k('v_lshlrev_b32 v6, 2, v9')
    k('s_mov_b32 s3, 0xfffff800')
    k('s_lshl_b32 s41, s33, 16')
    k(f's_add_u32 s41, s41, {WS_R}')
    k('s_waitcnt lgkmcnt(0)')
    k(f'v_add_f32 v{s_}, v{ST}, v{ST+2}')
    k(f'v_add_f32 v{s_}, v{s_}, v{ST+4}')
    k(f'v_ashrrev_i32 v{m2}, 31, v{s_}')
    k(f'v_or_b32 v{m2}, 0x80000000, v{m2}')
    k(f'v_xor_b32 v{s_}, v{s_}, v{m2}')
    k(f'v_max_u32 v{s_}, 0x800, v{s_}')
    k(f'v_and_or_b32 v{s_}, v{s_}, s3, v9')
    k(f'buffer_store_dword v{s_}, v6, s[8:11], s41 offen sc1')
    k('v_mov_b32 v100, v9')
    k('v_mov_b32 v101, v10')

    def out_math():
        pk('mul', A, D, GB)
        rnd(A, T)
        pk('add', A, A, X1)
        each(lambda u, i: f'v_cvt_pk_bf16_f32 v{88+4*u+i}, v{A+8*u+2*i}, v{A+8*u+2*i+1}', 4)

    def out_store(name):
        k('s_cmp_eq_u32 s33, 3')
        k(f's_cbranch_scc1 L_out_{name}')
        for u in range(NU):
            k(f'buffer_store_dwordx4 {q4("v", 88 + 4*u)}, v101, s[76:79], 0 offen offset:{128*u} sc1')
        k(f'L_out_{name}:')

    def out_mask():
        k('s_movk_i32 s3, 0x7ff')
        for i in range(8):
            k(f'v_bitop3_b32 v{104+i}, v{104+i}, s3, v100 bitop3:0x6a')
        k('v_min3_u32 v104, v104, v105, v106')
        k('v_min3_u32 v107, v107, v108, v109')
        k('v_min3_u32 v104, v104, v110, v111')
        k('v_min_u32 v104, v104, v107')
        k('v_cmp_eq_u32 vcc, 0, v104')
        k('v_mov_b32 v105, 0x1000000')
        k('s_mov_b32 s47, 0xffff0000')
        k('v_cndmask_b32 v101, v101, v105, vcc')
    k('s_branch L_tail_moe')
    k('L_tail_loader:')
    k('s_waitcnt vmcnt(0) lgkmcnt(0)')
    if DIAG['on']:
        n = k.nstamp
        k(f's_memrealtime s[{78+2*n}:{79+2*n}]')
        k(f's_memrealtime s[{76+2*n}:{77+2*n}]')
        k('s_waitcnt lgkmcnt(0)')
    k('v_lshlrev_b32 v3, 7, v2')
    k('s_mov_b32 s3, L_part_done-L_attn_pc-0x3000')
    k('buffer_load_dword v102, v3, s[4:7], s3 offen')
    k('s_barrier')
    k('s_mov_b32 s3, L_tail_moe-L_attn_pc-0x3000')
    k('buffer_load_dword v103, v3, s[4:7], s3 offen sc1')
    k('s_barrier')
    k('L_tail_moe:')
    k('s_mov_b32 s32, s55')
    k.stamp()
    k('v_mov_b32 v1, s33')
    k('v_lshrrev_b32 v13, 4, v2')
    k('v_lshlrev_b32 v5, 4, v2')
    k('v_and_b32 v10, 7, v2')
    k.srd_off(24, 's30', 's31', WS_X1, 2 * 2359296)
    k('s_cmp_ge_u32 s32, 144')
    k('s_cbranch_scc1 L_tail_fprep')
    k('v_bfe_u32 v3, v2, 2, 2')
    k('v_lshl_add_u32 v3, v13, 3, v3')
    k('v_lshlrev_b32 v3, 6, v3')
    k('v_and_b32 v9, 3, v2')
    k('v_lshl_add_u32 v3, v9, 3, v3')
    k('v_xor_b32 v4, v13, v1')
    k('v_and_b32 v4, 1, v4')
    k('v_lshl_add_u32 v3, v4, 5, v3')
    k('s_lshr_b32 s3, s33, 1')
    k('s_lshl_b32 s41, s3, 12')
    k(f's_add_u32 s41, s41, {LG8}')
    k('v_add_u32 v8, s41, v3')
    k('s_lshl_b32 s3, s3, 15')
    k(f's_add_u32 s3, s3, {LG}')
    k('v_add_u32 v3, s3, v3')
    AF, DN = 0, 72
    lines = []
    for kk in range(18):
        a, o = (3, 2048 * kk) if kk < 16 else (8, 2048 * (kk - 16))
        lines.append(f'ds_read_b64_tr_b16 a[{AF+4*kk}:{AF+4*kk+1}], v{a} offset:{o}')
        lines.append(f'ds_read_b64_tr_b16 a[{AF+4*kk+2}:{AF+4*kk+3}], v{a} offset:{o+256}')
    for i in range(9):
        o = 4096 * i if i < 4 else LD2 - LD + 4096 * (i - 4)
        lines.append(f'ds_read_b64_tr_b16 a[{DN+4*i}:{DN+4*i+1}], v14 offset:{o}')
        lines.append(f'ds_read_b64_tr_b16 a[{DN+4*i+2}:{DN+4*i+3}], v14 offset:{o+2048}')
    k('v_lshrrev_b32 v14, 2, v2')
    k('v_lshlrev_b32 v14, 7, v14')
    k('v_lshl_add_u32 v14, v9, 3, v14')
    k('v_bfe_u32 v4, v2, 3, 2')
    k('v_xor_b32 v4, v4, v1')
    k('v_lshl_add_u32 v14, v4, 5, v14')
    k(f'v_add_u32 v14, {LD}, v14')
    k('s_mul_i32 s3, s32, 18432')
    k(f's_add_u32 s3, s3, {WS_Y}')
    k.srd_off(16, 's30', 's31', 's3', 18432)
    k('v_lshlrev_b32 v15, 4, v10')
    k('v_lshl_add_u32 v15, v13, 7, v15')
    k('v_lshl_add_u32 v15, v1, 9, v15')
    k('v_and_b32 v4, 8, v2')
    k('v_lshl_add_u32 v15, v4, 20, v15')
    k('v_lshlrev_b32 v12, 3, v4')
    k('v_lshl_add_u32 v12, v13, 4, v12')
    k('s_branch L_tail_select')
    k('L_tail_fprep:')
    k('v_and_b32 v12, 8, v2')
    k('v_lshlrev_b32 v15, 1, v12')
    k('v_and_b32 v14, 15, v2')
    k('v_lshlrev_b32 v14, 4, v14')
    k('v_lshl_add_u32 v13, v1, 8, v14')
    k('L_tail_select:')
    k('s_lshl_b32 s41, s33, 11')
    k(f's_add_u32 s41, s41, {WS_R}')
    k('v_lshlrev_b32 v6, 2, v10')
    k('v_lshl_add_u32 v61, v1, 6, v6')
    k(f'v_add_u32 v61, {LC + 128}, v61')
    k('v_lshl_add_u32 v6, v1, 5, v6')
    k(f'v_add_u32 v6, {LC}, v6')
    k('v_and_b32 v62, 31, v2')
    k('v_lshlrev_b32 v62, 2, v62')
    k(f'v_add_u32 v62, {LC}, v62')
    k(f'v_mov_b32 v63, {LC}')
    k('s_lshl_b32 s38, s33, 6')
    k(f's_add_u32 s38, s38, {LC + 128}')
    sp = ['s[40:41]', 's[42:43]', 's[44:45]', 's[46:47]']
    k('v_lshrrev_b32 v44, 4, v2')
    k('v_lshl_add_u32 v44, v1, 2, v44')
    k('v_lshlrev_b32 v44, 2, v44')
    k(f'v_add_u32 v44, {LC + 384}, v44')
    k('v_and_b32 v45, 15, v2')
    k('v_lshlrev_b32 v45, 2, v45')
    k(f'v_add_u32 v45, {LC + 384}, v45')
    k('v_lshlrev_b32 v46, 5, v1')
    k(f'v_add_u32 v46, {LC}, v46')
    k(f'v_mov_b32 v47, {LC + 448}')
    k('v_mov_b32 v11, 0')
    R = 16
    kl = [f'buffer_load_dwordx4 {q4("v", R)}, v5, s[8:11], s41 offen sc1',
          f'buffer_load_dwordx4 {q4("v", R+4)}, v5, s[8:11], s41 offen offset:1024 sc1']
    k(f's_mov_b32 s40, {SPIN}')
    k('v_mov_b32 v4, 0')
    k('v_mov_b32 v7, 1')
    k(kl[0])
    k(kl[1])
    k('s_waitcnt vmcnt(3)')
    k('s_cmp_eq_u32 s33, 0')
    k('s_cbranch_scc1 L_tail_rows')
    k('s_waitcnt vmcnt(2)')
    k('L_tail_rows:')
    k('buffer_store_dword v7, v4, s[8:11], s39 offen sc1')
    k('s_cmp_ge_u32 s32, 144')
    k('s_cbranch_scc1 L_tail_nofrag')
    for i, ln in enumerate(lines):
        k(ln)
        if i % 6 == 5 and i >= 11:
            k('s_waitcnt lgkmcnt(8)')
    k('L_tail_nofrag:')
    k('s_waitcnt vmcnt(1)')
    k('s_branch L_keys_chk')
    k('L_poll_keys:')
    k(kl[0])
    k(kl[1])
    k('s_waitcnt vmcnt(0)')
    k('L_keys_chk:')
    k(f'v_min3_u32 v3, v{R}, v{R+1}, v{R+2}')
    k(f'v_min3_u32 v4, v{R+3}, v{R+4}, v{R+5}')
    k(f'v_min3_u32 v3, v3, v{R+6}, v{R+7}')
    k('v_min_u32 v3, v3, v4')
    k('v_cmp_eq_u32 vcc, 0, v3')
    k('s_sub_u32 s40, s40, 1')
    k('s_cselect_b64 vcc, 0, vcc')
    k('s_cbranch_vccnz L_poll_keys')
    k.stamp()
    k('s_lshl_b32 s39, s33, 10')
    k(f's_add_u32 s39, s39, {WS_YFLAG}')
    k(f'v_max3_u32 v8, v{R}, v{R+1}, v{R+2}')
    k(f'v_max3_u32 v9, v{R+3}, v{R+4}, v{R+5}')
    k(f'v_max3_u32 v8, v8, v{R+6}, v{R+7}')
    k('v_max_u32 v8, v8, v9')
    for sh in (1, 2, 4, 8):
        k('s_nop 1')
        k(f'v_max_u32_dpp v8, v8, v8 row_ror:{sh} row_mask:0xf bank_mask:0xf')
    k('ds_write_b32 v44, v8')
    k('ds_write_b32 v6, v11')
    k('s_waitcnt lgkmcnt(0)')
    k('s_barrier')
    k('ds_read_b32 v9, v45')
    for i in range(4):
        k(f'ds_read_b128 {q4("v", 24 + 4*i)}, v63 offset:{384 + 16*i}')
    k('v_mov_b32 v7, 0')
    k('v_mov_b32 v8, 0')
    for i in range(0, 16, 4):
        k(f's_waitcnt lgkmcnt({3 - i//4})')
        for j in range(4):
            k(f'v_cmp_gt_u32 {sp[j]}, v{24+i+j}, v9')
        for j in range(4):
            k(f'v_addc_co_u32 v{7 + j % 2}, vcc, 0, v{7 + j % 2}, {sp[j]}')
    k('v_add_u32 v7, v7, v8')
    k('v_cmp_eq_u32 vcc, 7, v7')
    k('s_mov_b32 s52, 0')
    k('s_ff1_i32_b32 s3, vcc_lo')
    k('s_and_b32 s3, s3, 15')
    k('v_readlane_b32 s53, v9, s3')
    k('s_nop 1')
    for half in range(2):
        for j in range(4):
            k(f'v_cmp_le_u32 {sp[j]}, s53, v{R + 4*half + j}')
        for j in range(4):
            lo = 40 + 2 * j
            k(f'v_mbcnt_lo_u32_b32 v{24+j}, s{lo}, 0')
            k(f'v_mbcnt_hi_u32_b32 v{24+j}, s{lo+1}, v{24+j}')
            k(f'v_add_u32 v{24+j}, s52, v{24+j}')
            k(f's_bcnt1_i32_b64 s3, {sp[j]}')
            k(f'v_min_u32 v{24+j}, 7, v{24+j}')
            k('s_add_u32 s52, s52, s3')
            k(f'v_lshl_add_u32 v{24+j}, v{24+j}, 2, v46')
            k(f'v_cndmask_b32 v{24+j}, v47, v{24+j}, {sp[j]}')
            k(f'ds_write_b32 v{24+j}, v{R + 4*half + j}')
    k('s_cmp_le_u32 s52, 8')
    k('s_cbranch_scc1 L_top_done')
    k('v_mov_b32 v7, -1')
    k('s_mov_b32 s3, 0')
    k('L_top_round:')
    TT = 24
    for i in range(8):
        k(f'v_sub_u32 v{TT+i}, v7, v{R+i}')
    k(f'v_min3_u32 v8, v{TT}, v{TT+1}, v{TT+2}')
    k(f'v_min3_u32 v9, v{TT+3}, v{TT+4}, v{TT+5}')
    k(f'v_min3_u32 v8, v8, v{TT+6}, v{TT+7}')
    k('v_min_u32 v8, v8, v9')
    red32(k, 8, 9, 'v_min_u32')
    k('v_mov_b32 v9, v8')
    k('v_cmp_eq_u32 vcc, s3, v10')
    k('s_nop 0')
    k('v_permlane32_swap_b32 v8, v9')
    k('v_min_u32 v8, v8, v9')
    k('v_sub_u32 v8, v7, v8')
    k('v_subrev_u32 v7, 1, v8')
    k('v_cndmask_b32 v11, v11, v8, vcc')
    k('s_add_u32 s3, s3, 1')
    k('s_cmp_lt_u32 s3, 8')
    k('s_cbranch_scc1 L_top_round')
    k('ds_write_b32 v6, v11')
    k('L_top_done:')
    k('buffer_load_dwordx4 v[48:51], v5, s[8:11], s39 offen sc1')
    k('s_waitcnt lgkmcnt(0)')
    k('s_barrier')
    k('ds_read_b32 v11, v62')
    for i in range(8):
        k(f'ds_read_b128 {q4("v", 16 + 4*i)}, v63 offset:{16*i}')
    k('v_mov_b32 v7, 0')
    k('v_mov_b32 v8, 0')
    for i in range(0, 32, 4):
        k(f's_waitcnt lgkmcnt({7 - i//4})')
        for j in range(4):
            k(f'v_cmp_gt_u32 {sp[j]}, v{16+i+j}, v11')
        for j in range(4):
            k(f'v_addc_co_u32 v{7 + j % 2}, vcc, 0, v{7 + j % 2}, {sp[j]}')
    k('v_add_u32 v7, v7, v8')
    k('v_min_u32 v7, 8, v7')
    k('v_lshl_add_u32 v7, v7, 2, s38')
    k('ds_write_b32 v7, v11')
    k('ds_read_b32 v11, v61')
    k('v_mov_b32 v7, s38')
    k('ds_read_b128 v[104:107], v7')
    k('ds_read_b128 v[108:111], v7 offset:16')
    k(f's_mov_b32 s40, {SPIN}')
    k('s_branch L_rows_chk')
    k('L_rows_poll:')
    k('buffer_load_dwordx4 v[48:51], v5, s[8:11], s39 offen sc1')
    k('L_rows_chk:')
    k('s_waitcnt vmcnt(0)')
    k('v_min3_u32 v3, v48, v49, v50')
    k('v_cmp_eq_u32 vcc, 0, v3')
    k('s_sub_u32 s40, s40, 1')
    k('s_cselect_b64 vcc, 0, vcc')
    k('s_cbranch_vccnz L_rows_poll')
    k('s_barrier')
    k('s_waitcnt lgkmcnt(2)')
    k.stamp('t')
    k('v_and_b32 v7, 0x7ff, v11')
    k('v_mul_u32_u24 v7, 1152, v7')
    k('v_add_u32 v12, v12, v7')
    k('s_cmp_ge_u32 s32, 144')
    k('s_cbranch_scc1 L_tail_final')
    B = 16
    LH = 8192
    k('s_lshl_b32 s3, s33, 7')
    k('s_add_u32 s3, s3, 2359296')
    k('s_mov_b32 s38, 2359296')
    k(f'buffer_load_dwordx4 v[72:75], v12, s[24:27], s3 offen sc1')
    k(f'buffer_load_dwordx4 v[76:79], v12, s[24:27], s3 offen offset:512 sc1')
    k(f'buffer_load_dwordx4 {q4("v", B + 32)}, v12, s[24:27], s38 offen offset:1024 sc1')
    k('v_lshl_add_u32 v9, v1, 10, v5')
    k('v_and_b32 v4, 8, v2')
    k('v_lshlrev_b32 v8, 2, v10')
    k('v_lshl_add_u32 v10, v4, 7, v5')
    k('s_waitcnt lgkmcnt(0)')
    out_mask()
    out_math()
    k('s_waitcnt vmcnt(1)')
    k(f'ds_write_b128 v9, v[72:75] offset:{LH}')
    k(f'ds_write_b128 v9, v[76:79] offset:{LH + 4096}')
    k('s_waitcnt vmcnt(0)')
    for h in range(2):
        k(f'{MF} {q4("v", 64 + 4*h)}, {q4("a", AF + 64 + 4*h)}, {q4("v", B + 32)}, 0')
    k('s_waitcnt lgkmcnt(0)')
    k('s_barrier')
    for p in range(8):
        k(f'ds_read_b128 {q4("v", B + 4*p)}, v5 offset:{LH + 1024*p}')
    for p in range(8):
        k(f's_waitcnt lgkmcnt({7 - p})')
        for h in range(2):
            k(f'{MF} {q4("v", 64 + 4*h)}, {q4("a", AF + 8*p + 4*h)}, {q4("v", B + 4*p)}, {q4("v", 64 + 4*h)}')
    k.stamp('t')
    k('s_nop 7')
    for i in range(4):
        k(f'v_mov_b32_dpp v{64+i}, v{68+i} quad_perm:[0,1,2,3] row_mask:0xf bank_mask:0xc')
    k('s_nop 0')
    for i in range(4):
        k(f'v_add_f32_dpp v{4+i}, v{64+i}, v{64+i} row_ror:8 row_mask:0xf bank_mask:0xf')
    k('ds_write_b128 v9, v[4:7]')
    k('s_waitcnt lgkmcnt(0)')
    k('s_barrier')
    k('ds_read_b128 v[16:19], v10')
    k('ds_read_b128 v[20:23], v10 offset:2048')
    k('s_waitcnt lgkmcnt(0)')
    rnd8(k, 16, 32)
    for i in range(4):
        k(f'v_mul_f32 v{32+i}, {hx(f2u(-LOG2E))}, v{16+i}')
    for i in range(4):
        k(f'v_exp_f32 v{32+i}, v{32+i}')
    for i in range(4):
        k(f'v_add_f32 v{32+i}, 1.0, v{32+i}')
    for i in range(4):
        k(f'v_rcp_f32 v{32+i}, v{32+i}')
    for i in range(4):
        k(f'v_mul_f32 v{16+i}, v{16+i}, v{32+i}')

    def r4():
        k('v_cvt_pk_bf16_f32 v24, v16, v17')
        k('v_cvt_pk_bf16_f32 v25, v18, v19')
        k('v_lshlrev_b32 v16, 16, v24')
        k('v_and_b32 v17, 0xffff0000, v24')
        k('v_lshlrev_b32 v18, 16, v25')
        k('v_and_b32 v19, 0xffff0000, v25')
    r4()
    for i in range(4):
        k(f'v_mul_f32 v{16+i}, v{16+i}, v{20+i}')
    k('v_cvt_pk_bf16_f32 v40, v16, v17')
    k('v_cvt_pk_bf16_f32 v41, v18, v19')
    k('s_nop 0')
    k('v_mov_b32_dpp v42, v40 row_ror:8 row_mask:0xf bank_mask:0xf')
    k('v_mov_b32_dpp v43, v41 row_ror:8 row_mask:0xf bank_mask:0xf')
    k('s_nop 1')
    Y = 48
    for i in range(9):
        k(f'{MF} {q4("v", Y + 4*i)}, {q4("a", DN + 4*i)}, v[40:43], 0')
    for i in range(9):
        if i % 2 == 0:
            k(f's_movk_i32 s3, {2048*i}')
        k(f'buffer_store_dwordx4 {q4("v", Y + 4*i)}, v15, s[16:19], s3 offen offset:{2048*(i % 2)} sc1')
    k.stamp('t')
    out_store('moe')
    k(f's_movk_i32 s38, {WS_IDX}')
    k('s_or_b32 s3, s32, s33')
    k('s_cselect_b32 s3, 0x10000, s38')
    k('buffer_store_dword v11, v8, s[8:11], s3 offen')
    k('s_branch L_attn_end')
    k('L_tail_final:')
    k('s_lshl_b32 s42, s37, 4')
    k(f's_add_u32 s43, s42, 2359296')
    k('buffer_load_dwordx2 v[58:59], v12, s[24:27], s42 offen sc1')
    k('buffer_load_dwordx2 v[56:57], v12, s[24:27], s43 offen sc1')
    k('s_lshl_b32 s41, s37, 5')
    k(f's_add_u32 s41, s41, {5*2304}')
    k('buffer_load_dwordx4 v[52:55], v15, s[8:11], s41 offen')
    k('s_waitcnt lgkmcnt(0)')
    out_mask()
    out_math()
    out_store('fin')
    k('s_cmp_ge_u32 s32, 216')
    k('s_cbranch_scc1 L_attn_end')
    k('v_not_b32 v7, v11')
    k('v_ashrrev_i32 v7, 31, v7')
    k('v_or_b32 v7, 0x80000000, v7')
    k('v_xor_b32 v8, v11, v7')
    rnd_one(k, 8)
    k(f'v_mul_f32 v8, {hx(f2u(-LOG2E))}, v8')
    k('v_exp_f32 v8, v8')
    k('s_nop 0')
    k('v_add_f32 v8, 1.0, v8')
    k('v_rcp_f32 v8, v8')
    k('s_nop 0')
    rnd_one(k, 8)
    k('s_waitcnt vmcnt(0)')
    for j in range(2):
        k(f'v_lshlrev_b32 v{64+2*j}, 16, v{56+j}')
        k(f'v_and_b32 v{65+2*j}, 0xffff0000, v{56+j}')
        k(f'v_lshlrev_b32 v{68+2*j}, 16, v{58+j}')
        k(f'v_and_b32 v{69+2*j}, 0xffff0000, v{58+j}')
    k(f's_mov_b32 s40, {SPIN}')
    k('L_poll_y:')
    k('s_mov_b32 s3, 0')
    for i in range(9):
        k(f'buffer_load_dwordx4 v[{16+4*i}:{19+4*i}], v0, s[48:51], s3 offen sc1')
        k('s_add_u32 s3, s3, 18432')
    for i in range(9):
        k(f's_waitcnt vmcnt({8-i})')
        if i == 0:
            k('v_max_u32 v3, v16, v17')
            k('v_max_u32 v4, v18, v19')
        else:
            k(f'v_max3_u32 v3, v3, v{16+4*i}, v{17+4*i}')
            k(f'v_max3_u32 v4, v4, v{18+4*i}, v{19+4*i}')
    k('v_max_u32 v3, v3, v4')
    k('v_cmp_eq_u32 vcc, -1, v3')
    k('s_sub_u32 s40, s40, 1')
    k('s_cselect_b64 vcc, 0, vcc')
    k('s_cbranch_vccnz L_poll_y')
    if DIAG['on']:
        n = k.nstamp
        k(f's_memrealtime s[{78+2*n}:{79+2*n}]')
        k('s_waitcnt lgkmcnt(0)')
    for a, b in ((0, 1), (2, 3), (4, 5), (6, 7), (0, 2), (4, 6), (0, 8), (0, 4)):
        for j in range(0, 4, 2):
            k(f'v_pk_add_f32 v[{16+4*a+j}:{17+4*a+j}], v[{16+4*a+j}:{17+4*a+j}], v[{16+4*b+j}:{17+4*b+j}]')
    for sw in ('v_permlane16_swap_b32', 'v_permlane32_swap_b32'):
        for j in range(4):
            k(f'v_mov_b32 v{20+j}, v{16+j}')
        k('s_nop 0')
        for j in range(4):
            k(f'{sw} v{16+j}, v{20+j}')
        for j in range(4):
            k(f'v_add_f32 v{16+j}, v{16+j}, v{20+j}')
    k('ds_write_b128 v13, v[16:19]')
    k('s_waitcnt lgkmcnt(0)')
    k('s_barrier')
    k('s_cmp_lg_u32 s33, 0')
    k('s_cbranch_scc1 L_attn_end')
    for w in range(1, 4):
        k(f'ds_read_b128 v[{28+4*w}:{31+4*w}], v14 offset:{256*w}')
    k('s_waitcnt lgkmcnt(0)')
    for j in range(4):
        k(f'v_add_f32 v{16+j}, v{16+j}, v{32+j}')
        k(f'v_add_f32 v{36+j}, v{36+j}, v{40+j}')
    for j in range(4):
        k(f'v_add_f32 v{16+j}, v{16+j}, v{36+j}')
    r4()
    for j in range(4):
        k(f'v_mul_f32 v{16+j}, v{16+j}, v8')
    r4()
    for j in range(4):
        k(f'v_add_f32 v{16+j}, v{16+j}, v{64+j}')
    r4()
    for j in range(4):
        k(f'v_mul_f32 v{16+j}, v{16+j}, v{52+j}')
    r4()
    for j in range(4):
        k(f'v_add_f32 v{16+j}, v{16+j}, v{68+j}')
    k('v_cvt_pk_bf16_f32 v20, v16, v17')
    k('v_cvt_pk_bf16_f32 v21, v18, v19')
    k('buffer_store_dwordx2 v[20:21], v12, s[76:79], s42 offen sc1')
    k('s_branch L_attn_end')
```

```python
import sys
from gen import *
DIAG['on'] = True
DIAG['grp'] = 'h'
def echo(kA, cA, nA, opA, kB, cB, nB, now=False):
    k = K('echo_kernel', 1, 64, 0, nvgpr=32)
    k('s_cmp_ge_u32 s2, 1'); k('s_cbranch_scc1 L_echo_exit')
    k('s_memrealtime s[20:21]')
    k('s_load_dwordx2 s[6:7], s[0:1], 112')
    k('v_lshlrev_b32 v1, 8, v0')
    k('v_mov_b32 v2, 0')
    k('s_waitcnt lgkmcnt(0)')
    k.srd_off(8, 's6', 's7', DIAG_OFF, 1 << 20)
    k(f's_mov_b32 s3, {2*65536}')
    k('buffer_load_dword v3, v2, s[8:11], s3 offen')
    for base, (kk, cc, nn) in ((4, (kA, cA, nA)), (8, (kB, cB, nB))):
        for i in range(4):
            j = i if i * 64 < nn else 0
            k(f's_mov_b32 s3, {kk*65536 + j*16384 + cc*4}')
            k(f'buffer_load_dword v{base+i}, v1, s[8:11], s3 offen')
    k('s_waitcnt vmcnt(0)')
    for i in range(8): k(f'v_sub_u32 v{4+i}, v{4+i}, v3')
    for base, op in ((4, opA), (8, 'v_max_i32')):
        for i in range(1, 4): k(f'{op} v{base}, v{base}, v{base+i}')
        red32(k, base, 20, op)
        k(f'v_mov_b32 v20, v{base}'); k('s_nop 1'); k(f'v_permlane32_swap_b32 v{base}, v20'); k(f'{op} v{base}, v{base}, v20')
    if now: k('v_sub_u32 v8, s20, v3')
    k('v_sub_u32 v4, v8, v4'); k('s_nop 1')
    k('v_readfirstlane_b32 s12, v4')
    k('s_min_u32 s12, s12, 50000')
    k('s_memrealtime s[14:15]'); k('s_waitcnt lgkmcnt(0)')
    k('L_echo_loop:')
    k('s_memrealtime s[16:17]'); k('s_waitcnt lgkmcnt(0)')
    k('s_sub_u32 s16, s16, s14'); k('s_cmp_lt_u32 s16, s12'); k('s_cbranch_scc1 L_echo_loop')
    k('L_echo_exit:'); k('s_endpgm')
    return k
mn, mx = 'v_min_i32', 'v_max_i32'
cfg = {'e0': (2, 0, 256, mx, 2, 0, 256),
       'e6': (0, 0, 64, mn, 2, 10, 256),
       'e7': (0, 0, 64, mn, 2, 10, 256, True),
       'e8': (2, 10, 256, mx, 2, 10, 256, True)}
for n, c in cfg.items():
    ks = [gen_k1({}), gen_attn({}), echo(*c)]
    open(f'p_{n}.s', 'w').write(assemble(ks))
```

```python
from lib import *
from small import *
from tail import emit_tail, wdma, wload, wstore, LDS_TOTAL

MF = 'v_mfma_f32_16x16x32_bf16'
SCALE = 128 ** -0.5


def q4(t, r):
    return f'{t}[{r}:{r+3}]'


def q2(t, r):
    return f'{t}[{r}:{r+1}]'


def gen_attn(opt=None):
    opt = opt or {}
    dbl = opt.get('dbl', True)
    bias = opt.get('bias', 0.0)
    CSB = 131072 + 256
    k = K('attn_kernel', 256, 256, LDS_TOTAL, nvgpr=256, nagpr=256)
    O, KF, VF = 0, 128, 160
    KA, VA, DK, DV = 8, 12, 20, 24
    OST = 26
    MX = 28
    TMP = 32
    ONE = 40
    NM = 44
    L = 60
    P = 76
    S = 108
    QA = 44
    WA, DW, PF = 172, 180, 184
    Q = HR = 188
    WA2 = TMP
    TMP2 = 0
    stats = []
    E = k

    def emit(lines):
        for ln in lines:
            k(ln)

    k('s_cmp_ge_u32 s2, 256')
    k('s_cbranch_scc1 L_attn_exit')
    k.stamp()
    k(f's_load_dwordx4 s[52:55], s[0:1], {ARG["wq"]}')
    k(f's_load_dwordx2 s[30:31], s[0:1], {ARG["ws"]}')
    k(f's_load_dwordx4 s[4:7], s[0:1], {ARG["k"]}')
    k('v_lshrrev_b32 v1, 6, v0')
    k('v_and_b32 v2, 63, v0')
    k('v_readfirstlane_b32 s33, v1')
    hx_ = opt.get('hx', 1)
    k(f's_bfe_u32 s34, s2, {hx((4 - hx_) << 16)}')
    k(f's_lshl_b32 s34, s34, {hx_}')
    k(f's_bfe_u32 s3, s2, {hx((hx_ << 16) | 3)}')
    k('s_add_u32 s34, s34, s3')
    k(f's_lshr_b32 s35, s2, {3 + hx_}')
    if hx_ > 1:
        k(f's_bfe_u32 s3, s2, {hx(((hx_ - 1) << 16) | (4 - hx_))}')
        k(f's_lshl_b32 s3, s3, {5 - hx_}')
        k('s_add_u32 s35, s35, s3')
    k('v_lshrrev_b32 v3, 5, v2')
    k('v_and_b32 v4, 1, v1')
    k('v_lshl_add_u32 v4, v4, 2, v3')
    k('v_lshlrev_b32 v4, 1, v4')
    k('v_and_b32 v5, 31, v2')
    k('v_xor_b32 v4, v4, v5')
    k('v_lshl_add_u32 v3, v1, 3, v3')
    k('v_lshlrev_b32 v3, 13, v3')
    k(f'v_lshl_add_u32 v{DW}, v4, 4, v3')
    k(f'v_xor_b32 v{DW+1}, 64, v{DW}')
    k(f'v_add_u32 v{DW+1}, {2*8192-1024}, v{DW+1}')
    k(f'v_add_u32 v{DW+2}, {4*8192-2048}, v{DW}')
    k(f'v_add_u32 v{DW+3}, {4*8192-2048}, v{DW+1}')
    k(f'v_lshlrev_b32 v{OST}, 4, v2')
    k(f'v_add_u32 v{OST+1}, 18432, v{OST}')
    k('s_lshl_b32 s3, s34, 9')
    k(f's_sub_u32 s18, {hx(576*8192)}, s3')
    k('s_lshl_b32 s37, s35, 3')
    k('s_lshl_b32 s36, s33, 1')
    k('s_add_u32 s37, s37, s36')
    k('s_mul_i32 s36, s37, 18432')
    k(f's_add_u32 s36, s36, {hx(WS_H)}')
    k('s_lshl_b32 s38, s33, 12')
    k('s_waitcnt lgkmcnt(0)')
    k.srd_off(16, 's52', 's53', 's3', 's18')
    k.srd_off(20, 's30', 's31', 's36', 2 * 18432)

    def wslot(t):
        return ((t + 3) % 4) * 32768

    def pgroup(t):
        g = [f's_mov_b32 s43, {hx(t*2048)}']
        for h in range(2):
            for rb in range(2):
                r = HR + (t % 4) * 16 + h * 8 + rb * 4
                g.append(f'buffer_load_dwordx4 {q4("v", r)}, v{OST+rb}, s[20:23], s43 offen offset:{1024*h} ;@X{t}')
        for h in range(2):
            kk = 2 * t + h
            g.append(f's_add_u32 m0, s38, {wslot(t) + h*16384}')
            g.append(f's_mov_b32 s42, {hx(kk*262144)}')
            for i in range(4):
                g.append(f'buffer_load_dwordx4 v{DW+i}, s[16:19], s42 offen offset:{1024*i} nt lds ;@W{t}')
        return g
    k('s_lshl_b32 s3, s33, 10')
    k(f's_add_u32 m0, s3, {CSB}')
    k.srd(24, 's30', 's31', 3456)
    k(f'buffer_load_dwordx4 v{OST}, s[24:27], s3 offen lds')
    lines, vq = resolve_vm(pgroup(0))
    emit(lines)
    k(f's_load_dwordx4 s[44:47], s[0:1], {ARG["wg"]}')
    k(f's_load_dwordx2 s[72:73], s[0:1], {ARG["x"]}')
    k(f's_load_dwordx2 s[76:77], s[0:1], {ARG["out"]}')
    k(f's_load_dwordx2 s[28:29], s[0:1], {ARG["wd"]}')
    k('s_lshl_b32 s3, s34, 19')
    k.srd_off(8, 's4', 's5', 's3', 524288)
    k.srd_off(12, 's6', 's7', 's3', 524288)
    k('s_lshl_b32 s3, s34, 7')
    k('s_add_u32 s3, s3, s37')
    k('s_mul_i32 s3, s3, 18432')
    k(f's_add_u32 s3, s3, {hx(WS_PART)}')
    k.srd_off(24, 's30', 's31', 's3', 2 * 18432)
    k(f's_mul_i32 s3, s34, {256*1152}')
    k.srd_off(56, 's54', 's55', 's3', 256 * 1152)
    k('s_mov_b32 s54, s34')
    k('v_and_b32 v3, 15, v2')
    k('v_lshrrev_b32 v4, 4, v2')
    k('v_xor_b32 v5, v3, v4')
    k('v_lshlrev_b32 v6, 8, v3')
    for s in range(4):
        k(f'v_xor_b32 v7, {4*s}, v5')
        k(f'v_lshl_add_u32 v{KA+s}, v7, 4, v6')
    k('s_lshl_b32 s3, s33, 4')
    k('v_add_u32 v6, s3, v4')
    k('v_lshlrev_b32 v6, 8, v6')
    for i in range(4):
        k(f'v_xor_b32 v7, {4*i}, v5')
        k(f'v_lshl_add_u32 v{DK+i}, v7, 4, v6')
    for i in range(2):
        k(f'v_add_u32 v7, {4*i}, v4')
        k('v_lshlrev_b32 v7, 1, v7')
        k('v_xor_b32 v7, v7, v3')
        k(f'v_lshl_add_u32 v{DV+i}, v7, 4, v6')
    k('v_lshrrev_b32 v3, 2, v2')
    k('v_and_b32 v4, 3, v2')
    k('v_lshlrev_b32 v5, 8, v3')
    k('v_lshl_add_u32 v5, v4, 3, v5')
    k('v_add_u32 v5, 0x10000, v5')
    k('v_and_b32 v6, 7, v3')
    for db in range(8):
        k(f'v_xor_b32 v7, {db}, v6')
        k(f'v_lshl_add_u32 v{VA+db}, v7, 5, v5')
    k('v_bfe_u32 v3, v2, 2, 2')
    k('v_lshrrev_b32 v5, 4, v2')
    k('v_lshl_add_u32 v6, v5, 3, v3')
    k('v_lshlrev_b32 v6, 9, v6')
    k('v_lshl_add_u32 v6, v4, 3, v6')
    k('v_and_b32 v5, 1, v5')
    k('v_lshl_add_u32 v5, v5, 2, v3')
    for u in range(8):
        k(f'v_xor_b32 v7, {u}, v5')
        k(f'v_lshl_add_u32 v{WA+u}, v7, 5, v6')
        k(f'v_add_u32 v{WA2+u}, 0x10000, v{WA+u}')
    for i in range(12):
        k(f'v_accvgpr_write_b32 a{192+i}, v{KA+i}')
    lines, vq = resolve_vm(pgroup(1), vq)
    emit(lines)
    k('v_lshrrev_b32 v3, 3, v2')
    k('v_lshl_add_u32 v3, v1, 5, v3')
    k('v_mul_u32_u24 v3, 1152, v3')
    k('v_lshrrev_b32 v4, 4, v2')
    k('v_lshlrev_b32 v4, 1, v4')
    k('v_and_b32 v5, 7, v2')
    k('v_xor_b32 v4, v4, v5')
    k('v_lshl_add_u32 v252, v4, 4, v3')
    k('v_lshrrev_b32 v3, 2, v2')
    k('v_lshlrev_b32 v3, 7, v3')
    k('v_and_b32 v4, 3, v2')
    k('v_lshl_add_u32 v3, v4, 3, v3')
    k('v_bfe_u32 v4, v2, 3, 2')
    k('v_lshl_add_u32 v253, v4, 5, v3')
    k('s_waitcnt lgkmcnt(0)')
    k.srd(60, 's44', 's45', 576 * 9216)
    k.srd(64, 's46', 's47', 576 * 9216)
    k.srd(68, 's28', 's29', 4608 * 1152)
    k('s_mov_b32 s74, 2359296')
    k('s_mov_b32 s75, 0x20000')
    k('s_mov_b32 s78, 2359296')
    k('s_mov_b32 s79, 0x20000')
    k.srd_off(48, 's30', 's31', WS_X1, WS_END - WS_X1)
    PFS = {0: 60, 1: 64, 2: 68}
    k('v_lshlrev_b32 v254, 7, v2')
    k('v_lshlrev_b32 v255, 3, v2')
    k('s_getpc_b64 s[4:5]')
    k('L_attn_pc:')
    k('s_add_u32 s4, s4, 0x3000')
    k('s_addc_u32 s5, s5, 0')
    k('s_mov_b32 s6, L_code_end-L_attn_pc-0x3000')
    k('s_mov_b32 s7, 0x20000')
    k('s_bfe_u32 s3, s2, 0x10003')
    k('s_lshl_b32 s3, s3, 2')
    k('s_add_u32 s3, s3, s33')
    k('s_lshl_b32 s52, s3, 13')
    k('s_add_u32 s52, s52, L_attn_tail-L_attn_pc-0x3000')
    k('s_lshl_b32 s39, s2, 2')
    k('s_add_u32 s39, s39, s33')
    k('s_lshl_b32 s36, s39, 13')
    k('s_mul_i32 s37, s39, 2304')
    k('s_lshr_b32 s3, s2, 3')
    k('s_lshl_b32 s3, s3, 2')
    k('s_add_u32 s3, s3, s33')
    k('s_min_u32 s3, s3, 95')
    k('s_and_b32 s53, s2, 7')
    k('s_mul_i32 s39, s3, 9216')
    k('s_lshl_b32 s34, s53, 7')
    k('s_add_u32 s39, s39, s34')
    k(f's_mul_i32 s34, s53, 73728')
    k('s_lshl_b32 s3, s3, 7')
    k('s_add_u32 s34, s34, s3')
    k('s_mov_b32 s53, 0')
    k('v_and_b32 v4, 31, v2')
    k('v_min_u32 v4, 8, v4')
    k(f'v_lshlrev_b32 v{PF+2}, 10, v4')
    k(f'v_mul_u32_u24 v{PF+3}, {8*73728}, v4')
    if opt.get('pf64', False):
        k('v_and_b32 v4, 32, v2')
        k(f'v_lshl_add_u32 v{PF+2}, v4, 1, v{PF+2}')
        k(f'v_lshl_add_u32 v{PF+3}, v4, 1, v{PF+3}')
    k('s_lshl_b32 s32, s35, 2')
    k('s_add_u32 s32, s32, s33')
    k('s_mul_i32 s32, s32, 4608')
    k('s_mov_b32 s45, 0')
    k(f's_mov_b32 s44, {hx(f2u(SCALE * LOG2E))}')
    k(f's_mov_b32 s46, {hx(f2u(bias))}')

    def kdma(T, tag=None):
        g = [f's_add_u32 m0, s38, {(T % 4)*16384}', f's_mov_b32 s42, {hx(T*16384)}']
        for i in range(4):
            g.append(f'buffer_load_dwordx4 v{DK+i}, s[8:11], s42 offen offset:{1024*i} nt lds ;@K{T % 4}')
        return g

    def vdma(T):
        g = [f's_add_u32 m0, s38, {65536 + (T % 4)*16384}', f's_mov_b32 s42, {hx(T*16384)}']
        for i in range(4):
            g.append(f'buffer_load_dwordx4 v{DV + i % 2}, s[12:15], s42 offen offset:{1024*i} nt lds ;@V{T % 4}')
        return g

    def gemm(nf, rd, mf_of, at_bar, extra=None, first_bar_items=None, LA=6, chain=False):
        pre = []
        for f in range(LA):
            pre += rd(f)
        mf = []
        G = []
        for f in range(nf):
            G.append(len(mf))
            mf += mf_of(f)
        if chain:
            for f in range(0, nf, 2):
                mf[G[f] + 1], mf[G[f + 1]] = mf[G[f + 1]], mf[G[f] + 1]
        rs, ns, ds = [], [], []
        if first_bar_items:
            n = len(first_bar_items)
            for i, x in enumerate(first_bar_items):
                ds.append(It(x, 1, lo=(i * 60) // n - 2, hi=2 + (i * 60) // n, sep=x.startswith('buffer')))
        for f in range(nf):
            g = G[f]
            if (f + LA) % 32 == 0:
                ab = at_bar(f // 32)
                if ab:
                    tags, dm, span = ab
                    rs.append(It(f'VWAIT {tags}', 1, lo=g - 2, hi=g))
                    b = It('s_barrier', 1, lo=g - 2, hi=g)
                    rs.append(b)
                    n = len(dm)
                    nb = sum(x.startswith('buffer') for x in dm)
                    ib = 0
                    for i, x in enumerate(dm):
                        p = g + 3 + (ib * span) // nb
                        isb = x.startswith('buffer')
                        ds.append(It(x, 1, lo=p - 2 if isb else g, hi=p + 3 if isb else p + 1, sep=isb, after=[b]))
                        ib += isb
            if f + LA < nf:
                for i, x in enumerate(rd(f + LA)):
                    rs.append(It(x, 1, lo=g - 2 + i, hi=g + i + 2, sep=True))
            nw = opt.get('qwait', 2)
            if f % nw == 0 and f > 0:
                r = KF + 4 * (f % 16)
                ns.append(It(f'NEED a[{r}:{r+4*nw-1}]', 1, lo=g - 1, hi=g - 1))
        streams = [ns, rs, ds] + (extra(G) if extra else [])
        return pre + sched(mf, streams, stats=stats)

    k('s_and_b32 s3, s2, 7')
    k('s_lshl_b32 s3, s3, 1')
    k('s_bfe_u32 s36, s2, 0x10003')
    k('s_add_u32 s3, s3, s36')
    k('s_and_b32 s36, s2, 0xf0')
    k('s_add_u32 s3, s3, s36')
    k('s_mov_b32 s55, s3')
    k('s_lshl_b32 s40, s3, 6')
    k('s_mul_i32 s41, s3, 36864')
    k('s_cmp_lt_u32 s3, 144')
    k('s_cselect_b32 s40, s40, 0x1000000')
    k('v_lshrrev_b32 v3, 2, v0')
    k('v_mul_u32_u24 v3, 9216, v3')
    k('v_lshrrev_b32 v6, 4, v2')
    k('v_and_b32 v7, 2, v6')
    k('v_and_b32 v4, 3, v2')
    k('v_xor_b32 v4, v4, v7')
    k('v_lshl_add_u32 v3, v4, 4, v3')
    k('v_add_u32 v3, s40, v3')
    k('v_lshrrev_b32 v4, 3, v0')
    k('v_mul_u32_u24 v4, 1152, v4')
    k('v_lshlrev_b32 v6, 1, v6')
    k('v_and_b32 v7, 7, v2')
    k('v_xor_b32 v6, v6, v7')
    k('v_lshl_add_u32 v4, v6, 4, v4')
    k('v_add_u32 v4, s41, v4')
    k('v_accvgpr_write_b32 a205, v3')
    k('v_accvgpr_write_b32 a206, v4')
    k('s_lshl_b32 s36, s33, 10')
    M0, M1 = PF, PF + 1
    ID, QS = 248, 216
    c = SCALE * LOG2E
    chi = (f2u(c) + 0x8000) >> 16
    clo = (f2u(c - struct.unpack('<f', struct.pack('<I', chi << 16))[0]) + 0x8000) >> 16
    k('v_and_b32 v3, 1, v2')
    k('v_lshlrev_b32 v3, 4, v3')
    k('v_mov_b32 v4, 0xffff')
    k('v_lshlrev_b32 v3, v3, v4')
    k('v_lshrrev_b32 v4, 4, v2')
    k('v_bfe_u32 v5, v2, 1, 3')
    k('v_lshlrev_b32 v6, 1, v4')
    k('v_or_b32 v7, 1, v6')
    k('v_cmp_eq_u32 vcc, v5, v6')
    k('v_cmp_eq_u32 s[40:41], v5, v7')
    k('s_mov_b32 s47, 0x3f803f80')
    k(f'v_cndmask_b32 v{M0}, 0, v3, vcc')
    k(f'v_cndmask_b32 v{M1}, 0, v3, s[40:41]')
    k('v_and_b32 v6, 3, v2')
    k('v_cmp_eq_u32 vcc, 0, v6')
    k('v_mov_b32 v7, s47')
    k('s_nop 0')
    k('v_cndmask_b32 v6, 0, v7, vcc' if opt.get('ones4', True) else 'v_mov_b32 v6, v7')
    k('v_accvgpr_write_b32 a207, v6')
    k(f'v_and_b32 v6, s47, v{M0}')
    k(f'v_and_b32 v7, s47, v{M1}')
    for i, r in enumerate(('v6', 'v7', '0', '0', 'v6', 'v7')):
        k(f'v_accvgpr_write_b32 a{ID+i}, {r}')
    k('v_bfe_u32 v6, v2, 2, 1')
    k('v_lshlrev_b32 v6, 1, v6')
    k('v_sub_u32 v4, v4, v6')
    k('v_bfe_u32 v6, v2, 3, 1')
    k('v_and_b32 v5, 1, v5')
    k('v_lshl_add_u32 v5, v6, 1, v5')
    k('v_lshl_add_u32 v5, v4, 2, v5')
    k(f'v_and_b32 v6, {hx(chi * 0x10001)}, v3')
    k(f'v_and_b32 v7, {hx(clo * 0x10001)}, v3')
    for code in range(8):
        k(f'v_cmp_eq_u32 vcc, {code}, v5')
        k('s_nop 1')
        k('v_cndmask_b32 v3, 0, v6, vcc')
        k('v_cndmask_b32 v4, 0, v7, vcc')
        k(f'v_accvgpr_write_b32 a{QS+code}, v3')
        k(f'v_accvgpr_write_b32 a{QS+8+code}, v4')
    k('v_lshrrev_b32 v1, 4, v2')
    k('v_lshlrev_b32 v1, 4, v1')
    k('v_accvgpr_write_b32 a254, v0')
    k(f'v_add_u32 v{TMP2}, {CSB + 2304}, v1')
    k('v_lshlrev_b32 v1, 1, v1')
    k(f'v_add_u32 v1, {CSB}, v1')
    k('v_mov_b32 v4, 0')
    k('v_mov_b32 v5, 0')
    lines, vq = resolve_vm(['VWAIT W0', 's_barrier'], vq)
    emit(lines)
    k.stamp('h')

    def prd(f):
        kk, u = f // 16, f % 16
        t = kk // 2
        base = wslot(t) + (kk % 2) * 16384 + (u // 8) * 256
        a = (WA if base < 65536 else WA2) + u % 8
        base %= 65536
        r = KF + 4 * (f % 16)
        return [f'ds_read_b64_tr_b16 {q2("a", r)}, v{a} offset:{base}',
                f'ds_read_b64_tr_b16 {q2("a", r+2)}, v{a} offset:{base + 2048}']

    def pmf(f):
        kk, u = f // 16, f % 16
        t = kk // 2
        out = []
        for rb in range(2):
            acc = QA + ((u // 8) * 2 + rb) * 32 + (u % 8) * 4
            b = HR + (t % 4) * 16 + (kk % 2) * 8 + rb * 4
            c = '0' if kk == 0 else q4('v', acc)
            out.append(f'{MF} {q4("v", acc)}, {q4("a", KF + 4*(f % 16))}, {q4("v", b)}, {c}')
        return out

    def pbar(t):
        if t + 3 <= 8:
            return f'W{t+1}', pgroup(t + 3), opt.get('qspan', 76)
        if t == 6:
            return 'W7', kdma(0) + kdma(1), 50
        if t == 7:
            return 'W8', kdma(2), 30
        return 'K0', vdma(0) + vdma(1), 9
    CQ, SQ, DG = 8, 12, 2
    OUT = [28, 40]

    def xreg(kk, rb):
        return HR + ((kk // 2) % 4) * 16 + (kk % 2) * 8 + rb * 4

    def m1(kk, rb):
        return [f'{MF} {q4("v", OUT[T])}, {q4("v", DG + 2*T)}, {q4("v", xreg(kk, rb))}, 0' for T in range(2)]

    def m2(kk, rb):
        return [f'{MF} {q4("v", OUT[T])}, {q4("a", ID + 2*T)}, {q4("v", xreg(kk, rb))}, {q4("v", SQ + 4*T)}' for T in range(2)]

    def mcvt(kk, rb):
        return [f'v_cvt_pk_bf16_f32 v{xreg(kk, rb) + d}, v{OUT[d // 2] + 2*(d % 2)}, v{OUT[d // 2] + 2*(d % 2) + 1}' for d in range(4)]

    def cread(kk):
        return [f'ds_read_b128 {q4("v", CQ)}, v{TMP2} offset:{kk*64}']

    def sread(kk):
        return [f'ds_read_b128 {q4("v", SQ + 4*T)}, v1 offset:{kk*128 + T*16}' for T in range(2)]

    def diag():
        return [f'v_and_b32 v{DG + (0, 1, 4, 5)[d]}, v{CQ + d}, v{(M0, M1)[d % 2]}' for d in range(4)]
    MPOS = {0: (m1, 0), 4: (m2, 0), 8: (m1, 1), 12: (m2, 1)}

    def pmf2(f):
        kk, u = f // 16, f % 16
        out = pmf(f)
        if u in MPOS and kk + 1 < 18:
            fn, rb = MPOS[u]
            out += fn(kk + 1, rb)
        return out

    def mstreams(G):
        cv, tb = [], []
        for kk in range(1, 18):
            f0 = 16 * (kk - 1)
            for u in (0, 4, 8, 12):
                for i, x in enumerate(mcvt(kk, MPOS[u][1])):
                    cv.append(It(x, 1, lo=G[f0 + u + 2] + 1, hi=G[f0 + u + 3] + (i // 2) - (1 if u == 12 else 0)))
            if kk + 1 < 18:
                tb.append(It(cread(kk + 1)[0], 1, lo=G[f0 + 2], hi=G[f0 + 6]))
                for i, x in enumerate(diag()):
                    tb.append(It(x, 1, lo=G[f0 + 9], hi=G[f0 + 13] + i // 2))
                if (kk + 1) % 2 == 0:
                    tb.append(It(f'VWAIT X{(kk+1)//2}', 1, lo=G[f0 + 13], hi=G[f0 + 16]))
                for x in sread(kk + 1):
                    tb.append(It(x, 1, lo=G[f0 + 14] + 1, hi=G[f0 + 17] + 1))
        return [cv, tb]
    body = gemm(288, prd, pmf2, pbar, extra=mstreams, first_bar_items=pgroup(2), LA=opt.get('qla', 6))
    OUT2 = [QA, QA + 4]
    NP = 2 * opt.get('qla', 6)
    first = cread(0) + sread(0) + body[:NP-2] + diag() + body[NP-2:NP] + cread(1) + ['s_nop 0'] + m1(0, 0)
    sw = lambda L: [x.replace(q4('v', OUT[0]), q4('v', OUT2[0])).replace(q4('v', OUT[1]), q4('v', OUT2[1])) for x in L]
    cv2 = [f'v_cvt_pk_bf16_f32 v{xreg(0, 1) + d}, v{QA + 2*d}, v{QA + 2*d + 1}' for d in range(4)]
    first += sw(m1(0, 1)) + ['s_nop 5'] + mcvt(0, 0) + cv2 + m2(0, 0) + sw(m2(0, 1)) + diag() + ['s_nop 1'] + mcvt(0, 0) + cv2
    first += sread(1)
    lines = first + body[NP:]
    lines, vq = resolve_vm(lines, vq)
    lines, _ = insert_lgkm(lines)
    emit(lines)
    k.stamp('h')

    def sreg(buf, qb, kb):
        return S + buf * 32 + qb * 8 + kb * 4

    ORD = opt.get('order', 'pC')

    def kmap(u):
        return (u % 2, u // 2) if ORD in ('qB', 'pB') else (u // 4, u % 4)

    def kread(j, u):
        T, ht = j // 2, j % 2
        kb, s = kmap(u)
        off = (T % 4) * 16384 + (ht * 2 + kb) * 4096
        return [f'ds_read_b128 {q4("a", KF + 4*u)}, v{KA + s} offset:{off}']

    def vread(j, u):
        T, ht = j // 2, j % 2
        off = (T % 4) * 16384 + ht * 8192
        return [f'ds_read_b64_tr_b16 {q2("a", VF + 4*u)}, v{VA + u} offset:{off}',
                f'ds_read_b64_tr_b16 {q2("a", VF + 4*u + 2)}, v{VA + u} offset:{off + 4096}']

    def qk1(j, u, qb, czero=False):
        kb, s = kmap(u)
        d = sreg(j % 2, qb, kb)
        if s == 0:
            c = '0' if czero else q4('v', NM + 4 * qb)
        else:
            c = q4('v', d)
        return f'{MF} {q4("v", d)}, {q4("a", KF + 4*u)}, {q4("v", Q + qb*16 + s*4)}, {c}'

    USLOT = [0, 1, 4, 2, 5, 3, 6, 7]

    def wodma(U):
        src = (U % 2) * 128 * 1152 + (U // 2) * 128
        g = [f's_add_u32 m0, s38, {USLOT[U % 8]*16384}', f's_mov_b32 s42, {hx(src)}']
        for i in range(4):
            g.append(f'buffer_load_dwordx4 v{DW+i}, s[56:59], s42 offen offset:{1024*i} {opt.get("wof", "")} lds ;@U{U}')
        return g

    def localmax(buf, qb):
        r = sreg(buf, qb, 0)
        out = [f'v_max3_f32 v{TMP+qb}, v{r}, v{r+1}, v{MX+qb}']
        for i in range(2, 8, 2):
            out.append(f'v_max3_f32 v{TMP+qb}, v{r+i}, v{r+i+1}, v{TMP+qb}')
        return out

    def crossmax():
        out = []
        for op in ('v_permlane16_swap_b32', 'v_permlane32_swap_b32'):
            for qb in range(4):
                out.append(f'v_mov_b32 v{TMP+4+qb}, v{TMP+qb}')
            out.append('s_nop 0')
            for qb in range(4):
                out.append(f'{op} v{TMP+qb}, v{TMP+4+qb}')
            for qb in range(4):
                out.append(f'v_max_f32 v{TMP+qb}, v{TMP+qb}, v{TMP+4+qb}')
        return out
    order = [2, 0, 1, 3]
    misc = [f'v_accvgpr_read_b32 v{KA+i}, a{192+i}' for i in range(12)]
    for u in range(8):
        misc += kread(0, u)
    misc2 = []
    for i in range(4):
        misc2 += [f'v_accvgpr_read_b32 v{ONE+i}, a207', f'v_mov_b32 v{MX+i}, 0xff800000']
    misc2 += ['v_accvgpr_read_b32 v0, a205', 'v_accvgpr_read_b32 v2, a206']
    misc2.append(f'v_mov_b32 v{DW}, v252')
    for i in range(1, 4):
        misc2.append(f'v_add_u32 v{DW+i}, {i*(8*1152-1024)}, v252')
    for nbl in range(4):
        misc2.append(f'v_xor_b32 v{WA+nbl}, {nbl*32}, v253')

    def ucvt(qb, s):
        a, d = QA + qb * 32 + s * 8, Q + qb * 16 + s * 4
        return [f'v_cvt_pk_bf16_f32 v{d+j}, v{a+2*j}, v{a+2*j+1}' for j in range(4)]

    def umf(qb, s):
        a, d = QA + qb * 32 + s * 8, Q + qb * 16 + s * 4
        return [f'{MF} {q4("v", a + 4*(j % 2))}, {q4("a", QS + 4*j)}, {q4("v", d)}, {"0" if j < 2 else q4("v", a + 4*(j % 2))}'
                for j in range(4)]
    mf, upos, qpos = [], {}, {}
    for i, qb in enumerate(order):
        for s_ in range(4):
            upos[qb, s_] = len(mf)
            mf += umf(qb, s_)
        if i >= 1:
            qpos[order[i - 1]] = len(mf)
            mf += [qk1(0, u, order[i - 1], True) for u in range(8)]
    qpos[3] = len(mf)
    mf += [qk1(0, u, 3, True) for u in range(8)]
    pre_s, post_s = [], []
    units = [(qb, s_) for qb in order for s_ in range(4)]
    for n, (qb, s_) in enumerate(units):
        p = upos[qb, s_]
        if n >= 1:
            pre_s += [It(x, 1, lo=p - 8, hi=p - 3) for x in ucvt(qb, s_)]
        post_s += [It(x, 1, lo=p + 7, hi=min(p + 12, qpos[qb] - 3 if qb == 2 else qpos[qb] + s_ - 3)) for x in ucvt(qb, s_)]
    fin = localmax(0, 2) + localmax(0, 0) + localmax(0, 1)
    oth = [It(x, 1, lo=0, hi=10 + i) for i, x in enumerate(misc[8:])] + [It(x, 1, lo=0, hi=70) for x in misc2]
    oth += [It(x, 1, lo=qpos[1], hi=200) for x in fin[:8]] + [It(x, 1, lo=qpos[3] + 5, hi=200) for x in fin[8:]]
    lines = misc[:8] + ucvt(*units[0]) + ['s_nop 1'] + sched(mf, [pre_s, post_s, oth], stats=stats)
    lines, _ = insert_lgkm(lines)
    emit(lines)
    k('s_branch L_attn_go')
    k('L_attn_entry:')
    lines = []
    for u in range(8):
        lines += kread(0, u)
    for qb in order:
        for u in range(8):
            lines.append(qk1(0, u, qb, True))
    lines += fin
    lines, _ = insert_lgkm(lines)
    emit(lines)
    k('L_attn_go:')
    lines = []
    for u in range(4):
        lines += kread(1, u)
    lines.append('s_nop 3')
    lines += localmax(0, 3) + crossmax()
    for qb in range(4):
        lines.append(f'v_add_f32 v{TMP+qb}, s46, v{TMP+qb}')
    for qb in range(4):
        for i in range(4):
            lines.append(f'v_sub_f32 v{NM+4*qb+i}, 0, v{TMP+qb}')
    for kb in range(2):
        for qb in range(4):
            for i in range(4):
                r = sreg(0, qb, kb) + i
                lines.append(f'v_sub_f32 v{r}, v{r}, v{TMP+qb}')
    lines, q = insert_lgkm(lines)
    emit(lines)
    k.stamp('h')
    k.stamp('l')
    k(f's_mov_b32 s40, {opt.get("iters", 7)}')
    k(f's_mov_b32 s41, {hx(2*16384)}')

    def step(j, extra=None):
        do_qk = j + 1 <= 63
        do_sm = j <= 63
        do_pv = j >= 1
        T = j // 2
        mf = []
        gs = []
        for u in range(8):
            gs.append(len(mf))
            pb = P + ((j - 1) % 2) * 16
            if do_qk:
                mf += [qk1(j + 1, u, qb) for qb in range(4)]
            if do_pv and j == 64 and u == 0:
                for qb in range(4):
                    mf.append(f'{MF} {q4("v", L + 4*qb)}, {q4("v", ONE)}, {q4("v", pb + qb*4)}, {q4("v", L + 4*qb)}')
            if do_pv:
                for qb in range(4):
                    o = O + qb * 32 + u * 4
                    mf.append(f'{MF} {q4("a", o)}, {q4("a", VF + 4*u)}, {q4("v", pb + qb*4)}, {"0" if j == 1 else q4("a", o)}')
                if u % 2 == 0 and j != 64:
                    qb = u // 2
                    mf.append(f'{MF} {q4("v", L + 4*qb)}, {q4("v", ONE)}, {q4("v", pb + qb*4)}, {"0" if j == 1 else q4("v", L + 4*qb)}')
        n = len(mf)
        gs.append(n)
        quad = ORD[0] == 'q' and do_qk and do_pv
        if ORD[0] == 'p' and do_qk and do_pv:
            for u in range(0, 8, 2):
                blk = mf[gs[u]:gs[u + 2]]
                qa, pa, one, qb_, pb_ = blk[0:4], blk[4:8], blk[8:9], blk[9:13], blk[13:17]
                qq = qa + qb_ if ORD == 'pair' else [x for t in zip(qa, qb_) for x in t]
                pp = [x for t in zip(pa, pb_) for x in t]
                pp[u:u] = one
                mf[gs[u]:gs[u + 2]] = qq + pp
        mix = ORD == 'mC' and do_qk and do_pv
        if mix:
            for h in range(2):
                g4 = [mf[gs[u]:gs[u + 1]] for u in range(4 * h, 4 * h + 4)]
                out = []
                for p in range(2):
                    out += [g[qb] for qb in (2 * p, 2 * p + 1) for g in g4]
                    pp = [x for t in zip(g4[2 * p][4:8], g4[2 * p + 1][4:8]) for x in t]
                    pp[4 * h + 2 * p:4 * h + 2 * p] = [g4[2 * p][8]]
                    out += pp
                mf[gs[4 * h]:gs[4 * h + 4]] = out
        if quad:
            for h in range(2):
                g4 = [mf[gs[u]:gs[u + 1]] for u in range(4 * h, 4 * h + 4)]
                qq = sum((g[:4] for g in g4), []) if ORD == 'qA' else [g[qb] for qb in range(4) for g in g4]
                pp = []
                for qb in range(4):
                    pp += [g[4 + qb] for g in g4]
                    if qb // 2 == h:
                        pp.append(g4[2 * (qb % 2)][8])
                mf[gs[4 * h]:gs[4 * h + 4]] = qq + pp
        es, cs, rs, ns, ds = [], [], [], [], []
        if do_sm:
            b = j % 2
            e = 0
            for kb in range(2):
                for qb in range(4):
                    for h in range(2):
                        s0 = sreg(b, qb, kb) + 2 * h
                        t0 = TMP + 2 * ((e // 2) % 4)
                        pair = []
                        for i in range(2):
                            tg = (e * (n - 2)) // 32
                            it = It(f'v_exp_f32 v{t0+i}, v{s0+i}', 2, lo=tg - 1, hi=tg + 1,
                                    after=[cs[e // 2 - 4]] if e >= 8 else None)
                            es.append(it)
                            pair.append(it)
                            e += 1
                        cs.append(It(f'v_cvt_pk_bf16_f32 v{P + b*16 + qb*4 + kb*2 + h}, v{t0}, v{t0+1}', 1,
                                     hi=tg + 6, after=pair))
        bar = None
        late_v = []
        for u in range(8):
            if u == 4 and j % 2 == 0 and j <= 62:
                rs.append(It(f'VWAIT K{(T+1) % 4},V{T % 4}', 1, lo=gs[4] - 1, hi=gs[4] + 1))
                bar = It('s_barrier', 1, lo=gs[4] - 1, hi=gs[4] + 1)
                rs.append(bar)
            rd = []
            if u < 4:
                if do_qk:
                    rd += kread(j + 1, u + 4)
                if do_pv:
                    rd += vread(j - 1, u + 4)
            else:
                if j + 2 <= 63:
                    rd += kread(j + 2, u - 4)
                if j <= 63:
                    rd += vread(j, u - 4)
            w = gs[u + 1] - gs[u]
            if mix:
                late_v += rd
                if u % 4 == 3:
                    g0 = gs[u - 3]
                    kr = [x for x in late_v if 'b128' in x]
                    vr = [x for x in late_v if 'b128' not in x]
                    seq = kr[:2] + vr[:2] + kr[2:] + vr[2:]
                    for i, x in enumerate(seq):
                        tg = g0 + (i * 32) // len(seq)
                        rs.append(It(x, 1, lo=tg, hi=tg + 3))
                    late_v = []
                    f = u - 3
                    ns.append(It(f'NEED a[{VF+4*f}:{VF+4*f+15}]', 1, lo=g0 + 6, hi=g0 + 7))
                    f = (u + 1) % 8
                    ns.append(It(f'NEED a[{KF+4*f}:{KF+4*f+15}]', 1, lo=gs[u + 1] - 2, hi=gs[u + 1] - 1))
                continue
            if quad:
                g0 = gs[u - u % 4]
                for x in rd:
                    if 'b128' in x:
                        rs.append(It(x, 1, lo=g0 + 3 * (u % 4), hi=g0 + 3 * (u % 4) + 4))
                    else:
                        late_v.append(x)
                if u % 4 == 3:
                    f = u - 3
                    rs.append(It(f'NEED a[{VF+4*f}:{VF+4*f+15}]', 1, lo=g0 + 14, hi=g0 + 15))
                    for i, x in enumerate(late_v):
                        rs.append(It(x, 1, lo=g0 + 15 + 2 * i, hi=g0 + 17 + 2 * i))
                    late_v = []
                    f = (u + 1) % 8
                    ns.append(It(f'NEED a[{KF+4*f}:{KF+4*f+15}]', 1, lo=gs[u + 1] - 2, hi=gs[u + 1] - 1))
                continue
            for i, x in enumerate(rd):
                rs.append(It(x, 1, lo=gs[u] - (2 if u else 0), hi=gs[u] + ((i + 1) * w) // len(rd) - 1, sep=True))
            if u % 2 == 1:
                f = (u + 1) % 8
                ns.append(It(f'NEED a[{KF+4*f}:{KF+4*f+7}], a[{VF+4*f}:{VF+4*f+7}]', 1, lo=gs[u + 1] - 2, hi=gs[u + 1] - 1))
        special = {58: 0, 60: 1, 61: 2, 62: 3}
        dm = []
        if j in special:
            dm = wodma(special[j])
        elif j < 63:
            if j % 2 == 0:
                dm = [f's_add_u32 m0, s38, {((T+3) % 4)*16384}', 's_add_u32 s41, s41, 16384']
                dm += [f'buffer_load_dwordx4 v{DK+i}, s[8:11], s41 offen offset:{1024*i} nt lds ;@K{(T+3) % 4}' for i in range(4)]
            else:
                dm = [f's_add_u32 m0, s38, {65536 + ((T+2) % 4)*16384}', f's_sub_u32 s42, s41, {16384 if j < 58 else 0}']
                dm += [f'buffer_load_dwordx4 v{DV + i % 2}, s[12:15], s42 offen offset:{1024*i} nt lds ;@V{(T+2) % 4}' for i in range(4)]
                if 2 <= j <= 57 and opt.get('pf_moe', True):
                    w = ((j - 2) % 8) // 2
                    if w < 2:
                        dm.append(f'buffer_load_dword v{PF}, v{PF+2}, s[{PFS[w]}:{PFS[w]+3}], s39 offen')
                    elif w == 2:
                        dm.append(f'buffer_load_dword v{PF}, v{PF+3}, s[{PFS[w]}:{PFS[w]+3}], s34 offen')
                        dm.append(f's_add_u32 s39, s39, {96*9216}')
                        dm.append(f's_add_u32 s34, s34, {96*128}')
                    else:
                        dm.append(f'buffer_load_dwordx2 {q2("v", PF)}, v255, s[56:59], s32 offen')
                        dm.append(f'buffer_load_dwordx2 {q2("v", PF)}, v255, s[56:59], s32 offen offset:512')
                        dm.append('s_add_u32 s32, s32, 768')
        if j % 2 == 0 and 2 <= j <= 56:
            w = (j % 8) // 2
            pf = []
            if w == 0 and opt.get('pf_code', True):
                pf = [f'buffer_load_dword v{PF}, v254, s[4:7], s52 offen']
            elif w == 1 and opt.get('pf_ws', 'no') == 'rd':
                pf = [f'buffer_load_dword v{PF}, v254, s[48:51], s36 offen', f's_add_u32 s36, s36, {8 << 20}']
            elif w == 2 and opt.get('pf_x', True):
                pf = [f'buffer_load_dwordx2 {q2("v", PF)}, v255, s[72:75], s37 offen']
            elif w == 3 and opt.get('pf_x', True):
                pf = [f'buffer_load_dwordx2 {q2("v", PF)}, v255, s[76:79], s37 offen', 's_add_u32 s37, s37, 384']
            if opt.get('pf_ws', 'no') == 'wr':
                pf.append(f'buffer_store_dwordx4 {q4("v", ONE)}, v{OST}, s[24:27], s53 offen sc1')
                if w % 2:
                    pf.append(f'buffer_store_dwordx4 {q4("v", ONE)}, v{OST}, s[24:27], s53 offen offset:1024 sc1')
                pf.append(f's_add_u32 s53, s53, {2048 if w % 2 else 1024}')
            for i, x in enumerate(pf):
                ds.append(It(x, 2 if x.startswith(('buffer', 'global')) else 1, lo=4 + 6 * i, hi=12 + 6 * i))
        ws_ = []
        if 58 <= j <= 62:
            if j % 2 == 0:
                items = {58: wdma('gu', 8) + wdma('d', 4), 60: wdma('d', 5) + wdma('d', 6), 62: wdma('d', 7) + wdma('d', 8)}[j]
                for i, x in enumerate(items):
                    tg = 2 + (i * 28) // len(items)
                    ds.append(It(x, 2 if x.startswith('buffer') else 1, lo=tg - 2, hi=tg + 3, sep=x.startswith('buffer')))
                items = wload('gu', {58: 0, 60: 3, 62: 6}[j])
            else:
                items = {59: wload('gu', 1) + wload('gu', 2), 61: wload('gu', 4) + wload('gu', 5)}[j]
            for i, x in enumerate(items):
                tg = 4 + (i * 58) // len(items)
                ws_.append(It(x, 2 if x.startswith('buffer') else 1, lo=tg - 3, hi=tg + 4))
        if dm:
            lo0 = gs[4] + 2 if j % 2 == 0 else 0
            nb = sum(x.startswith('buffer') for x in dm)
            ib = 0
            for x in dm:
                tg = lo0 + ((n - 1 - lo0) * (ib + 0.6)) // nb
                isb = x.startswith('buffer')
                ds.append(It(x, 2 if isb else 1, lo=(tg - 3 if isb else lo0), hi=min(n - 1, tg + 3), sep=isb,
                             after=[bar] if (bar and isb) else None))
                ib += isb
        return sched(mf, [ns, es, rs, cs, ds, ws_] + (extra or []), stats=stats)

    l0, vq = resolve_vm(step(0) + step(1), vq)
    l0, q = insert_lgkm(l0, q)
    emit(l0)
    loopctl = [It('s_sub_u32 s40, s40, 1', 1, lo=40, hi=66)]
    body = []
    for j in range(2, 10):
        body += step(j)
    res = []
    for rep in range(2):
        o, vq = resolve_vm(body, vq)
        o, q = insert_lgkm(o, q)
        res.append(o)
    assert len(res[0]) == len(res[1]), 'loop not in steady state'
    for i, (a, b) in enumerate(zip(*res)):
        if a != b:
            ma, mb = re.match(r's_waitcnt (\w+)\((\d+)\)', a), re.match(r's_waitcnt (\w+)\((\d+)\)', b)
            assert ma and mb and ma.group(1) == mb.group(1), (a, b)
            res[0][i] = f's_waitcnt {ma.group(1)}({min(int(ma.group(2)), int(mb.group(2)))})'
    k.stamp('l')
    k('.p2align 6')
    k('L_attn_loop:')
    emit(res[0])
    k('s_sub_u32 s40, s40, 1')
    k('s_cmp_lg_u32 s40, 0')
    k('s_cbranch_scc1 L_attn_loop')
    k('L_attn_tail:')
    k.stamp('l')
    tail = []
    for j in range(58, 64):
        tail += step(j)
    tail.append('s_nop 1')
    OF = S
    ACC = P
    PK = NM
    RI = TMP
    norm = []
    for qb in range(4):
        norm.append(It(f'v_rcp_f32 v{RI+qb}, v{L+4*qb}', 2, lo=12))
    norm.append(It(f'v_max3_f32 v{TMP+4}, v{L}, v{L+4}, v{L+8}', 1))
    norm.append(It(f'v_max_f32 v{TMP+4}, v{TMP+4}, v{L+12}', 1))
    tv = [4, 5, 6, 7, 252, 253, PF, PF + 1]
    late = []
    for db in range(8):
        blk = []
        for half in range(2):
            for qb in (2 * half, 2 * half + 1):
                for i in range(4):
                    blk.append(f'v_accvgpr_read_b32 v{tv[(qb % 2)*4 + i]}, a{O + qb*32 + db*4 + i}')
            for qb in (2 * half, 2 * half + 1):
                for i in range(4):
                    t = tv[(qb % 2)*4 + i]
                    if db < 1:
                        blk.append(f'v_mul_f32 v{t}, v{t}, v{RI+qb}')
                    elif i % 2 == 0:
                        sel = 'op_sel_hi:[1,0]' if qb % 2 == 0 else 'op_sel:[0,1]'
                        blk.append(f'v_pk_mul_f32 v[{t}:{t+1}], v[{t}:{t+1}], v[{RI + qb - qb % 2}:{RI + qb - qb % 2 + 1}] {sel}')
            for qb in (2 * half, 2 * half + 1):
                for i in range(2):
                    blk.append(f'v_cvt_pk_bf16_f32 v{OF + qb*16 + db*2 + i}, v{tv[(qb % 2)*4 + 2*i]}, v{tv[(qb % 2)*4 + 2*i + 1]}')
        if db < 1:
            norm += [It(x, 1, lo=4 + 4 * (db + 1) + 7) for x in blk]
        else:
            late += blk
    tail += step(64, extra=[norm])
    tail += late
    A1, A2 = WA + 4, L + 8
    LA = opt.get('ola', 7)

    def ord_(f):
        nbl, ks = (f // 8) % 4, f % 8
        r = KF + 4 * (f % 16)
        a = (A1 if ks < 4 else A2) + nbl
        return [f'ds_read_b64_tr_b16 {q2("a", r)}, v{a} offset:{(ks % 4)*4096}',
                f'ds_read_b64_tr_b16 {q2("a", r+2)}, v{a} offset:{(ks % 4)*4096 + 2048}']

    def omf(f):
        nb, ks = f // 8, f % 8
        out = []
        for rb in range(2):
            acc = ACC + ((nb // 2) % 2) * 16 + (nb % 2) * 8 + rb * 4
            b = OF + ((ks // 4) * 2 + rb) * 16 + (ks % 4) * 4
            c = '0' if ks == 0 else q4('v', acc)
            out.append(f'{MF} {q4("v", acc)}, {q4("a", KF + 4*(f % 16))}, {q4("v", b)}, {c}')
        return out

    def flush_pair(par, so):
        out = []
        for rb in range(2):
            for h in range(2):
                a = ACC + par * 16 + h * 8 + rb * 4
                for i in range(2):
                    out.append(f'v_cvt_pk_bf16_f32 v{PK + par*8 + rb*4 + h*2 + i}, v{a+2*i}, v{a+2*i+1}')
            out.append(f'buffer_store_dwordx4 {q4("v", PK + par*8 + rb*4)}, v{OST+rb}, s[24:27], {so} offen sc1')
        return out
    ZR = L
    tail += [f'v_mov_b32 v{ZR+i}, 0' for i in range(4)]
    for nbl in range(4):
        tail += [f'v_mov_b32 v{A1+nbl}, v{WA+nbl}', f'v_add_u32 v{A2+nbl}, 0x4000, v{WA+nbl}']
    nanmf = [f'{MF} {q4("v", L+4)}, {q4("v", ZR)}, {q4("v", OF + 4*i)}, {"0" if i == 0 else q4("v", L+4)}' for i in range(16)]
    pk = sum(USLOT[(2 * (t + 2) + h) % 8] << (8 * t + 4 * h) for t in range(4) for h in range(2))
    st1 = [It('VWAIT U0,U1', 1), It('s_barrier', 1)] + [It(x, 1, lo=2 + i, sep=True) for i, x in enumerate(sum((ord_(f) for f in range(LA)), []))]
    st2 = [It(x, 1, lo=1) for x in wload('gu', 7) + sum((wload('d', b) for b in range(4)), [])]
    st2 += [It(x, 1) for x in (f's_mov_b32 s50, {hx(pk)}', f's_mov_b32 s51, {hx(pk)}', 's_movk_i32 s41, 0x100',
                               's_mov_b32 s43, 0x100000', 's_mov_b32 s46, 0', 's_mov_b32 s48, s38',
                               f's_mov_b32 s52, {USLOT[2]*16384}', f's_mov_b32 s53, {USLOT[3]*16384}')]
    tail += sched(nanmf, [st1, st2], stats=stats)
    tail += [f's_mov_b32 s3, {hx(f2u(2.0**100))}', f'v_cmp_ngt_f32 vcc, s3, v{TMP+4}', 's_lshl_b32 s3, s33, 2',
             's_add_u32 s3, s3, 0x20000', 'v_mov_b32 v3, s3', 's_add_u32 s3, s36, 0x8000', f'v_add_u32 v252, s3, v{OST}',
             'v_add_u32 v253, 0x10000, v252', 's_nop 0', f'v_cmp_u_f32 s[28:29], v{L+4}, v{L+4}', 's_nop 0',
             's_or_b64 s[28:29], s[28:29], vcc', 's_cselect_b32 s3, 1, 0', 'v_mov_b32 v4, s3', 'ds_write_b32 v3, v4',
             'v_mov_b32 v3, 0x20000', 'RETAG U2,U3 A', f'NEED a[{KF}:{KF+15}]']
    o, vq = resolve_vm(tail, vq)
    o, q = insert_lgkm(o, q)
    emit(o)
    k.stamp()
    mf = []
    for f in range(0, 32, 2):
        x, y = omf(f), omf(f + 1)
        mf += [x[0], y[0], x[1], y[1]]
    rs, ns = [], []
    for f in range(32):
        if f + LA == 32:
            rs += [It('VWAIT B', 1, lo=2*f - 2, hi=2*f - 1), It('s_barrier', 1, lo=2*f - 2, hi=2*f)]
        for i, x in enumerate(ord_(f + LA)):
            rs.append(It(x, 1, lo=2*f + i - 1, hi=2*f + i, sep=not (f + LA == 32 and i == 0)))
        if f % 4 == 3:
            r = KF + 4 * ((f + 1) % 16)
            ns.append(It(f'NEED a[{r}:{r+15}]', 1, lo=2*f + 1, hi=2*f + 1))
    dm = []
    for h in range(2):
        dm += [f's_bfe_u32 s{28+h}, s50, {hx((3 << 16) | (4*h))}', f's_lshl_b32 s{28+h}, s{28+h}, 14', f's_add_u32 m0, s{28+h}, s48']
        so = 's41' if h == 0 else 's42'
        if h:
            dm.append(f's_add_u32 s42, s41, {128*1152}')
        dm += [f'buffer_load_dwordx4 v{DW+i}, s[56:59], {so} offen offset:{1024*i} lds ;@A' for i in range(4)]
    vp = [3 + (16 * i) // 3 for i in range(12)]
    dpos, spos = [p for i, p in enumerate(vp) if i % 3 != 2], vp[2::3]
    ds = []
    for x in dm:
        if x.startswith('buffer'):
            p = dpos.pop(0)
            ds.append(It(x, 1, lo=p, hi=p + 1, sep=True))
        else:
            ds.append(It(x, 1, lo=0, hi=dpos[0] - 1))
    fl = []
    for par, so, g0 in ((1, 's43', 5), (0, 's46', 37)):
        for x in flush_pair(par, so):
            if x.startswith('buffer'):
                p = spos.pop(0)
                fl.append(It(x, 1, lo=p, hi=p + 1))
            else:
                fl.append(It(x, 1, lo=g0, hi=spos[0] - 1))
        if par:
            fl.append(It('s_add_u32 s43, s46, 1024', 1, hi=36))
    fl.append(It('s_add_u32 s46, s46, 2048', 1, hi=63))
    up = []
    for nbl in range(4):
        for h in range(2):
            lastf = 8 * nbl + 4 * h + 3 - LA
            up.append(It(f'v_add_u32 v{(A1, A2)[h] + nbl}, s{52+h}, v{WA+nbl}', 1, lo=2 * lastf + 2, hi=min(60, 34 + 8 * nbl + 4 * h)))
    up.append(It('s_mov_b64 s[52:53], s[28:29]', 1, hi=63))
    end = ['s_lshr_b64 s[50:51], s[50:51], 8', 's_mov_b32 s51, s50', 's_add_u32 s41, s41, 128', 's_cmp_ge_u32 s41, 1152',
           's_cselect_b32 s48, 0x28000, s48', 's_cselect_b32 s41, 0x1000000, s41']
    en = [It(x, 1, lo=30, hi=48 + 2 * i, after=[ds[-4]]) for i, x in enumerate(end)]
    body = sched(mf, [ns, rs, ds, fl, up, en], stats=stats)
    i0, i1 = body.index(end[3]), body.index(end[5])
    assert not any(x.startswith(('s_add', 's_lsh', 's_bfe', 's_sub')) for x in body[i0:i1]), 'scc clobbered'
    body, vq, q = steady(['RETAG A B'] + body, vq, q)
    k('.p2align 6')
    k('L_oproj_loop:')
    emit(body)
    k(f's_cmp_lt_u32 s46, {9*2048}')
    k('s_cbranch_scc1 L_oproj_loop')
    k.stamp('o')
    k('s_waitcnt lgkmcnt(4)')
    k('ds_read_b128 v[4:7], v3')
    k('s_nop 2')
    emit(flush_pair(1, 's43'))
    k('s_waitcnt lgkmcnt(0)')
    k('v_or3_b32 v4, v4, v5, v6')
    k('v_or_b32 v4, v4, v7')
    k('s_nop 0')
    k('v_readfirstlane_b32 s47, v4')
    fuse = opt.get('fuse', True)
    k('s_andn2_b32 s47, s47, s45')
    if fuse:
        k('s_cbranch_scc1 L_attn_retry')
        emit_tail(k, ID, opt)
    else:
        k('s_cbranch_scc0 L_attn_end')
    k('L_attn_retry:')
    k('s_mov_b32 s45, 1')
    k('s_mov_b32 s46, 0')
    k('s_mov_b32 s41, 0')
    k('L_attn_maxloop:')
    k('s_barrier')
    k('s_mov_b32 m0, s38')
    k('s_nop 0')
    for i in range(4):
        k(f'buffer_load_dwordx4 v{DK+i}, s[8:11], s41 offen offset:{1024*i} lds')
    k('s_waitcnt vmcnt(0)')
    k('s_barrier')
    for ht in range(2):
        lines = []
        for u in range(8):
            lines += kread(ht, u)
        for u in range(8):
            lines += [qk1(0, u, qb, True) for qb in range(4)]
        lines.append('s_nop 7')
        for qb in range(4):
            lines += localmax(0, qb)
        for qb in range(4):
            lines.append(f'v_mov_b32 v{MX+qb}, v{TMP+qb}')
        lines, _ = insert_lgkm(lines)
        emit(lines)
    k('s_add_u32 s41, s41, 16384')
    k(f's_cmp_lt_u32 s41, {hx(524288)}')
    k('s_cbranch_scc1 L_attn_maxloop')
    k('s_barrier')
    lines, _ = resolve_vm(kdma(0) + kdma(1) + kdma(2) + vdma(0) + vdma(1) + ['VWAIT K0', 's_barrier'])
    emit(lines)
    k('s_branch L_attn_entry')
    k('L_attn_end:')
    if DIAG['on']:
        k('v_accvgpr_read_b32 v0, a254')
    k.stamp_end(2)
    k('L_attn_exit:')
    k('s_endpgm')
    k.stats = stats
    return k
```

```python
from lib import *
from small import *
from tail import LOWN, yclear_setup, emit_tail, wdma, wload, wstore, LDS_TOTAL

MF = 'v_mfma_f32_16x16x32_bf16'
SCALE = 128 ** -0.5


def q4(t, r):
    return f'{t}[{r}:{r+3}]'


def q2(t, r):
    return f'{t}[{r}:{r+1}]'


def gen_attn(opt=None):
    opt = opt or {}
    dbl = opt.get('dbl', True)
    CSB = 131072 + 256
    k = K('attn_kernel', 256, 256, LDS_TOTAL, nvgpr=256, nagpr=256)
    O, KF, VF = 0, 128, 160
    KA, VA, DK, DV = 8, 12, 20, 24
    OST = 26
    MX = 28
    TMP = 32
    ONE = 40
    NM = 44
    L = 60
    P = 76
    S = 108
    QA = 44
    WA, DW, PF = 172, 180, 184
    Q = HR = 188
    WA2 = TMP
    TMP2 = 0
    stats = []
    E = k

    def emit(lines):
        for ln in lines:
            k(ln)

    k('s_cmp_ge_u32 s2, 256')
    k('s_cbranch_scc1 L_attn_exit')
    k.stamp()
    k(f's_load_dwordx4 s[52:55], s[0:1], {ARG["wq"]}')
    k(f's_load_dwordx2 s[30:31], s[0:1], {ARG["ws"]}')
    k(f's_load_dwordx4 s[4:7], s[0:1], {ARG["k"]}')
    k(f's_load_dwordx4 s[44:47], s[0:1], {ARG["wg"]}')
    k(f's_load_dwordx2 s[72:73], s[0:1], {ARG["x"]}')
    k(f's_load_dwordx2 s[76:77], s[0:1], {ARG["out"]}')
    k(f's_load_dwordx2 s[68:69], s[0:1], {ARG["wd"]}')
    k('v_lshrrev_b32 v1, 6, v0')
    k('v_and_b32 v2, 63, v0')
    k('v_readfirstlane_b32 s33, v1')
    hx_ = opt.get('hx', 1)
    k(f's_bfe_u32 s34, s2, {hx((4 - hx_) << 16)}')
    k(f's_lshl_b32 s34, s34, {hx_}')
    k(f's_bfe_u32 s3, s2, {hx((hx_ << 16) | 3)}')
    k('s_add_u32 s34, s34, s3')
    k(f's_lshr_b32 s35, s2, {3 + hx_}')
    if hx_ > 1:
        k(f's_bfe_u32 s3, s2, {hx(((hx_ - 1) << 16) | (4 - hx_))}')
        k(f's_lshl_b32 s3, s3, {5 - hx_}')
        k('s_add_u32 s35, s35, s3')
    k('v_lshrrev_b32 v3, 5, v2')
    k('v_and_b32 v4, 1, v1')
    k('v_lshl_add_u32 v4, v4, 2, v3')
    k('v_lshlrev_b32 v4, 1, v4')
    k('v_and_b32 v5, 31, v2')
    k('v_xor_b32 v4, v4, v5')
    k('v_lshl_add_u32 v3, v1, 3, v3')
    k('v_lshlrev_b32 v3, 13, v3')
    k(f'v_lshl_add_u32 v{DW}, v4, 4, v3')
    k(f'v_xor_b32 v{DW+1}, 64, v{DW}')
    k(f'v_add_u32 v{DW+1}, {2*8192-1024}, v{DW+1}')
    k(f'v_add_u32 v{DW+2}, {4*8192-2048}, v{DW}')
    k(f'v_add_u32 v{DW+3}, {4*8192-2048}, v{DW+1}')
    k(f'v_lshlrev_b32 v{OST}, 4, v2')
    k(f'v_add_u32 v{OST+1}, 18432, v{OST}')
    k('s_lshl_b32 s3, s34, 9')
    k(f's_sub_u32 s18, {hx(576*8192)}, s3')
    k('s_lshl_b32 s37, s35, 3')
    k('s_lshl_b32 s36, s33, 1')
    k('s_add_u32 s37, s37, s36')
    k('s_mul_i32 s36, s37, 18432')
    k(f's_add_u32 s36, s36, {hx(WS_H)}')
    k('s_lshl_b32 s38, s33, 12')
    k('v_bfe_u32 v3, v2, 2, 2')
    k('v_lshrrev_b32 v5, 4, v2')
    k('v_lshl_add_u32 v6, v5, 3, v3')
    k('v_lshlrev_b32 v6, 9, v6')
    k('v_and_b32 v4, 3, v2')
    k('v_lshl_add_u32 v6, v4, 3, v6')
    k('v_and_b32 v5, 1, v5')
    k('v_lshl_add_u32 v5, v5, 2, v3')
    k(f'v_lshl_add_u32 v{WA}, v5, 5, v6')
    for u in range(8):
        if u:
            k(f'v_xor_b32 v{WA+u}, {u*32}, v{WA}')
        k(f'v_xor_b32 v{WA2+u}, {hx(0x10000 + u*32)}, v{WA}')
    M0, M1 = PF, PF + 1
    ID, QS = 248, 216
    k('v_and_b32 v3, 1, v2')
    k('v_lshlrev_b32 v3, 4, v3')
    k('v_mov_b32 v4, 0xffff')
    k('v_lshlrev_b32 v3, v3, v4')
    k('v_lshrrev_b32 v4, 4, v2')
    k('v_bfe_u32 v5, v2, 1, 3')
    k('v_lshlrev_b32 v6, 1, v4')
    k('v_or_b32 v7, 1, v6')
    k('v_cmp_eq_u32 vcc, v5, v6')
    k('v_cmp_eq_u32 s[40:41], v5, v7')
    k('v_mov_b32 v254, v2')
    k(f'v_cndmask_b32 v{M0}, 0, v3, vcc')
    k(f'v_cndmask_b32 v{M1}, 0, v3, s[40:41]')
    k(f'v_and_b32 v6, 0x3f803f80, v{M0}')
    k(f'v_and_b32 v7, 0x3f803f80, v{M1}')
    for i, r in enumerate(('v6', 'v7', '0', '0', 'v6', 'v7')):
        k(f'v_accvgpr_write_b32 a{ID+i}, {r}')
    k('v_lshlrev_b32 v1, 4, v4')
    if DIAG['on']:
        k('v_accvgpr_write_b32 a254, v0')
    k(f'v_add_u32 v{TMP2}, {CSB + 2304}, v1')
    k('v_lshlrev_b32 v1, 1, v1')
    k(f'v_add_u32 v1, {CSB}, v1')
    k('v_mov_b32 v4, 0')
    k('v_mov_b32 v5, 0')
    k('s_waitcnt lgkmcnt(0)')
    k.stamp('r')
    k.srd_off(16, 's52', 's53', 's3', 's18')
    k.srd_off(20, 's30', 's31', 's36', 2 * 18432)

    def wslot(t):
        return ((t + 3) % 4) * 32768

    def pgroup(t):
        g = [f's_mov_b32 s43, {hx(t*2048)}']
        for h in range(2):
            for rb in range(2):
                r = HR + (t % 4) * 16 + h * 8 + rb * 4
                g.append(f'buffer_load_dwordx4 {q4("v", r)}, v{OST+rb}, s[20:23], s43 offen offset:{1024*h} ;@X{t}')
        for h in range(2):
            kk = 2 * t + h
            g.append(f's_add_u32 m0, s38, {wslot(t) + h*16384}')
            g.append(f's_mov_b32 s42, {hx(kk*262144)}')
            for i in range(4):
                g.append(f'buffer_load_dwordx4 v{DW+i}, s[16:19], s42 offen offset:{1024*i} nt lds ;@W{t}')
        return g
    k('s_lshl_b32 s3, s33, 10')
    k(f's_add_u32 m0, s3, {CSB}')
    k.srd(24, 's30', 's31', 3456)
    k(f'buffer_load_dwordx4 v{OST}, s[24:27], s3 offen lds')
    lines, vq = resolve_vm(pgroup(0))
    emit(lines)
    k.stamp('r')
    lines, vq = resolve_vm(pgroup(1), vq)
    emit(lines)
    k('s_getpc_b64 s[28:29]')
    k('L_attn_pc:')
    later = []
    d = later.append
    t3, t4, t5, t6, t7 = 'v255', f'v{PF+2}', f'v{PF+3}', 'v252', 'v253'

    def dsrd(r, lo, hi, off, n):
        o = off if isinstance(off, str) else hx(off)
        d(f's_add_u32 s{r}, {lo}, {o}\ns_addc_u32 s{r+1}, {hi}, 0')
        d(f's_mov_b32 s{r+2}, {n if isinstance(n, str) else hx(n)}')
        d(f's_mov_b32 s{r+3}, 0x20000')
    d('s_lshl_b32 s3, s34, 19')
    dsrd(8, 's4', 's5', 's3', 524288)
    dsrd(12, 's6', 's7', 's3', 524288)
    d(f'v_and_b32 {t3}, 15, v254')
    d(f'v_lshrrev_b32 {t4}, 4, v254')
    d(f'v_xor_b32 {t5}, {t3}, {t4}')
    d(f'v_lshlrev_b32 {t6}, 8, {t3}')
    d(f'v_lshl_add_u32 {t7}, {t5}, 4, {t6}')
    d(f'v_accvgpr_write_b32 a192, {t7}')
    d(f'v_lshlrev_b32 {t6}, 8, {t4}')
    d(f'v_add_u32 {t6}, s38, {t6}')
    d(f'v_lshl_add_u32 v{DK}, {t5}, 4, {t6}')
    for i in range(1, 4):
        d(f'v_xor_b32 v{DK+i}, {64*i}, v{DK}')
    d(f'v_lshlrev_b32 {t7}, 1, {t4}')
    d(f'v_xor_b32 {t7}, {t7}, {t3}')
    d(f'v_lshl_add_u32 v{DV}, {t7}, 4, {t6}')
    d(f'v_xor_b32 v{DV+1}, 0x80, v{DV}')
    d(f'v_lshrrev_b32 {t3}, 2, v254')
    d(f'v_and_b32 {t4}, 3, v254')
    d(f'v_lshlrev_b32 {t5}, 8, {t3}')
    d(f'v_lshl_add_u32 {t5}, {t4}, 3, {t5}')
    d(f'v_add_u32 {t5}, 0x10000, {t5}')
    d(f'v_and_b32 {t6}, 7, {t3}')
    d(f'v_lshl_add_u32 {t5}, {t6}, 5, {t5}')
    d(f'v_accvgpr_write_b32 a193, {t5}')
    d(f'v_cmp_eq_u32 vcc, 0, {t4}')
    d(f'v_lshlrev_b32 {t3}, 7, {t3}')
    d(f'v_lshl_add_u32 {t3}, {t4}, 3, {t3}')
    d(f'v_mov_b32 {t7}, 0x3f803f80')
    d(f'v_cndmask_b32 {t7}, 0, {t7}, vcc')
    d(f'v_accvgpr_write_b32 a207, {t7}')
    d(f'v_bfe_u32 {t4}, v254, 3, 2')
    d(f'v_lshl_add_u32 {t3}, {t4}, 5, {t3}')
    d(f'v_accvgpr_write_b32 a209, {t3}')
    d('s_lshl_b32 s3, s34, 7')
    d('s_add_u32 s3, s3, s37')
    d('s_mul_i32 s3, s3, 18432')
    d(f's_add_u32 s3, s3, {hx(WS_PART)}')
    dsrd(24, 's30', 's31', 's3', 2 * 18432)
    d(f's_mul_i32 s3, s34, {256*1152}')
    dsrd(56, 's54', 's55', 's3', 256 * 1152)
    d('s_mov_b32 s54, s34')
    d('s_and_b32 s3, s2, 7')
    d('s_lshl_b32 s3, s3, 1')
    d('s_bfe_u32 s36, s2, 0x10003')
    d('s_add_u32 s3, s3, s36')
    d('s_and_b32 s36, s2, 0xf0')
    d('s_add_u32 s55, s3, s36')
    d('s_lshl_b32 s40, s55, 6')
    d(f's_mul_i32 s3, s33, {16*9216}')
    d('s_add_u32 s40, s40, s3')
    d('s_cmp_lt_u32 s55, 144\ns_cselect_b32 s40, s40, 0x1000000')
    d('s_mul_i32 s41, s55, 36864')
    d(f's_mul_i32 s3, s33, {8*1152}')
    d('s_add_u32 s41, s41, s3')
    d(f's_mul_i32 s36, s33, {32*1152}')
    d(f'v_lshrrev_b32 {t3}, 2, v254')
    d(f'v_mul_u32_u24 {t3}, 9216, {t3}')
    d(f'v_lshrrev_b32 {t6}, 4, v254')
    d(f'v_and_b32 {t7}, 2, {t6}')
    d(f'v_and_b32 {t4}, 3, v254')
    d(f'v_xor_b32 {t4}, {t4}, {t7}')
    d(f'v_lshl_add_u32 {t3}, {t4}, 4, {t3}')
    d(f'v_add_u32 {t3}, s40, {t3}')
    d(f'v_accvgpr_write_b32 a205, {t3}')
    d(f'v_lshrrev_b32 {t4}, 3, v254')
    d(f'v_mul_u32_u24 {t4}, 1152, {t4}')
    d(f'v_lshlrev_b32 {t6}, 1, {t6}')
    d(f'v_and_b32 {t7}, 7, v254')
    d(f'v_xor_b32 {t6}, {t6}, {t7}')
    d(f'v_lshl_add_u32 {t4}, {t6}, 4, {t4}')
    d(f'v_add_u32 {t3}, s41, {t4}')
    d(f'v_accvgpr_write_b32 a206, {t3}')
    d(f'v_add_u32 {t3}, s36, {t4}')
    d(f'v_accvgpr_write_b32 a208, {t3}')
    d('s_lshl_b32 s36, s33, 10')
    c = SCALE * LOG2E
    chi = (f2u(c) + 0x8000) >> 16
    clo = (f2u(c - struct.unpack('<f', struct.pack('<I', chi << 16))[0]) + 0x8000) >> 16
    d(f'v_lshrrev_b32 {t4}, 4, v254')
    d(f'v_bfe_u32 {t6}, v254, 2, 1')
    d(f'v_lshlrev_b32 {t6}, 1, {t6}')
    d(f'v_sub_u32 {t4}, {t4}, {t6}')
    d(f'v_bfe_u32 {t6}, v254, 3, 1')
    d(f'v_bfe_u32 {t5}, v254, 1, 1')
    d(f'v_lshl_add_u32 {t5}, {t6}, 1, {t5}')
    d(f'v_lshl_add_u32 {t5}, {t4}, 2, {t5}')
    d(f'v_and_b32 {t3}, 1, v254')
    d(f'v_lshlrev_b32 {t3}, 4, {t3}')
    d(f'v_mov_b32 {t6}, {hx(chi)}')
    d(f'v_mov_b32 {t7}, {hx(clo)}')
    d(f'v_lshlrev_b32 {t6}, {t3}, {t6}')
    d(f'v_lshlrev_b32 {t7}, {t3}, {t7}')
    d(f'v_cmp_eq_u32 vcc, 0, {t5}')
    d('s_mov_b32 s60, s44')
    d('s_mov_b32 s61, s45')
    for code in range(8):
        d(f'v_cndmask_b32 {t3}, 0, {t6}, vcc')
        d(f'v_cndmask_b32 {t4}, 0, {t7}, vcc')
        d(f'v_cmp_eq_u32 vcc, {code + 1}, {t5}')
        d(f'v_accvgpr_write_b32 a{QS+code}, {t3}')
        d(f'v_accvgpr_write_b32 a{QS+8+code}, {t4}')
    d('s_mov_b64 s[64:65], s[46:47]')
    for r, n in ((60, 576 * 9216), (64, 576 * 9216), (68, 4608 * 1152), (72, 2359296), (76, 2359296)):
        d(f's_mov_b32 s{r+2}, {n}')
        d(f's_mov_b32 s{r+3}, 0x20000')
    PFS = {0: 60, 1: 64, 2: 68}
    dsrd(4, 's28', 's29', 0x3000, 'L_code_end-L_attn_pc-0x3000')
    d('s_sub_u32 s53, s55, 144')
    d(f's_cmp_lt_u32 s53, 72\ns_cselect_b32 s40, {144*18432}, 0')
    dsrd(48, 's30', 's31', WS_Y, 's40')
    d('s_lshl_b32 s53, s53, 8')
    d('s_lshl_b32 s28, s33, 2')
    d('s_bfe_u32 s3, s2, 0x10003')
    d('s_lshl_b32 s3, s3, 2')
    d('s_add_u32 s3, s3, s33')
    d('s_lshl_b32 s52, s3, 13')
    d('s_add_u32 s52, s52, L_attn_tail-L_attn_pc-0x3000')
    d('s_lshl_b32 s37, s35, 4')
    d('s_add_u32 s37, s37, s54')
    d('s_lshl_b32 s37, s37, 2')
    d('s_add_u32 s37, s37, s33')
    d('s_mul_i32 s37, s37, 2304')
    d('s_lshr_b32 s3, s2, 3')
    d('s_lshl_b32 s3, s3, 2')
    d('s_add_u32 s3, s3, s33')
    d('s_min_u32 s3, s3, 95')
    d('s_and_b32 s40, s2, 7')
    d('s_mul_i32 s39, s3, 9216')
    d('s_lshl_b32 s34, s40, 7')
    d('s_add_u32 s39, s39, s34')
    d('s_mul_i32 s34, s40, 73728')
    d('s_lshl_b32 s3, s3, 7')
    d('s_add_u32 s34, s34, s3')
    d('v_min_u32 v255, 8, v254')
    d(f'v_lshlrev_b32 v{PF+2}, 10, v255')
    d(f'v_mul_u32_u24 v{PF+3}, {8*73728}, v255')
    d('v_lshlrev_b32 v255, 3, v254')
    d('v_lshlrev_b32 v254, 7, v254')
    d('s_lshl_b32 s32, s35, 2')
    d('s_add_u32 s32, s32, s33')
    d('s_mul_i32 s32, s32, 4608')
    d('s_mov_b32 s45, 0')

    def kdma(T, tag=None):
        g = [f's_add_u32 m0, s38, {(T % 4)*16384}', f's_mov_b32 s42, {hx(T*16384)}']
        for i in range(4):
            g.append(f'buffer_load_dwordx4 v{DK+i}, s[8:11], s42 offen offset:{1024*i} nt lds ;@K{T % 4}')
        return g

    def vdma(T):
        g = [f's_add_u32 m0, s38, {65536 + (T % 4)*16384}', f's_mov_b32 s42, {hx(T*16384)}']
        for i in range(4):
            g.append(f'buffer_load_dwordx4 v{DV + i % 2}, s[12:15], s42 offen offset:{1024*i} nt lds ;@V{T % 4}')
        return g

    def gemm(nf, rd, mf_of, at_bar, extra=None, first_bar_items=None, LA=6, chain=False):
        pre = []
        for f in range(LA):
            pre += rd(f)
        mf = []
        G = []
        for f in range(nf):
            G.append(len(mf))
            mf += mf_of(f)
        if chain:
            for f in range(0, nf, 2):
                mf[G[f] + 1], mf[G[f + 1]] = mf[G[f + 1]], mf[G[f] + 1]
        rs, ns, ds = [], [], []
        if first_bar_items:
            n = len(first_bar_items)
            for i, x in enumerate(first_bar_items):
                ds.append(It(x, 1, lo=(i * 60) // n - 2, hi=2 + (i * 60) // n, sep=x.startswith('buffer')))
        for f in range(nf):
            g = G[f]
            if (f + LA) % 32 == 0:
                ab = at_bar(f // 32)
                if ab:
                    tags, dm, span = ab
                    rs.append(It(f'VWAIT {tags}', 1, lo=g - 2, hi=g))
                    b = It('s_barrier', 1, lo=g - 2, hi=g)
                    rs.append(b)
                    n = len(dm)
                    nb = sum(x.startswith('buffer') for x in dm)
                    ib = 0
                    for i, x in enumerate(dm):
                        p = g + 3 + (ib * span) // nb
                        isb = x.startswith('buffer')
                        ds.append(It(x, 1, lo=p - 2 if isb else g, hi=p + 3 if isb else p + 1, sep=isb, after=[b]))
                        ib += isb
            if f + LA < nf:
                for i, x in enumerate(rd(f + LA)):
                    rs.append(It(x, 1, lo=g - 2 + i, hi=g + i + 2, sep=True))
            nw = opt.get('qwait', 4)
            if f % nw == 0 and f > 0:
                r = KF + 4 * (f % 16)
                ns.append(It(f'NEED a[{r}:{r+4*nw-1}]', 1, lo=g - 1, hi=g - 1))
        streams = [ns, rs, ds] + (extra(G) if extra else [])
        return pre + sched(mf, streams, stats=stats)

    k.stamp('r')
    lines, vq = resolve_vm(['VWAIT W0', 's_barrier'], vq)
    emit(lines)
    k.stamp('h')

    def prd(f):
        kk, u = f // 16, f % 16
        t = kk // 2
        base = wslot(t) + (kk % 2) * 16384 + (u // 8) * 256
        a = (WA if base < 65536 else WA2) + u % 8
        base %= 65536
        r = KF + 4 * (f % 16)
        return [f'ds_read_b64_tr_b16 {q2("a", r)}, v{a} offset:{base}',
                f'ds_read_b64_tr_b16 {q2("a", r+2)}, v{a} offset:{base + 2048}']

    def pmf(f):
        kk, u = f // 16, f % 16
        t = kk // 2
        out = []
        for rb in range(2):
            acc = QA + ((u // 8) * 2 + rb) * 32 + (u % 8) * 4
            b = HR + (t % 4) * 16 + (kk % 2) * 8 + rb * 4
            c = '0' if kk == 0 else q4('v', acc)
            out.append(f'{MF} {q4("v", acc)}, {q4("a", KF + 4*(f % 16))}, {q4("v", b)}, {c}')
        return out

    def pbar(t):
        if t + 3 <= 8:
            return f'W{t+1}', pgroup(t + 3), opt.get('qspan', 76)
        if t == 6:
            return 'W7', kdma(0) + kdma(1), 50
        if t == 7:
            return 'W8', kdma(2), 30
        return 'K0', vdma(0) + vdma(1), 9
    CQ, SQ, DG = 8, 12, 2
    OUT = [28, 40]

    def xreg(kk, rb):
        return HR + ((kk // 2) % 4) * 16 + (kk % 2) * 8 + rb * 4

    def m1(kk, rb):
        return [f'{MF} {q4("v", OUT[T])}, {q4("v", DG + 2*T)}, {q4("v", xreg(kk, rb))}, 0' for T in range(2)]

    def m2(kk, rb):
        return [f'{MF} {q4("v", OUT[T])}, {q4("a", ID + 2*T)}, {q4("v", xreg(kk, rb))}, {q4("v", SQ + 4*T)}' for T in range(2)]

    def mcvt(kk, rb):
        return [f'v_cvt_pk_bf16_f32 v{xreg(kk, rb) + d}, v{OUT[d // 2] + 2*(d % 2)}, v{OUT[d // 2] + 2*(d % 2) + 1}' for d in range(4)]

    def cread(kk):
        return [f'ds_read_b128 {q4("v", CQ)}, v{TMP2} offset:{kk*64}']

    def sread(kk):
        return [f'ds_read_b128 {q4("v", SQ + 4*T)}, v1 offset:{kk*128 + T*16}' for T in range(2)]

    def diag():
        return [f'v_and_b32 v{DG + (0, 1, 4, 5)[d]}, v{CQ + d}, v{(M0, M1)[d % 2]}' for d in range(4)]
    MPOS = {0: (m1, 0), 4: (m2, 0), 8: (m1, 1), 12: (m2, 1)}

    def pmf2(f):
        kk, u = f // 16, f % 16
        out = pmf(f)
        if u in MPOS and kk + 1 < 18:
            fn, rb = MPOS[u]
            out += fn(kk + 1, rb)
        return out

    def mstreams(G):
        cv, tb = [], []
        for kk in range(1, 18):
            f0 = 16 * (kk - 1)
            for u in (0, 4, 8, 12):
                for i, x in enumerate(mcvt(kk, MPOS[u][1])):
                    cv.append(It(x, 1, lo=G[f0 + u + 2] + 1, hi=G[f0 + u + 3] + (i // 2) - (1 if u == 12 else 0)))
            if kk + 1 < 18:
                tb.append(It(cread(kk + 1)[0], 1, lo=G[f0 + 2], hi=G[f0 + 6]))
                for i, x in enumerate(diag()):
                    tb.append(It(x, 1, lo=G[f0 + 9], hi=G[f0 + 13] + i // 2))
                if (kk + 1) % 2 == 0:
                    tb.append(It(f'VWAIT X{(kk+1)//2}', 1, lo=G[f0 + 13], hi=G[f0 + 16]))
                for x in sread(kk + 1):
                    tb.append(It(x, 1, lo=G[f0 + 14] + 1, hi=G[f0 + 17] + 1))
        n = len(later)
        lt = [It(x, 1, lo=0, hi=160 + (i * 530) // n) for i, x in enumerate(later)]
        return [cv, tb, lt]
    body = gemm(288, prd, pmf2, pbar, extra=mstreams, first_bar_items=pgroup(2), LA=opt.get('qla', 6))
    OUT2 = [QA, QA + 4]
    NP = 2 * opt.get('qla', 6)
    first = cread(0) + sread(0) + body[:NP-2] + diag() + body[NP-2:NP] + cread(1) + ['s_nop 0'] + m1(0, 0)
    sw = lambda L: [x.replace(q4('v', OUT[0]), q4('v', OUT2[0])).replace(q4('v', OUT[1]), q4('v', OUT2[1])) for x in L]
    cv2 = [f'v_cvt_pk_bf16_f32 v{xreg(0, 1) + d}, v{QA + 2*d}, v{QA + 2*d + 1}' for d in range(4)]
    first += sw(m1(0, 1)) + ['s_nop 5'] + mcvt(0, 0) + cv2 + m2(0, 0) + sw(m2(0, 1)) + diag() + ['s_nop 1'] + mcvt(0, 0) + cv2
    first += sread(1)
    lines = sum((x.split('\n') for x in first + body[NP:]), [])
    lines, vq = resolve_vm(lines, vq)
    lines, _ = insert_lgkm(lines)
    emit(lines)
    k.stamp('h')

    def sreg(buf, qb, kb):
        return S + buf * 32 + qb * 8 + kb * 4

    ORD = opt.get('order', 'pC')

    def kmap(u):
        return (u % 2, u // 2) if ORD in ('qB', 'pB') else (u // 4, u % 4)

    def kread(j, u):
        T, ht = j // 2, j % 2
        kb, s = kmap(u)
        off = (T % 4) * 16384 + (ht * 2 + kb) * 4096
        return [f'ds_read_b128 {q4("a", KF + 4*u)}, v{KA + s} offset:{off}']

    def vread(j, u):
        T, ht = j // 2, j % 2
        off = (T % 4) * 16384 + ht * 8192
        return [f'ds_read_b64_tr_b16 {q2("a", VF + 4*u)}, v{VA + u} offset:{off}',
                f'ds_read_b64_tr_b16 {q2("a", VF + 4*u + 2)}, v{VA + u} offset:{off + 4096}']

    def qk1(j, u, qb, czero=False):
        kb, s = kmap(u)
        d = sreg(j % 2, qb, kb)
        if s == 0:
            c = '0' if czero else q4('v', NM + 4 * qb)
        else:
            c = q4('v', d)
        return f'{MF} {q4("v", d)}, {q4("a", KF + 4*u)}, {q4("v", Q + qb*16 + s*4)}, {c}'

    USLOT = [0, 1, 4, 2, 5, 3, 6, 7]

    def wodma(U):
        src = (U % 2) * 128 * 1152 + (U // 2) * 128
        g = [f's_add_u32 m0, s38, {USLOT[U % 8]*16384}', f's_mov_b32 s42, {hx(src)}']
        for i in range(4):
            g.append(f'buffer_load_dwordx4 v{DW+i}, s[56:59], s42 offen offset:{1024*i} {opt.get("wof", "")} lds ;@U{U}')
        return g

    def localmax(buf, qb):
        r = sreg(buf, qb, 0)
        out = [f'v_max3_f32 v{TMP+qb}, v{r}, v{r+1}, v{MX+qb}']
        for i in range(2, 8, 2):
            out.append(f'v_max3_f32 v{TMP+qb}, v{r+i}, v{r+i+1}, v{TMP+qb}')
        return out

    def crossmax():
        out = []
        for op in ('v_permlane16_swap_b32', 'v_permlane32_swap_b32'):
            for qb in range(4):
                out.append(f'v_mov_b32 v{TMP+4+qb}, v{TMP+qb}')
            out.append('s_nop 0')
            for qb in range(4):
                out.append(f'{op} v{TMP+qb}, v{TMP+4+qb}')
            for qb in range(4):
                out.append(f'v_max_f32 v{TMP+qb}, v{TMP+qb}, v{TMP+4+qb}')
        return out
    order = [2, 0, 1, 3]
    misc = [f'v_accvgpr_read_b32 v{KA}, a192', f'v_accvgpr_read_b32 v{VA}, a193']
    misc += [f'v_xor_b32 v{KA+i}, {64*i}, v{KA}' for i in range(1, 4)] + [f'v_xor_b32 v{VA+i}, {32*i}, v{VA}' for i in range(1, 8)]
    for u in range(8):
        misc += kread(0, u)
    misc2 = []
    for i in range(4):
        misc2 += [f'v_accvgpr_read_b32 v{ONE+i}, a207', f'v_mov_b32 v{MX+i}, 0xff800000']
    misc2 += yclear_setup() + ['v_accvgpr_read_b32 v0, a205', 'v_accvgpr_read_b32 v2, a206']
    misc2 += [f'v_accvgpr_read_b32 v{DW}, a208', f'v_accvgpr_read_b32 v{WA}, a209']
    for i in range(1, 4):
        misc2.append(f'v_add_u32 v{DW+i}, {i*(8*1152-1024)}, v{DW}')
        misc2.append(f'v_xor_b32 v{WA+i}, {i*32}, v{WA}')

    def ucvt(qb, s):
        a, d = QA + qb * 32 + s * 8, Q + qb * 16 + s * 4
        return [f'v_cvt_pk_bf16_f32 v{d+j}, v{a+2*j}, v{a+2*j+1}' for j in range(4)]

    def umf(qb, s):
        a, d = QA + qb * 32 + s * 8, Q + qb * 16 + s * 4
        return [f'{MF} {q4("v", a + 4*(j % 2))}, {q4("a", QS + 4*j)}, {q4("v", d)}, {"0" if j < 2 else q4("v", a + 4*(j % 2))}'
                for j in range(4)]
    mf, upos, qpos = [], {}, {}
    for i, qb in enumerate(order):
        for s_ in range(4):
            upos[qb, s_] = len(mf)
            mf += umf(qb, s_)
        if i >= 1:
            qpos[order[i - 1]] = len(mf)
            mf += [qk1(0, u, order[i - 1], True) for u in range(8)]
    qpos[3] = len(mf)
    mf += [qk1(0, u, 3, True) for u in range(8)]
    pre_s, post_s = [], []
    units = [(qb, s_) for qb in order for s_ in range(4)]
    for n, (qb, s_) in enumerate(units):
        p = upos[qb, s_]
        if n >= 1:
            pre_s += [It(x, 1, lo=p - 8, hi=p - 3) for x in ucvt(qb, s_)]
        post_s += [It(x, 1, lo=p + 7, hi=min(p + 12, qpos[qb] - 3 if qb == 2 else qpos[qb] + s_ - 3)) for x in ucvt(qb, s_)]
    fin = localmax(0, 2) + localmax(0, 0) + localmax(0, 1)
    oth = [It(x, 1, lo=0, hi=10 + i) for i, x in enumerate(misc[8:])] + [It(x, 1, lo=0, hi=70) for x in misc2]
    oth += [It(x, 1, lo=qpos[1], hi=200) for x in fin[:8]] + [It(x, 1, lo=qpos[3] + 5, hi=200) for x in fin[8:]]
    lines = misc[:8] + ucvt(*units[0]) + ['s_nop 1'] + sched(mf, [pre_s, post_s, oth], stats=stats)
    lines, _ = insert_lgkm(lines)
    emit(lines)
    k('s_branch L_attn_go')
    k('L_attn_entry:')
    lines = []
    for u in range(8):
        lines += kread(0, u)
    for qb in order:
        for u in range(8):
            lines.append(qk1(0, u, qb, True))
    lines += fin
    lines, _ = insert_lgkm(lines)
    emit(lines)
    k('L_attn_go:')
    lines = []
    for u in range(4):
        lines += kread(1, u)
    lines.append('s_nop 3')
    lines += localmax(0, 3) + crossmax()
    for qb in range(4):
        for i in range(4):
            lines.append(f'v_sub_f32 v{NM+4*qb+i}, 0, v{TMP+qb}')
    for kb in range(2):
        for qb in range(4):
            for i in range(4):
                r = sreg(0, qb, kb) + i
                lines.append(f'v_sub_f32 v{r}, v{r}, v{TMP+qb}')
    lines, q = insert_lgkm(lines)
    emit(lines)
    k.stamp('h')
    k.stamp('l')
    k(f's_mov_b32 s40, {opt.get("iters", 7)}')
    k(f's_mov_b32 s41, {hx(2*16384)}')

    def step(j, extra=None):
        do_qk = j + 1 <= 63
        do_sm = j <= 63
        do_pv = j >= 1
        T = j // 2
        mf = []
        gs = []
        for u in range(8):
            gs.append(len(mf))
            pb = P + ((j - 1) % 2) * 16
            if do_qk:
                mf += [qk1(j + 1, u, qb) for qb in range(4)]
            if do_pv and j == 64 and u == 0:
                for qb in range(4):
                    mf.append(f'{MF} {q4("v", L + 4*qb)}, {q4("v", ONE)}, {q4("v", pb + qb*4)}, {q4("v", L + 4*qb)}')
            if do_pv:
                for qb in range(4):
                    o = O + qb * 32 + u * 4
                    mf.append(f'{MF} {q4("a", o)}, {q4("a", VF + 4*u)}, {q4("v", pb + qb*4)}, {"0" if j == 1 else q4("a", o)}')
                if u % 2 == 0 and j != 64:
                    qb = u // 2
                    mf.append(f'{MF} {q4("v", L + 4*qb)}, {q4("v", ONE)}, {q4("v", pb + qb*4)}, {"0" if j == 1 else q4("v", L + 4*qb)}')
        n = len(mf)
        gs.append(n)
        quad = ORD[0] == 'q' and do_qk and do_pv
        if ORD[0] == 'p' and do_qk and do_pv:
            for u in range(0, 8, 2):
                blk = mf[gs[u]:gs[u + 2]]
                qa, pa, one, qb_, pb_ = blk[0:4], blk[4:8], blk[8:9], blk[9:13], blk[13:17]
                qq = qa + qb_ if ORD == 'pair' else [x for t in zip(qa, qb_) for x in t]
                pp = [x for t in zip(pa, pb_) for x in t]
                pp[u:u] = one
                mf[gs[u]:gs[u + 2]] = qq + pp
        mix = ORD == 'mC' and do_qk and do_pv
        if mix:
            for h in range(2):
                g4 = [mf[gs[u]:gs[u + 1]] for u in range(4 * h, 4 * h + 4)]
                out = []
                for p in range(2):
                    out += [g[qb] for qb in (2 * p, 2 * p + 1) for g in g4]
                    pp = [x for t in zip(g4[2 * p][4:8], g4[2 * p + 1][4:8]) for x in t]
                    pp[4 * h + 2 * p:4 * h + 2 * p] = [g4[2 * p][8]]
                    out += pp
                mf[gs[4 * h]:gs[4 * h + 4]] = out
        if quad:
            for h in range(2):
                g4 = [mf[gs[u]:gs[u + 1]] for u in range(4 * h, 4 * h + 4)]
                qq = sum((g[:4] for g in g4), []) if ORD == 'qA' else [g[qb] for qb in range(4) for g in g4]
                pp = []
                for qb in range(4):
                    pp += [g[4 + qb] for g in g4]
                    if qb // 2 == h:
                        pp.append(g4[2 * (qb % 2)][8])
                mf[gs[4 * h]:gs[4 * h + 4]] = qq + pp
        es, cs, rs, ns, ds = [], [], [], [], []
        if do_sm:
            b = j % 2
            e = 0
            for kb in range(2):
                for qb in range(4):
                    for h in range(2):
                        s0 = sreg(b, qb, kb) + 2 * h
                        t0 = TMP + 2 * ((e // 2) % 4)
                        pair = []
                        for i in range(2):
                            tg = (e * (n - 2)) // 32
                            it = It(f'v_exp_f32 v{t0+i}, v{s0+i}', 2, lo=tg - 1, hi=tg + 1,
                                    after=[cs[e // 2 - 4]] if e >= 8 else None)
                            es.append(it)
                            pair.append(it)
                            e += 1
                        cs.append(It(f'v_cvt_pk_bf16_f32 v{P + b*16 + qb*4 + kb*2 + h}, v{t0}, v{t0+1}', 1,
                                     hi=tg + 6, after=pair))
        bar = None
        late_v = []
        for u in range(8):
            if u == 4 and j % 2 == 0 and j <= 62:
                rs.append(It(f'VWAIT K{(T+1) % 4},V{T % 4}', 1, lo=gs[4] - 1, hi=gs[4] + 1))
                bar = It('s_barrier', 1, lo=gs[4] - 1, hi=gs[4] + 1)
                rs.append(bar)
            rd = []
            if u < 4:
                if do_qk:
                    rd += kread(j + 1, u + 4)
                if do_pv:
                    rd += vread(j - 1, u + 4)
            else:
                if j + 2 <= 63:
                    rd += kread(j + 2, u - 4)
                if j <= 63:
                    rd += vread(j, u - 4)
            w = gs[u + 1] - gs[u]
            if mix:
                late_v += rd
                if u % 4 == 3:
                    g0 = gs[u - 3]
                    kr = [x for x in late_v if 'b128' in x]
                    vr = [x for x in late_v if 'b128' not in x]
                    seq = kr[:2] + vr[:2] + kr[2:] + vr[2:]
                    for i, x in enumerate(seq):
                        tg = g0 + (i * 32) // len(seq)
                        rs.append(It(x, 1, lo=tg, hi=tg + 3))
                    late_v = []
                    f = u - 3
                    ns.append(It(f'NEED a[{VF+4*f}:{VF+4*f+15}]', 1, lo=g0 + 6, hi=g0 + 7))
                    f = (u + 1) % 8
                    ns.append(It(f'NEED a[{KF+4*f}:{KF+4*f+15}]', 1, lo=gs[u + 1] - 2, hi=gs[u + 1] - 1))
                continue
            if quad:
                g0 = gs[u - u % 4]
                for x in rd:
                    if 'b128' in x:
                        rs.append(It(x, 1, lo=g0 + 3 * (u % 4), hi=g0 + 3 * (u % 4) + 4))
                    else:
                        late_v.append(x)
                if u % 4 == 3:
                    f = u - 3
                    rs.append(It(f'NEED a[{VF+4*f}:{VF+4*f+15}]', 1, lo=g0 + 14, hi=g0 + 15))
                    for i, x in enumerate(late_v):
                        rs.append(It(x, 1, lo=g0 + 15 + 2 * i, hi=g0 + 17 + 2 * i))
                    late_v = []
                    f = (u + 1) % 8
                    ns.append(It(f'NEED a[{KF+4*f}:{KF+4*f+15}]', 1, lo=gs[u + 1] - 2, hi=gs[u + 1] - 1))
                continue
            for i, x in enumerate(rd):
                rs.append(It(x, 1, lo=gs[u] - (2 if u else 0), hi=gs[u] + ((i + 1) * w) // len(rd) - 1, sep=True))
            if u % 2 == 1:
                f = (u + 1) % 8
                ns.append(It(f'NEED a[{KF+4*f}:{KF+4*f+7}], a[{VF+4*f}:{VF+4*f+7}]', 1, lo=gs[u + 1] - 2, hi=gs[u + 1] - 1))
        special = {58: 0, 60: 1, 61: 2, 62: 3}
        dm = []
        if j in special:
            dm = wodma(special[j])
        elif j < 63:
            if j % 2 == 0:
                dm = [f's_add_u32 m0, s38, {((T+3) % 4)*16384}', 's_add_u32 s41, s41, 16384']
                dm += [f'buffer_load_dwordx4 v{DK+i}, s[8:11], s41 offen offset:{1024*i} nt lds ;@K{(T+3) % 4}' for i in range(4)]
            else:
                dm = [f's_add_u32 m0, s38, {65536 + ((T+2) % 4)*16384}', f's_sub_u32 s42, s41, {16384 if j < 58 else 0}']
                dm += [f'buffer_load_dwordx4 v{DV + i % 2}, s[12:15], s42 offen offset:{1024*i} nt lds ;@V{(T+2) % 4}' for i in range(4)]
                if 2 <= j <= 57 and opt.get('pf_moe', True):
                    w = ((j - 2) % 8) // 2
                    if w < 2:
                        dm.append(f'buffer_load_dword v{PF}, v{PF+2}, s[{PFS[w]}:{PFS[w]+3}], s39 offen ;@-')
                    elif w == 2:
                        dm.append(f'buffer_load_dword v{PF}, v{PF+3}, s[{PFS[w]}:{PFS[w]+3}], s34 offen ;@-')
                        dm.append(f's_add_u32 s39, s39, {96*9216}')
                        dm.append(f's_add_u32 s34, s34, {96*128}')
                    else:
                        dm.append(f'buffer_load_dwordx2 {q2("v", PF)}, v255, s[56:59], s32 offen ;@-')
                        dm.append(f'buffer_load_dwordx2 {q2("v", PF)}, v255, s[56:59], s32 offen offset:512 ;@-')
                        dm.append('s_add_u32 s32, s32, 768')
        if j % 2 == 0 and 2 <= j <= 56:
            w = (j % 8) // 2
            pf = []
            if w == 0 and opt.get('pf_code', True):
                pf = [f'buffer_load_dword v{PF}, v254, s[4:7], s52 offen ;@-']
            elif w == 1:
                pf = ['buffer_store_dwordx4 v[4:7], v3, s[48:51], s53 offen sc1 ;@-', 's_add_u32 s53, s53, 18432'] * 2
            elif w == 2 and opt.get('pf_x', True):
                pf = [f'buffer_load_dwordx2 {q2("v", PF)}, v255, s[72:75], s37 offen ;@-']
            elif w == 3:
                pf = ([f'buffer_load_dwordx2 {q2("v", PF)}, v255, s[76:79], s37 offen ;@-'] if opt.get('pf_out', True) else []) + ['s_add_u32 s37, s37, 384']
            for i, x in enumerate(pf):
                ds.append(It(x, 2 if x.startswith(('buffer', 'global')) else 1, lo=4 + 6 * i, hi=12 + 6 * i))
        ws_ = []
        if 58 <= j <= 62:
            if j % 2 == 0:
                items = {58: wdma('gu', 8), 60: wdma('d', 6) + wdma('d', 7), 62: wdma('d', 8)}[j]
                for i, x in enumerate(items):
                    tg = 2 + (i * 28) // len(items)
                    ds.append(It(x, 2 if x.startswith('buffer') else 1, lo=tg - 2, hi=tg + 3, sep=x.startswith('buffer')))
                items = wload('gu', {58: 0, 60: 3, 62: 6}[j])
            else:
                items = {59: wload('gu', 1) + wload('gu', 2), 61: wload('gu', 4) + wload('gu', 5)}[j]
            for i, x in enumerate(items):
                tg = 4 + (i * 58) // len(items)
                ws_.append(It(x, 2 if x.startswith('buffer') else 1, lo=tg - 3, hi=tg + 4))
        if dm:
            lo0 = gs[4] + 2 if j % 2 == 0 else 0
            nb = sum(x.startswith('buffer') for x in dm)
            ib = 0
            for x in dm:
                tg = lo0 + ((n - 1 - lo0) * (ib + 0.6)) // nb
                isb = x.startswith('buffer')
                ds.append(It(x, 2 if isb else 1, lo=(tg - 3 if isb else lo0), hi=min(n - 1, tg + 3), sep=isb,
                             after=[bar] if (bar and isb) else None))
                ib += isb
        return sched(mf, [ns, es, rs, cs, ds, ws_] + (extra or []), stats=stats)

    l0, vq = resolve_vm(step(0) + step(1), vq)
    l0, q = insert_lgkm(l0, q)
    emit(l0)
    loopctl = [It('s_sub_u32 s40, s40, 1', 1, lo=40, hi=66)]
    body = []
    for j in range(2, 10):
        body += step(j)
    res = []
    for rep in range(2):
        o, vq = resolve_vm(body, vq)
        o, q = insert_lgkm(o, q)
        res.append(o)
    assert len(res[0]) == len(res[1]), 'loop not in steady state'
    for i, (a, b) in enumerate(zip(*res)):
        if a != b:
            ma, mb = re.match(r's_waitcnt (\w+)\((\d+)\)', a), re.match(r's_waitcnt (\w+)\((\d+)\)', b)
            assert ma and mb and ma.group(1) == mb.group(1), (a, b)
            res[0][i] = f's_waitcnt {ma.group(1)}({min(int(ma.group(2)), int(mb.group(2)))})'
    k.stamp('l')
    k('.p2align 6')
    k('L_attn_loop:')
    emit(res[0])
    k('s_sub_u32 s40, s40, 1')
    k('s_cmp_lg_u32 s40, 0')
    k('s_cbranch_scc1 L_attn_loop')
    k('L_attn_tail:')
    k.stamp('l')
    tail = []
    for j in range(58, 64):
        tail += step(j)
    tail.append('s_nop 1')
    OF = S
    ACC = P
    PK = NM
    RI = TMP
    norm = []
    for qb in range(4):
        norm.append(It(f'v_rcp_f32 v{RI+qb}, v{L+4*qb}', 2, lo=12))
    norm.append(It(f'v_max3_f32 v{TMP+4}, v{L}, v{L+4}, v{L+8}', 1))
    norm.append(It(f'v_max_f32 v{TMP+4}, v{TMP+4}, v{L+12}', 1))
    tv = [4, 5, 6, 7, 252, 253, PF, PF + 1]
    late = []
    for db in range(8):
        blk = []
        for half in range(2):
            for qb in (2 * half, 2 * half + 1):
                for i in range(4):
                    blk.append(f'v_accvgpr_read_b32 v{tv[(qb % 2)*4 + i]}, a{O + qb*32 + db*4 + i}')
            for qb in (2 * half, 2 * half + 1):
                for i in range(4):
                    t = tv[(qb % 2)*4 + i]
                    if db < 1:
                        blk.append(f'v_mul_f32 v{t}, v{t}, v{RI+qb}')
                    elif i % 2 == 0:
                        sel = 'op_sel_hi:[1,0]' if qb % 2 == 0 else 'op_sel:[0,1]'
                        blk.append(f'v_pk_mul_f32 v[{t}:{t+1}], v[{t}:{t+1}], v[{RI + qb - qb % 2}:{RI + qb - qb % 2 + 1}] {sel}')
            for qb in (2 * half, 2 * half + 1):
                for i in range(2):
                    blk.append(f'v_cvt_pk_bf16_f32 v{OF + qb*16 + db*2 + i}, v{tv[(qb % 2)*4 + 2*i]}, v{tv[(qb % 2)*4 + 2*i + 1]}')
        if db < 1:
            norm += [It(x, 1, lo=4 + 4 * (db + 1) + 7) for x in blk]
        else:
            late += blk
    tail += step(64, extra=[norm])
    tail += late
    A1, A2 = WA + 4, L + 8
    OS, OA = L + 12, L + 14
    LA = opt.get('ola', 7)

    def ord_(f):
        nbl, ks = (f // 8) % 4, f % 8
        r = KF + 4 * (f % 16)
        a = (A1 if ks < 4 else A2) + nbl
        return [f'ds_read_b64_tr_b16 {q2("a", r)}, v{a} offset:{(ks % 4)*4096}',
                f'ds_read_b64_tr_b16 {q2("a", r+2)}, v{a} offset:{(ks % 4)*4096 + 2048}']

    def omf(f):
        nb, ks = f // 8, f % 8
        out = []
        for rb in range(2):
            acc = ACC + ((nb // 2) % 2) * 16 + (nb % 2) * 8 + rb * 4
            b = OF + ((ks // 4) * 2 + rb) * 16 + (ks % 4) * 4
            c = '0' if ks == 0 else q4('v', acc)
            out.append(f'{MF} {q4("v", acc)}, {q4("a", KF + 4*(f % 16))}, {q4("v", b)}, {c}')
        return out

    def flush_pair(par, so):
        out = []
        for rb in range(2):
            for h in range(2):
                a = ACC + par * 16 + h * 8 + rb * 4
                for i in range(2):
                    out.append(f'v_cvt_pk_bf16_f32 v{PK + par*8 + rb*4 + h*2 + i}, v{a+2*i}, v{a+2*i+1}')
            out.append(f'buffer_store_dwordx4 {q4("v", PK + par*8 + rb*4)}, v{OS+rb}, s[24:27], {so} offen sc1')
            out.append(f'ds_write_b128 v{OA+rb}, {q4("v", PK + par*8 + rb*4)} offset:{512*(1-par)}')
        return out
    tail += ['s_lshl_b32 s3, s33, 2', 's_sub_u32 s3, s54, s3', f'v_bfe_u32 v4, v{OST}, 7, 1', 'v_or_b32 v5, 2, v4',
             'v_cmp_eq_u32 vcc, s3, v4', 'v_cmp_eq_u32 s[28:29], s3, v5', f'v_lshrrev_b32 v4, 8, v{OST}', f'v_and_b32 v5, 0x70, v{OST}',
             'v_lshl_add_u32 v4, v4, 7, v5', f'v_add_u32 v4, {LOWN - 512}, v4', 'v_mov_b32 v5, 0x1000000',
             f'v_cndmask_b32 v{OS}, v{OST}, v5, vcc', f'v_cndmask_b32 v{OS+1}, v{OST+1}, v5, s[28:29]',
             'v_mov_b32 v5, 0x30000', f'v_cndmask_b32 v{OA}, v5, v4, vcc', f'v_cndmask_b32 v{OA+1}, v5, v4, s[28:29]']
    ZR = L
    tail += [f'v_mov_b32 v{ZR+i}, 0' for i in range(4)]
    for nbl in range(4):
        tail += [f'v_mov_b32 v{A1+nbl}, v{WA+nbl}', f'v_add_u32 v{A2+nbl}, 0x4000, v{WA+nbl}']
    nanmf = [f'{MF} {q4("v", L+4)}, {q4("v", ZR)}, {q4("v", OF + 4*i)}, {"0" if i == 0 else q4("v", L+4)}' for i in range(16)]
    pk = sum(USLOT[(2 * (t + 2) + h) % 8] << (8 * t + 4 * h) for t in range(4) for h in range(2))
    st1 = [It('VWAIT U0,U1', 1), It('s_barrier', 1)] + [It(x, 1, lo=2 + i, sep=True) for i, x in enumerate(sum((ord_(f) for f in range(LA)), []))]
    st2 = [It(x, 1, lo=1) for x in wload('gu', 7) + sum((wload('d', b) for b in range(6)), [])]
    st2 += [It(x, 1) for x in (f's_mov_b32 s50, {hx(pk)}', f's_mov_b32 s51, {hx(pk)}', 's_movk_i32 s41, 0x100',
                               's_mov_b32 s43, 0x100000', 's_mov_b32 s46, 0', 's_mov_b32 s48, s38',
                               f's_mov_b32 s52, {USLOT[2]*16384}', f's_mov_b32 s53, {USLOT[3]*16384}')]
    tail += sched(nanmf, [st1, st2], stats=stats)
    tail += [f's_mov_b32 s3, {hx(f2u(2.0**100))}', f'v_cmp_ngt_f32 vcc, s3, v{TMP+4}', 's_lshl_b32 s3, s33, 2',
             's_add_u32 s3, s3, 0x20000', 'v_mov_b32 v3, s3', 's_add_u32 s3, s36, 0x8000', f'v_add_u32 v252, s3, v{OST}',
             'v_add_u32 v253, 0x10000, v252', 's_nop 0', f'v_cmp_u_f32 s[28:29], v{L+4}, v{L+4}', 's_nop 0',
             's_or_b64 s[28:29], s[28:29], vcc', 's_cselect_b32 s3, 1, 0', 'v_mov_b32 v4, s3', 'ds_write_b32 v3, v4',
             'v_mov_b32 v3, 0x20000', 'RETAG U2,U3 A', f'NEED a[{KF}:{KF+15}]']
    o, vq = resolve_vm(tail, vq)
    o, q = insert_lgkm(o, q)
    emit(o)
    k.stamp()
    mf = []
    for f in range(0, 32, 2):
        x, y = omf(f), omf(f + 1)
        mf += [x[0], y[0], x[1], y[1]]
    rs, ns = [], []
    for f in range(32):
        if f + LA == 32:
            rs += [It('VWAIT B', 1, lo=2*f - 2, hi=2*f - 1), It('s_barrier', 1, lo=2*f - 2, hi=2*f)]
        for i, x in enumerate(ord_(f + LA)):
            rs.append(It(x, 1, lo=2*f + i - 1, hi=2*f + i, sep=not (f + LA == 32 and i == 0)))
        if f % 4 == 3:
            r = KF + 4 * ((f + 1) % 16)
            ns.append(It(f'NEED a[{r}:{r+15}]', 1, lo=2*f + 1, hi=2*f + 1))
    dm = []
    for h in range(2):
        dm += [f's_bfe_u32 s{28+h}, s50, {hx((3 << 16) | (4*h))}', f's_lshl_b32 s{28+h}, s{28+h}, 14', f's_add_u32 m0, s{28+h}, s48']
        so = 's41' if h == 0 else 's42'
        if h:
            dm.append(f's_add_u32 s42, s41, {128*1152}')
        dm += [f'buffer_load_dwordx4 v{DW+i}, s[56:59], {so} offen offset:{1024*i} lds ;@A' for i in range(4)]
    vp = [3 + (16 * i) // 3 for i in range(12)]
    dpos, spos = [p for i, p in enumerate(vp) if i % 3 != 2], vp[2::3]
    ds = []
    for x in dm:
        if x.startswith('buffer'):
            p = dpos.pop(0)
            ds.append(It(x, 1, lo=p, hi=p + 1, sep=True))
        else:
            ds.append(It(x, 1, lo=0, hi=dpos[0] - 1))
    fl = []
    for par, so, g0 in ((1, 's43', 5), (0, 's46', 37)):
        for x in flush_pair(par, so):
            if x.startswith('buffer'):
                p = spos.pop(0)
                fl.append(It(x, 1, lo=p, hi=p + 1))
            elif x.startswith('ds_'):
                fl.append(It(x, 1, lo=g0, hi=min(63, p + 3)))
                if not par:
                    r = x.split()[1].rstrip(',')
                    fl.append(It(f'v_add_u32 {r}, 1024, {r}', 1, hi=min(63, p + 5)))
            else:
                fl.append(It(x, 1, lo=g0, hi=spos[0] - 1))
        if par:
            fl.append(It('s_add_u32 s43, s46, 1024', 1, hi=36))
    fl.append(It('s_add_u32 s46, s46, 2048', 1, hi=63))
    up = []
    for nbl in range(4):
        for h in range(2):
            lastf = 8 * nbl + 4 * h + 3 - LA
            up.append(It(f'v_add_u32 v{(A1, A2)[h] + nbl}, s{52+h}, v{WA+nbl}', 1, lo=2 * lastf + 2, hi=min(60, 34 + 8 * nbl + 4 * h)))
    up.append(It('s_mov_b64 s[52:53], s[28:29]', 1, hi=63))
    end = ['s_lshr_b64 s[50:51], s[50:51], 8', 's_mov_b32 s51, s50', 's_add_u32 s41, s41, 128', 's_cmp_ge_u32 s41, 1152',
           's_cselect_b32 s48, 0x28000, s48', 's_cselect_b32 s41, 0x1000000, s41']
    en = [It(x, 1, lo=30, hi=48 + 2 * i, after=[ds[-4]]) for i, x in enumerate(end)]
    body = sched(mf, [ns, rs, ds, fl, up, en], stats=stats)
    i0, i1 = body.index(end[3]), body.index(end[5])
    assert not any(x.startswith(('s_add', 's_lsh', 's_bfe', 's_sub')) for x in body[i0:i1]), 'scc clobbered'
    body, vq, q = steady(['RETAG A B'] + body, vq, q)
    k('.p2align 6')
    k('L_oproj_loop:')
    emit(body)
    k(f's_cmp_lt_u32 s46, {9*2048}')
    k('s_cbranch_scc1 L_oproj_loop')
    k.stamp('o')
    k('s_waitcnt lgkmcnt(4)')
    k('ds_read_b128 v[4:7], v3')
    k('s_nop 2')
    emit(flush_pair(1, 's43'))
    k('s_waitcnt lgkmcnt(0)')
    k('v_or3_b32 v4, v4, v5, v6')
    k('v_or_b32 v4, v4, v7')
    k('s_nop 0')
    k('v_readfirstlane_b32 s47, v4')
    fuse = opt.get('fuse', True)
    k('s_andn2_b32 s47, s47, s45')
    if fuse:
        k('s_cbranch_scc1 L_attn_retry')
        emit_tail(k, ID, opt)
    else:
        k('s_cbranch_scc0 L_attn_end')
    k('L_attn_retry:')
    k('s_mov_b32 s45, 1')
    k.srd(48, 's30', 's31', 0)
    k('s_mov_b32 s41, 0')
    k('L_attn_maxloop:')
    k('s_barrier')
    k('s_mov_b32 m0, s38')
    k('s_nop 0')
    for i in range(4):
        k(f'buffer_load_dwordx4 v{DK+i}, s[8:11], s41 offen offset:{1024*i} lds')
    k('s_waitcnt vmcnt(0)')
    k('s_barrier')
    for ht in range(2):
        lines = []
        for u in range(8):
            lines += kread(ht, u)
        for u in range(8):
            lines += [qk1(0, u, qb, True) for qb in range(4)]
        lines.append('s_nop 7')
        for qb in range(4):
            lines += localmax(0, qb)
        for qb in range(4):
            lines.append(f'v_mov_b32 v{MX+qb}, v{TMP+qb}')
        lines, _ = insert_lgkm(lines)
        emit(lines)
    k('s_add_u32 s41, s41, 16384')
    k(f's_cmp_lt_u32 s41, {hx(524288)}')
    k('s_cbranch_scc1 L_attn_maxloop')
    k('s_barrier')
    lines, _ = resolve_vm(kdma(0) + kdma(1) + kdma(2) + vdma(0) + vdma(1) + ['VWAIT K0', 's_barrier'])
    emit(lines)
    k('s_branch L_attn_entry')
    k('L_attn_end:')
    if DIAG['on']:
        k('v_accvgpr_read_b32 v0, a254')
    k.stamp_end(2)
    k('L_attn_exit:')
    k('s_endpgm')
    k.stats = stats
    return k
```

```python
from lib import *
from small import *


def code_pf(k, tag, target, nbytes_label_end='L_code_end', r=60):
    k(f's_getpc_b64 s[{r}:{r+1}]')
    k(f'L_pc_{tag}:')
    k(f's_add_u32 s{r}, s{r}, {target}-L_pc_{tag}')
    k(f's_addc_u32 s{r+1}, s{r+1}, 0')
    k(f's_mov_b32 s{r+2}, {nbytes_label_end}-{target}')
    k(f's_mov_b32 s{r+3}, 0x20000')


def gen_mod2():
    k = K('mod_kernel', 184, 576, 2304, nvgpr=64)
    k('s_cmp_ge_u32 s2, 54')
    k('s_cbranch_scc1 L_mod_pf')
    k.stamp()
    k(f's_load_dwordx4 s[4:7], s[0:1], {ARG["c"]}')
    k(f's_load_dwordx2 s[20:21], s[0:1], {ARG["ws"]}')
    code_pf(k, 'mod', 'L_mod_body')
    k('v_lshlrev_b32 v5, 7, v0')
    k('s_mov_b32 s62, 4096')
    k('buffer_load_dword v6, v5, s[60:63], 0 offen')
    k('L_mod_body:')
    k('v_and_b32 v1, 7, v0')
    k('v_lshrrev_b32 v2, 3, v0')
    k(f'v_mul_u32_u24 v3, {8*6912}, v2')
    k('v_lshl_add_u32 v3, v1, 4, v3')
    k('s_lshl_b32 s3, s2, 7')
    k('v_lshlrev_b32 v4, 4, v2')
    k('s_waitcnt lgkmcnt(0)')
    k.stamp()
    k.srd(12, 's6', 's7', 576 * 6912)
    k.srd(8, 's4', 's5', 1152)
    k('buffer_load_dwordx4 v[8:11], v4, s[8:11], 0 offen')
    for i in range(8):
        k(f'buffer_load_dwordx4 v[{32+4*i}:{35+4*i}], v3, s[12:15], s3 offen')
        k('s_add_u32 s3, s3, 6912')
    k.srd(16, 's20', 's21', 13824)
    k('s_waitcnt vmcnt(8)')
    k.stamp()
    C, T = 12, 20
    for i in range(4):
        k(f'v_lshlrev_b32 v{C+2*i}, 16, v{8+i}')
        k(f'v_and_b32 v{C+2*i+1}, 0xffff0000, v{8+i}')
    for i in range(8):
        k(f'v_mul_f32 v{T+i}, {hx(f2u(-LOG2E))}, v{C+i}')
    for i in range(8):
        k(f'v_exp_f32 v{T+i}, v{T+i}')
    for i in range(8):
        k(f'v_add_f32 v{T+i}, 1.0, v{T+i}')
    for i in range(8):
        k(f'v_rcp_f32 v{T+i}, v{T+i}')
    for i in range(8):
        k(f'v_mul_f32 v{C+i}, v{C+i}, v{T+i}')
    rnd8(k, C, T)
    A = 20
    for i in range(8):
        k(f's_waitcnt vmcnt({7-i})')
        for j in range(4):
            w = 32 + 4 * i + j
            k(f'v_lshlrev_b32 v{28+j}, 16, v{w}')
            k(f'v_and_b32 v{w}, 0xffff0000, v{w}')
        for j in range(4):
            w = 32 + 4 * i + j
            op = 'v_mul_f32' if i == 0 else 'v_fmac_f32'
            k(f'{op} v{A+2*j}, v{28+j}, v{C+i}')
            k(f'{op} v{A+2*j+1}, v{w}, v{C+i}')
    k.stamp()
    k('s_nop 1')
    for j in range(8):
        k(f'v_add_f32_dpp v{A+j}, v{A+j}, v{A+j} row_ror:8 row_mask:0xf bank_mask:0xf')
    k('s_nop 0')
    for j in range(0, 8, 2):
        k(f'v_permlane16_swap_b32 v{A+j}, v{A+j+1}')
    for j in range(0, 8, 2):
        k(f'v_add_f32 v{A+j}, v{A+j}, v{A+j+1}')
    k('v_lshrrev_b32 v5, 6, v0')
    k('v_bfe_u32 v7, v0, 4, 2')
    k(f'v_permlane32_swap_b32 v{A}, v{A+2}')
    k(f'v_permlane32_swap_b32 v{A+4}, v{A+6}')
    k('v_lshlrev_b32 v5, 6, v5')
    k('v_lshl_add_u32 v5, v1, 3, v5')
    k('v_add_lshl_u32 v5, v5, v7, 2')
    k(f'v_add_f32 v{A}, v{A}, v{A+2}')
    k(f'v_add_f32 v{A+4}, v{A+4}, v{A+6}')
    k(f'ds_write_b32 v5, v{A}')
    k(f'ds_write_b32 v5, v{A+4} offset:16')
    k('s_waitcnt lgkmcnt(0)')
    k('s_barrier')
    k.stamp()
    k('v_cmp_gt_u32 vcc, 64, v0')
    k('s_and_saveexec_b64 s[30:31], vcc')
    k('s_cbranch_execz L_mod_end')
    k('v_lshlrev_b32 v5, 2, v0')
    for w in range(9):
        k(f'ds_read_b32 v{20+w}, v5 offset:{256*w}')
    k('s_sub_u32 s3, s2, 9')
    k('s_cmp_lt_u32 s3, 9')
    k('s_cselect_b32 s22, 1.0, 0')
    k('s_sub_u32 s3, s2, 36')
    k('s_cmp_lt_u32 s3, 9')
    k('s_cselect_b32 s22, 1.0, s22')
    k('s_lshl_b32 s3, s2, 8')
    k('s_waitcnt lgkmcnt(0)')
    for a, b in ((0, 1), (2, 3), (4, 5), (6, 7), (0, 2), (4, 6), (0, 8), (0, 4)):
        k(f'v_add_f32 v{20+a}, v{20+a}, v{20+b}')
    rnd_one(k, 20)
    k('v_add_f32 v20, s22, v20')
    rnd_one(k, 20)
    k('buffer_store_dword v20, v5, s[16:19], s3 offen sc1')
    k('L_mod_end:')
    k.stamp_end(0)
    k('s_endpgm')
    k('L_mod_pf:')
    k('s_sub_u32 s3, s2, 56')
    k('s_cmp_ge_u32 s3, 128')
    k('s_cbranch_scc1 L_mod_exit')
    k(f's_load_dwordx2 s[4:5], s[0:1], {ARG["x"]}')
    k('s_mul_i32 s3, s3, 18432')
    k('v_lshlrev_b32 v1, 7, v0')
    k('s_waitcnt lgkmcnt(0)')
    k.srd_off(8, 's4', 's5', 's3', 18432)
    k('buffer_load_dword v2, v1, s[8:11], 0 offen')
    k('L_mod_exit:')
    k('s_endpgm')
    return k


def red_g(k, regs, t, op='v_add_f32'):
    for sw in ('v_permlane16_swap_b32', 'v_permlane32_swap_b32'):
        for i, r in enumerate(regs):
            k(f'v_mov_b32 v{t+i}, v{r}')
        k('s_nop 1')
        for i, r in enumerate(regs):
            k(f'{sw} v{r}, v{t+i}')
        for i, r in enumerate(regs):
            k(f'{op} v{r}, v{r}, v{t+i}')


def chan_finish(k, ST, s_, m2, T):
    k(f'v_add_f32 v{s_}, v{ST}, v{ST+2}')
    k(f'v_add_f32 v{m2}, v{ST+1}, v{ST+3}')
    k(f'v_add_f32 v{T}, v{ST+4}, v{ST+6}')
    k(f'v_add_f32 v{T+1}, v{ST+5}, v{ST+7}')
    for i in range(4, 9):
        a = s_ if i % 2 == 0 else T
        k(f'v_add_f32 v{a}, v{a}, v{ST+2*i}')
        a = m2 if i % 2 == 0 else T + 1
        k(f'v_add_f32 v{a}, v{a}, v{ST+2*i+1}')
    k(f'v_add_f32 v{s_}, v{s_}, v{T}')
    k(f'v_add_f32 v{m2}, v{m2}, v{T+1}')
    k(f'v_mul_f32 v{s_}, {hx(f2u(1.0/9))}, v{s_}')
    for i in range(9):
        k(f'v_sub_f32 v{ST+2*i}, v{ST+2*i}, v{s_}')
    k(f'v_mul_f32 v{T}, v{ST}, v{ST}')
    k(f'v_mul_f32 v{T+1}, v{ST+2}, v{ST+2}')
    for i in range(2, 9):
        k(f'v_fmac_f32 v{T + i % 2}, v{ST+2*i}, v{ST+2*i}')
    k(f'v_add_f32 v{T}, v{T}, v{T+1}')
    k(f'v_fmac_f32 v{m2}, {hx(f2u(64.0))}, v{T}')
    k(f'v_mul_f32 v{m2}, {hx(f2u(1.0/576))}, v{m2}')
    rnd_pair(k, s_, m2, T)
    k(f'v_add_f32 v{m2}, {hx(f2u(1e-5))}, v{m2}')
    rnd_one(k, m2)
    k(f'v_sqrt_f32 v{m2}, v{m2}')


def gen_ln1b():
    k = K('ln1_kernel', 192, 576, 1536, nvgpr=96)
    k('s_cmp_ge_u32 s2, 128')
    k('s_cbranch_scc1 L_ln1_pf')
    k.stamp()
    k(f's_load_dwordx2 s[4:5], s[0:1], {ARG["x"]}')
    k(f's_load_dwordx2 s[6:7], s[0:1], {ARG["ws"]}')
    k('v_and_b32 v1, 15, v0')
    k('v_bfe_u32 v2, v0, 4, 2')
    k('v_lshrrev_b32 v3, 6, v0')
    k('v_lshlrev_b32 v4, 7, v3')
    k('v_lshl_add_u32 v4, v2, 4, v4')
    k('v_mul_u32_u24 v5, 1152, v1')
    k('v_add_u32 v5, v5, v4')
    k('v_lshlrev_b32 v4, 1, v4')
    k('s_mul_i32 s3, s2, 18432')
    k('s_waitcnt lgkmcnt(0)')
    k.stamp()
    k.srd(8, 's4', 's5', 2359296)
    k.srd(12, 's6', 's7', 13824)
    XL, SA, C1, X, D, T, ST = 12, 20, 36, 52, 68, 84, 68
    k(f'buffer_load_dwordx4 v[{XL}:{XL+3}], v5, s[8:11], s3 offen')
    k(f'buffer_load_dwordx4 v[{XL+4}:{XL+7}], v5, s[8:11], s3 offen offset:64')
    for h in range(2):
        for i in range(2):
            k(f'buffer_load_dwordx4 v[{C1+8*h+4*i}:{C1+8*h+4*i+3}], v4, s[12:15], 0 offen offset:{2304 + 128*h + 16*i}')
    for h in range(2):
        for i in range(2):
            k(f'buffer_load_dwordx4 v[{SA+8*h+4*i}:{SA+8*h+4*i+3}], v4, s[12:15], 0 offen offset:{128*h + 16*i}')
    k.srd_off(16, 's6', 's7', WS_H, 2359296)
    k('v_and_b32 v6, 63, v0')
    k('v_lshlrev_b32 v6, 4, v6')
    k('v_lshl_add_u32 v6, v3, 11, v6')
    k('v_mul_u32_u24 v9, 96, v1')
    k('v_lshl_add_u32 v8, v3, 3, v9')
    k('s_waitcnt vmcnt(8)')
    k.stamp()
    for i in range(8):
        k(f'v_lshlrev_b32 v{X+2*i}, 16, v{XL+i}')
        k(f'v_and_b32 v{X+2*i+1}, 0xffff0000, v{XL+i}')
    s_, m2 = 10, 11
    for i in range(4):
        k(f'v_add_f32 v{T+i}, v{X+i}, v{X+4+i}')
    for j in (8, 12):
        for i in range(4):
            k(f'v_add_f32 v{T+i}, v{T+i}, v{X+j+i}')
    k(f'v_add_f32 v{T}, v{T}, v{T+1}')
    k(f'v_add_f32 v{T+2}, v{T+2}, v{T+3}')
    k(f'v_add_f32 v{s_}, v{T}, v{T+2}')
    red_g(k, [s_], T)
    k(f'v_mul_f32 v{s_}, {hx(f2u(1.0/64))}, v{s_}')
    for i in range(16):
        k(f'v_sub_f32 v{D+i}, v{X+i}, v{s_}')
    for i in range(4):
        k(f'v_mul_f32 v{T+i}, v{D+i}, v{D+i}')
    for j in (4, 8, 12):
        for i in range(4):
            k(f'v_fmac_f32 v{T+i}, v{D+j+i}, v{D+j+i}')
    k(f'v_add_f32 v{T}, v{T}, v{T+1}')
    k(f'v_add_f32 v{T+2}, v{T+2}, v{T+3}')
    k(f'v_add_f32 v{m2}, v{T}, v{T+2}')
    red_g(k, [m2], T)
    k(f'ds_write_b64 v8, v[{s_}:{m2}]')
    k('s_waitcnt lgkmcnt(0)')
    k('s_barrier')
    k.stamp()
    T = 88
    for i in range(4):
        k(f'ds_read_b128 v[{ST+4*i}:{ST+4*i+3}], v9 offset:{16*i}')
    k(f'ds_read_b64 v[{ST+16}:{ST+17}], v9 offset:64')
    k('s_waitcnt lgkmcnt(0)')
    chan_finish(k, ST, s_, m2, T)
    for i in range(16):
        k(f'v_sub_f32 v{X+i}, v{X+i}, v{s_}')
    rnd_one(k, m2)
    k(f'v_rcp_f32 v{m2}, v{m2}')
    rnd8(k, X, T)
    rnd8(k, X + 8, T + 4)
    for i in range(16):
        k(f'v_mul_f32 v{X+i}, v{X+i}, v{m2}')
    rnd8(k, X, T)
    rnd8(k, X + 8, T + 4)
    k.stamp()
    k('s_waitcnt vmcnt(4)')
    for i in range(16):
        k(f'v_mul_f32 v{X+i}, v{X+i}, v{C1+i}')
    rnd8(k, X, T)
    rnd8(k, X + 8, T + 4)
    k('s_waitcnt vmcnt(0)')
    for h in range(2):
        for i in range(8):
            k(f'v_add_f32 v{X+8*h+i}, v{X+8*h+i}, v{SA+8*h+i}')
        for i in range(4):
            k(f'v_cvt_pk_bf16_f32 v{XL+4*h+i}, v{X+8*h+2*i}, v{X+8*h+2*i+1}')
        k(f'buffer_store_dwordx4 v[{XL+4*h}:{XL+4*h+3}], v6, s[16:19], s3 offen offset:{1024*h} sc1')
    k.stamp()
    k.stamp_end(1)
    k('s_endpgm')
    k('L_ln1_pf:')
    k('s_cmp_ge_u32 s2, 192')
    k('s_cbranch_scc1 L_ln1_exit')
    k(f's_load_dwordx2 s[4:5], s[0:1], {ARG["wq"]}')
    k('s_bfe_u32 s33, s2, 0x30003')
    k('v_cmp_gt_u32 vcc, 192, v0')
    k('s_and_saveexec_b64 s[30:31], vcc')
    k('s_cbranch_execz L_ln1_pf2')
    k('v_lshrrev_b32 v3, 3, v0')
    k('v_lshlrev_b32 v3, 13, v3')
    k('v_and_b32 v4, 7, v0')
    k('v_lshl_add_u32 v3, v4, 7, v3')
    k('s_and_b32 s3, s2, 7')
    k('s_lshl_b32 s3, s3, 10')
    k(f's_mul_i32 s34, s33, {24*8192}')
    k('s_add_u32 s3, s3, s34')
    k('s_waitcnt lgkmcnt(0)')
    k.srd(8, 's4', 's5', 576 * 8192)
    k('buffer_load_dword v5, v3, s[8:11], s3 offen')
    k('s_endpgm')
    k('L_ln1_pf2:')
    k('s_mov_b64 exec, -1')
    code_pf(k, 'ln1', 'attn_kernel')
    k('v_subrev_u32 v1, 192, v0')
    k('v_lshlrev_b32 v1, 7, v1')
    k('s_lshl_b32 s3, s33, 12')
    k('s_add_u32 s62, s3, 4096')
    k('buffer_load_dword v2, v1, s[60:63], s3 offen')
    k('L_ln1_exit:')
    k('s_endpgm')
    return k


def gen_k1(opt=None):
    NPF = (opt or {}).get('npf', 2)
    k = K('prep_kernel', 240 + 8 * NPF, 576, 1536, nvgpr=72)
    k('s_cmp_ge_u32 s2, 112')
    k('s_cbranch_scc1 L_k1_x')
    k.stamp()
    k(f's_load_dwordx4 s[4:7], s[0:1], {ARG["c"]}')
    k(f's_load_dwordx2 s[20:21], s[0:1], {ARG["ws"]}')
    k('s_and_b32 s32, s2, 0x70')
    k('s_and_b32 s3, s2, 7')
    k('s_lshl_b32 s3, s3, 1')
    k('s_add_u32 s32, s32, s3')
    k('s_bfe_u32 s3, s2, 0x10003')
    k('s_add_u32 s32, s32, s3')
    k('s_cmp_ge_u32 s32, 108')
    k('s_cbranch_scc1 L_k1_exit')
    k('v_and_b32 v1, 3, v0')
    k('v_lshrrev_b32 v2, 2, v0')
    k(f'v_mul_u32_u24 v3, {4*6912}, v2')
    k('v_lshl_add_u32 v3, v1, 4, v3')
    k('s_lshl_b32 s3, s32, 6')
    k('v_lshlrev_b32 v4, 3, v2')
    k('s_waitcnt lgkmcnt(0)')
    k.srd(12, 's6', 's7', 576 * 6912)
    k.srd(8, 's4', 's5', 1152)
    k('buffer_load_dwordx2 v[8:9], v4, s[8:11], 0 offen')
    for i in range(4):
        k(f'buffer_load_dwordx4 v[{32+4*i}:{35+4*i}], v3, s[12:15], s3 offen nt')
        k('s_add_u32 s3, s3, 6912')
    k.srd(16, 's20', 's21', 13824)
    k('v_lshrrev_b32 v5, 6, v0')
    k('v_bfe_u32 v7, v0, 4, 2')
    k('v_lshlrev_b32 v5, 5, v5')
    k('v_lshl_add_u32 v5, v1, 3, v5')
    k('v_add_lshl_u32 v5, v5, v7, 2')
    k('s_waitcnt vmcnt(4)')
    k.stamp()
    C, T = 12, 20
    for i in range(2):
        k(f'v_lshlrev_b32 v{C+2*i}, 16, v{8+i}')
        k(f'v_and_b32 v{C+2*i+1}, 0xffff0000, v{8+i}')
    for i in range(4):
        k(f'v_mul_f32 v{T+i}, {hx(f2u(-LOG2E))}, v{C+i}')
    for i in range(4):
        k(f'v_exp_f32 v{T+i}, v{T+i}')
    for i in range(4):
        k(f'v_add_f32 v{T+i}, 1.0, v{T+i}')
    for i in range(4):
        k(f'v_rcp_f32 v{T+i}, v{T+i}')
    for i in range(4):
        k(f'v_mul_f32 v{C+i}, v{C+i}, v{T+i}')
    rnd_pair(k, C, C + 1, T)
    rnd_pair(k, C + 2, C + 3, T + 1)
    A = 20
    for i in range(4):
        k(f's_waitcnt vmcnt({3-i})')
        for j in range(4):
            w = 32 + 4 * i + j
            k(f'v_lshlrev_b32 v{28+j}, 16, v{w}')
            k(f'v_and_b32 v{w}, 0xffff0000, v{w}')
        for j in range(4):
            w = 32 + 4 * i + j
            op = 'v_mul_f32' if i == 0 else 'v_fmac_f32'
            k(f'{op} v{A+2*j}, v{28+j}, v{C+i}')
            k(f'{op} v{A+2*j+1}, v{w}, v{C+i}')
    k.stamp()
    k('s_nop 1')
    for sh in (4, 8):
        for j in range(8):
            k(f'v_add_f32_dpp v{A+j}, v{A+j}, v{A+j} row_ror:{sh} row_mask:0xf bank_mask:0xf')
    k('s_nop 0')
    for j in range(0, 8, 2):
        k(f'v_permlane16_swap_b32 v{A+j}, v{A+j+1}')
    for j in range(0, 8, 2):
        k(f'v_add_f32 v{A+j}, v{A+j}, v{A+j+1}')
    k('s_nop 1')
    k(f'v_permlane32_swap_b32 v{A}, v{A+2}')
    k(f'v_permlane32_swap_b32 v{A+4}, v{A+6}')
    k(f'v_add_f32 v{A}, v{A}, v{A+2}')
    k(f'v_add_f32 v{A+4}, v{A+4}, v{A+6}')
    k(f'ds_write_b32 v5, v{A}')
    k(f'ds_write_b32 v5, v{A+4} offset:16')
    k('s_waitcnt lgkmcnt(0)')
    k('s_barrier')
    k('v_cmp_gt_u32 vcc, 32, v0')
    k('s_and_saveexec_b64 s[30:31], vcc')
    k('s_cbranch_execz L_k1_modend')
    k('v_lshlrev_b32 v5, 2, v0')
    for w in range(9):
        k(f'ds_read_b32 v{20+w}, v5 offset:{128*w}')
    k('s_sub_u32 s3, s32, 18')
    k('s_cmp_lt_u32 s3, 18')
    k('s_cselect_b32 s22, 1.0, 0')
    k('s_sub_u32 s3, s32, 72')
    k('s_cmp_lt_u32 s3, 18')
    k('s_cselect_b32 s22, 1.0, s22')
    k('s_lshl_b32 s3, s32, 7')
    k('s_waitcnt lgkmcnt(0)')
    for a, b in ((0, 1), (2, 3), (4, 5), (6, 7), (0, 2), (4, 6), (0, 8), (0, 4)):
        k(f'v_add_f32 v{20+a}, v{20+a}, v{20+b}')
    rnd_one(k, 20)
    k('v_add_f32 v20, s22, v20')
    rnd_one(k, 20)
    k('s_sub_u32 s23, s32, 18')
    k('s_cmp_lt_u32 s23, 18')
    k('s_cbranch_scc1 L_k1_half')
    k('buffer_store_dword v20, v5, s[16:19], s3 offen sc1')
    k('s_branch L_k1_modend')
    k('L_k1_half:')
    k('s_lshl_b32 s3, s23, 6')
    k('v_lshlrev_b32 v5, 1, v0')
    k('buffer_store_short_d16_hi v20, v5, s[16:19], s3 offen offset:2304 sc1')
    k('L_k1_modend:')
    k.stamp_end(0)
    k('s_endpgm')
    k('L_k1_x:')
    k.nstamp = 0
    k('s_cmp_ge_u32 s2, 240')
    k('s_cbranch_scc1 L_k1_pf')
    k.stamp()
    k(f's_load_dwordx2 s[4:5], s[0:1], {ARG["x"]}')
    k(f's_load_dwordx2 s[6:7], s[0:1], {ARG["ws"]}')
    k('v_and_b32 v1, 15, v0')
    k('v_bfe_u32 v2, v0, 4, 2')
    k('v_lshrrev_b32 v3, 6, v0')
    k('v_lshlrev_b32 v4, 7, v3')
    k('v_lshl_add_u32 v4, v2, 4, v4')
    k('v_mul_u32_u24 v5, 1152, v1')
    k('v_add_u32 v5, v5, v4')
    k('s_sub_u32 s3, s2, 112')
    k('s_mul_i32 s3, s3, 18432')
    k('s_waitcnt lgkmcnt(0)')
    k.srd(8, 's4', 's5', 2359296)
    XL, X, D, T, ST = 12, 20, 36, 56, 36
    k(f'buffer_load_dwordx4 v[{XL}:{XL+3}], v5, s[8:11], s3 offen nt')
    k(f'buffer_load_dwordx4 v[{XL+4}:{XL+7}], v5, s[8:11], s3 offen offset:64 nt')
    k.srd_off(16, 's6', 's7', WS_H, 2359296)
    k('v_and_b32 v6, 63, v0')
    k('v_lshlrev_b32 v6, 4, v6')
    k('v_lshl_add_u32 v6, v3, 11, v6')
    k('v_mul_u32_u24 v9, 96, v1')
    k('v_lshl_add_u32 v8, v3, 3, v9')
    k('s_waitcnt vmcnt(0)')
    k.stamp()
    for i in range(8):
        k(f'v_lshlrev_b32 v{X+2*i}, 16, v{XL+i}')
        k(f'v_and_b32 v{X+2*i+1}, 0xffff0000, v{XL+i}')
    s_, m2 = 10, 11
    for i in range(4):
        k(f'v_add_f32 v{T+i}, v{X+i}, v{X+4+i}')
    for j in (8, 12):
        for i in range(4):
            k(f'v_add_f32 v{T+i}, v{T+i}, v{X+j+i}')
    k(f'v_add_f32 v{T}, v{T}, v{T+1}')
    k(f'v_add_f32 v{T+2}, v{T+2}, v{T+3}')
    k(f'v_add_f32 v{s_}, v{T}, v{T+2}')
    red_g(k, [s_], T)
    k(f'v_mul_f32 v{s_}, {hx(f2u(1.0/64))}, v{s_}')
    for i in range(16):
        k(f'v_sub_f32 v{D+i}, v{X+i}, v{s_}')
    for i in range(4):
        k(f'v_mul_f32 v{T+i}, v{D+i}, v{D+i}')
    for j in (4, 8, 12):
        for i in range(4):
            k(f'v_fmac_f32 v{T+i}, v{D+j+i}, v{D+j+i}')
    k(f'v_add_f32 v{T}, v{T}, v{T+1}')
    k(f'v_add_f32 v{T+2}, v{T+2}, v{T+3}')
    k(f'v_add_f32 v{m2}, v{T}, v{T+2}')
    red_g(k, [m2], T)
    k(f'ds_write_b64 v8, v[{s_}:{m2}]')
    k('s_waitcnt lgkmcnt(0)')
    k('s_barrier')
    for i in range(4):
        k(f'ds_read_b128 v[{ST+4*i}:{ST+4*i+3}], v9 offset:{16*i}')
    k(f'ds_read_b64 v[{ST+16}:{ST+17}], v9 offset:64')
    k('s_waitcnt lgkmcnt(0)')
    chan_finish(k, ST, s_, m2, T)
    for i in range(16):
        k(f'v_sub_f32 v{X+i}, v{X+i}, v{s_}')
    rnd_one(k, m2)
    k(f'v_rcp_f32 v{m2}, v{m2}')
    rnd8(k, X, T)
    rnd8(k, X + 8, T + 4)
    for h in range(2):
        for i in range(8):
            k(f'v_mul_f32 v{X+8*h+i}, v{X+8*h+i}, v{m2}')
        for i in range(4):
            k(f'v_cvt_pk_bf16_f32 v{XL+4*h+i}, v{X+8*h+2*i}, v{X+8*h+2*i+1}')
        k(f'buffer_store_dwordx4 v[{XL+4*h}:{XL+4*h+3}], v6, s[16:19], s3 offen offset:{1024*h} sc1')
    k.stamp_end(1)
    k('s_endpgm')
    k('L_k1_pf:')
    k(f's_cmp_ge_u32 s2, {240 + 8*NPF}')
    k('s_cbranch_scc1 L_k1_exit')
    k(f's_load_dwordx2 s[4:5], s[0:1], {ARG["wq"]}')
    k(f's_load_dwordx2 s[12:13], s[0:1], {ARG["ws"]}')
    k('s_sub_u32 s33, s2, 240')
    k('s_lshr_b32 s33, s33, 3')
    k('v_cmp_gt_u32 vcc, 512, v0')
    k('s_and_saveexec_b64 s[30:31], vcc')
    k('s_cbranch_execz L_k1_pf2')
    k('v_lshrrev_b32 v3, 3, v0')
    k('v_lshlrev_b32 v3, 13, v3')
    k('v_and_b32 v4, 7, v0')
    k('v_lshl_add_u32 v3, v4, 7, v3')
    k('s_and_b32 s3, s2, 7')
    k('s_lshl_b32 s3, s3, 10')
    k('s_lshl_b32 s34, s33, 19')
    k('s_add_u32 s3, s3, s34')
    k('s_waitcnt lgkmcnt(0)')
    k.srd(8, 's4', 's5', 576 * 8192)
    k('buffer_load_dword v5, v3, s[8:11], s3 offen nt')
    k('s_endpgm')
    k('L_k1_pf2:')
    k('s_cmp_ge_u32 s33, 2')
    k('s_cbranch_scc1 L_k1_exit')
    k('s_mov_b64 exec, -1')
    code_pf(k, 'k1', 'attn_kernel', 'L_attn_tail')
    k('v_and_b32 v1, 63, v0')
    k('v_lshlrev_b32 v8, 4, v1')
    k('v_lshlrev_b32 v1, 7, v1')
    k('s_lshl_b32 s3, s33, 13')
    for i in range(2):
        k(f'buffer_load_dword v{2+i}, v1, s[60:63], s3 offen')
        k('s_add_u32 s3, s3, 0x4000')
    for i in range(4):
        k(f'v_mov_b32 v{4+i}, 0')
    k('s_and_b32 s3, s2, 15')
    k('s_lshl_b32 s3, s3, 10')
    k(f's_add_u32 s3, s3, {WS_R}')
    k('s_mov_b32 s14, 32768')
    k('s_mov_b32 s15, 0x20000')
    k('s_waitcnt lgkmcnt(0)')
    k('buffer_store_dwordx4 v[4:7], v8, s[12:15], s3 offen sc1')
    for i in range(4):
        k(f'v_mov_b32 v{12+i}, -1')
    k.srd_off(20, 's12', 's13', WS_X1, 9216)
    k(f's_sub_u32 s3, s3, {WS_R}')
    k('buffer_store_dwordx4 v[12:15], v8, s[20:23], s3 offen sc1')
    if (opt or {}).get('pf_tlb', False):
        k('s_lshl_b32 s3, s33, 3')
        k(f's_add_u32 s3, s3, {ARG["k"]}')
        k('s_load_dwordx2 s[16:17], s[0:1], s3')
        k('v_lshlrev_b32 v1, 10, v1')
        k(f's_mov_b32 s6, {576*8192}')
        k('s_mov_b32 s7, 0x20000')
        k('buffer_load_dword v9, v1, s[4:7], 0 offen nt')
        k(f's_mov_b32 s18, {8 << 20}')
        k('s_mov_b32 s19, 0x20000')
        k('s_waitcnt lgkmcnt(0)')
        k('buffer_load_dword v10, v1, s[16:19], 0 offen nt')
    k('L_k1_exit:')
    k('s_endpgm')
    return k
```

```python
from lib import *
from small import *

MF = 'v_mfma_f32_16x16x32_bf16'
WS_PFLAG = 24576
WS_YFLAG = 28672
SPIN = 1 << 20


def wreg(kind, b):
    if kind == 'd':
        return 8 + 4 * b
    m = 0 if kind == 'g' else 1
    return 192 + 8 * b + 4 * m if b < 7 else 4 * m


def wload(kind, b):
    if kind == 'gu':
        return [f's_mov_b32 s39, {b*589824}',
                f'buffer_load_dwordx4 a[{wreg("g", b)}:{wreg("g", b)+3}], v0, s[60:63], s39 offen ;@E',
                f'buffer_load_dwordx4 a[{wreg("u", b)}:{wreg("u", b)+3}], v0, s[64:67], s39 offen ;@E']
    return [f'buffer_load_dwordx4 a[{wreg("d", b)}:{wreg("d", b)+3}], v2, s[68:71], 0 offen offset:{b*128} ;@E']


def wstore(kind, b, va):
    if kind == 'd':
        return [f'ds_write_b128 v{va+1}, a[{wreg("d", b)}:{wreg("d", b)+3}] offset:{4096*b}']
    return [f'ds_write_b128 v{va}, a[{wreg(x, b)}:{wreg(x, b)+3}] offset:{4096*b + 32768*m}' for m, x in enumerate('gu')]


def yaddr(k, d, t, lane):
    k(f'v_lshrrev_b32 {t}, 4, {lane}')
    k('s_lshl_b32 s3, s33, 2')
    k(f'v_add_u32 {t}, s3, {t}')
    k(f'v_mul_u32_u24 {d}, {9*18432}, {t}')
    k(f'v_and_b32 {t}, 15, {lane}')
    k(f'v_lshl_add_u32 {d}, {t}, 4, {d}')
    k('s_lshl_b32 s3, s37, 8')
    k(f'v_add_u32 {d}, s3, {d}')


def yclear_setup():
    out = []
    k = out.append
    k('v_lshrrev_b32 v4, 3, v255')
    k('v_lshrrev_b32 v5, 4, v4')
    k('v_add_u32 v5, s28, v5')
    k(f'v_mul_u32_u24 v3, {9*18432}, v5')
    k('v_and_b32 v5, 15, v4')
    k('v_lshl_add_u32 v3, v5, 4, v3')
    for i in range(4):
        k(f'v_mov_b32 v{4+i}, -1')
    return out


def q4(t, r):
    return f'{t}[{r}:{r+3}]'


def poll(k, name, loads, regs):
    k(f's_mov_b32 s40, {SPIN}')
    k(f'L_poll_{name}:')
    for ln in loads:
        k(ln)
    k('s_waitcnt vmcnt(0)')
    t = regs[0]
    if len(regs) > 1:
        t = 3
        k(f'v_min_u32 v3, v{regs[0]}, v{regs[1]}')
        for i in range(2, len(regs), 2):
            k(f'v_min3_u32 v3, v3, v{regs[i]}, v{regs[min(i+1, len(regs)-1)]}')
    k(f'v_cmp_eq_u32 vcc, 0, v{t}')
    k('s_sub_u32 s40, s40, 1')
    k('s_cselect_b64 vcc, 0, vcc')
    k(f's_cbranch_vccnz L_poll_{name}')


def emit_tail(k, ID, opt):
    NU = 3
    XL, WR, GA, SB, CB, GB = 16, 28, 40, 64, 88, 112
    A, X1, D, T = 136, 160, 184, 208
    X0, W = D, 232
    k(f's_load_dwordx2 s[20:21], s[0:1], {ARG["wr"]}')
    k('s_barrier')
    for ln in wstore('gu', 7, 252) + [wstore('d', b, 252)[0] for b in range(6)]:
        k(ln)
    ws2 = sum((wstore('gu', b, 252) for b in range(7)), [])
    k('s_mov_b32 s34, s54')
    k('s_lshl_b32 s32, s35, 4')
    k('s_add_u32 s32, s32, s34')
    k.srd(8, 's30', 's31', 32768)
    k('s_lshl_b32 s43, s35, 2')
    k('s_add_u32 s43, s43, s33')
    k('s_lshl_b32 s43, s43, 4')
    k('s_add_u32 s43, s43, s34')
    k('s_lshl_b32 s43, s43, 2')
    k(f's_add_u32 s43, s43, {WS_PFLAG}')
    k('s_lshl_b32 s39, s32, 2')
    k('s_add_u32 s39, s39, s33')
    k('s_lshl_b32 s39, s39, 2')
    k(f's_add_u32 s39, s39, {WS_YFLAG}')
    k('v_mov_b32 v4, 0')
    k('v_mov_b32 v5, 1')
    k('v_mbcnt_lo_u32_b32 v2, -1, 0')
    k('v_mbcnt_hi_u32_b32 v2, -1, v2')
    k.srd_off(48, 's30', 's31', WS_Y, 144 * 18432)
    k('s_sub_u32 s37, s55, 144')
    k('v_and_b32 v1, 7, v2')
    k('v_lshrrev_b32 v3, 3, v2')
    k('v_lshlrev_b32 v6, 8, v3')
    k('v_lshl_add_u32 v6, v1, 4, v6')
    k('v_lshrrev_b32 v7, 5, v2')
    k('v_lshlrev_b32 v7, 6, v7')
    k('v_and_b32 v8, 1, v3')
    k('v_lshl_add_u32 v7, v8, 5, v7')
    k('v_and_b32 v8, 2, v3')
    k('v_lshl_add_u32 v7, v8, 3, v7')
    k('s_mul_i32 s3, s33, 384')
    k('v_add_u32 v7, s3, v7')
    k('v_lshlrev_b32 v8, 1, v7')
    k('s_lshl_b32 s3, s32, 3')
    k('v_add_u32 v9, s3, v1')
    k('v_mul_u32_u24 v10, 1152, v9')
    k('v_add_u32 v10, v10, v7')
    k.srd_off(16, 's30', 's31', WS_PART, 16 * 2359296)
    k.srd_off(24, 's30', 's31', WS_X1, 2 * 2359296)
    k('s_lshr_b32 s41, s32, 1')
    k('s_mul_i32 s41, s41, 18432')
    k('s_and_b32 s3, s32, 1')
    k('s_lshl_b32 s3, s3, 7')
    k('s_add_u32 s41, s41, s3')
    k('s_mul_i32 s3, s33, 6144')
    k('s_add_u32 s41, s41, s3')
    k('v_add_u32 v11, 4096, v6')
    k('s_lshr_b32 s3, s32, 2')
    k('s_lshl_b32 s3, s3, 6')
    k(f's_add_u32 s42, s3, {WS_PFLAG}')
    k('v_and_b32 v12, 15, v2')
    k('v_lshlrev_b32 v12, 2, v12')
    k('v_mul_u32_u24 v14, 32, v1')
    k(f'v_add_u32 v14, {LS}, v14')
    k('s_lshl_b32 s3, s33, 3')
    k('v_add_u32 v15, s3, v14')
    k('s_mul_i32 s3, s33, 3072')
    k(f's_add_u32 s3, s3, {LOWN}')
    k('v_lshl_add_u32 v3, v2, 4, s3')
    for u in range(NU):
        k(f'ds_read_b128 {q4("v", X1 + 4*u)}, v3 offset:{1024*u}')
    k('s_lshl_b32 s44, 1, s34')
    k('s_mov_b32 s45, 0')
    k(f's_mov_b32 s40, {SPIN}')
    k('s_mov_b32 s22, 1152')
    k('s_mov_b32 s23, 0x20000')
    k('buffer_load_dword v13, v12, s[8:11], s42 offen sc1')
    k('s_waitcnt lgkmcnt(0)')
    for u in range(NU):
        for t in range(2):
            k(f'{MF} {q4("v", A + 8*u + 4*t)}, {q4("a", ID + 2*t)}, {q4("v", X1 + 4*u)}, 0')
    k('s_waitcnt vmcnt(0)')
    k('buffer_store_dword v5, v4, s[8:11], s43 offen sc1')
    k.stamp()
    k('s_cmp_eq_u32 s33, 3')
    k('s_cbranch_scc1 L_tail_loader')

    def aux():
        out = [f'buffer_load_dwordx4 {q4("v", XL + 4*u)}, v10, s[72:75], 0 offen offset:{128*u}' for u in range(NU)]
        out += [f'buffer_load_dwordx4 {q4("v", WR + 4*u)}, v7, s[20:23], 0 offen offset:{128*u}' for u in range(NU)]
        for j, b in enumerate((GA, SB, CB, GB)):
            for u in range(NU):
                for h in range(2):
                    pre = f's_movk_i32 s38, {2304*(j+2)}\n' if u == 0 and h == 0 else ''
                    out.append(pre + f'buffer_load_dwordx4 {q4("v", b + 8*u + 4*h)}, v8, s[8:11], s38 offen offset:{256*u + 16*h}')
        return out

    def loads(j):
        return [f's_add_u32 s3, s41, {j*2359296}'] + [
            f'buffer_load_dwordx4 {q4("a", 12*j + 4*u)}, v{6 if u < 2 else 11}, s[16:19], s3 offen offset:{2048*(u % 2)} sc1 ;@P{j}'
            for u in range(NU)]

    def sums(j):
        return [f'{MF} {q4("v", A + 8*u + 4*t)}, {q4("a", ID + 2*t)}, {q4("a", 12*j + 4*u)}, {q4("v", A + 8*u + 4*t)}'
                for u in range(NU) for t in range(2)]

    def put(lines):
        for ln in lines:
            k(ln.split(' ;@')[0])

    def unpack():
        for src, dst in ((XL, X0), (WR, W)):
            for u in range(NU):
                for i in range(4):
                    k(f'v_lshlrev_b32 v{dst+8*u+2*i}, 16, v{src+4*u+i}')
                    k(f'v_and_b32 v{dst+8*u+2*i+1}, 0xffff0000, v{src+4*u+i}')
    k('v_cmp_ne_u32 vcc, 0, v13')
    k('s_nop 0')
    k('s_or_b32 s46, s44, vcc_lo')
    k('s_and_b32 s46, s46, 0xffff')
    k('s_cmp_eq_u32 s46, 0xffff')
    k('s_cbranch_scc1 L_part_all')
    k('s_andn2_b32 s46, s46, s44')
    put(aux())
    put(ws2)
    k('s_branch L_part_new')
    k('L_poll_part:')
    k('buffer_load_dword v13, v12, s[8:11], s42 offen sc1')
    k('s_waitcnt vmcnt(0)')
    k('v_cmp_ne_u32 vcc, 0, v13')
    k('s_sub_u32 s40, s40, 1')
    k('s_cselect_b32 s46, -1, vcc_lo')
    k('s_and_b32 s46, s46, 0xffff')
    k('s_andn2_b32 s46, s46, s44')
    k('L_part_new:')
    k('s_mov_b32 s52, s46')
    for i in range(opt.get('batch', 5)):
        k('s_sub_u32 s3, s52, 1')
        k('s_and_b32 s52, s52, s3')
    k('s_or_b32 s3, s46, s44')
    k('s_cmp_eq_u32 s3, 0xffff')
    k('s_cselect_b32 s52, 0, s52')
    k('s_xor_b32 s46, s46, s52')
    for j in range(16):
        k(f's_bitcmp1_b32 s46, {j}')
        k(f's_cbranch_scc0 L_part_l{j}')
        put(loads(j))
        k(f'L_part_l{j}:')
    k('L_part_sum:')
    k('s_cmp_eq_u32 s45, 0')
    k('s_cbranch_scc1 L_part_nosum')
    for j in range(16):
        k(f's_bitcmp1_b32 s45, {j}')
        k(f's_cbranch_scc0 L_part_s{j}')
        put(sums(j))
        k(f'L_part_s{j}:')
    k('L_part_nosum:')
    k('s_cmp_eq_u32 s44, 0xffff')
    k('s_cbranch_scc1 L_part_done')
    k('s_mov_b32 s45, s46')
    k('s_or_b32 s44, s44, s46')
    k('s_cmp_lg_u32 s44, 0xffff')
    k('s_cbranch_scc1 L_poll_part')
    k.stamp()
    k('s_waitcnt lgkmcnt(0)')
    unpack()
    k('s_waitcnt vmcnt(0)')
    k('s_branch L_part_sum')
    k('L_part_all:')
    if DIAG['on']:
        k.nstamp -= 1
    k.stamp()
    ax = aux()
    seq = []
    for j in range(15):
        seq += [f's_add_u32 s3, s34, {j + 1}', 's_and_b32 s3, s3, 15', 's_mul_i32 s3, s3, 2359296', 's_add_u32 s3, s3, s41'] + loads(j)[1:]
    seq += ax[:15] + ws2
    ax = ax[15:]
    for j in range(15):
        seq += [f'VWAIT P{j}'] + sums(j) + ax[3*j:3*j + 3]
    seq = sum((x.split('\n') for x in seq), [])
    seq, _ = resolve_vm(seq, ['F'])
    put(seq)
    k('s_waitcnt vmcnt(0) lgkmcnt(0)')
    unpack()
    k('L_part_done:')
    k.stamp()
    k('s_nop 7')

    def each(fmt, n=8):
        for u in range(NU):
            for i in range(n):
                k(fmt(u, i))

    def rnd(X, P):
        each(lambda u, i: f'v_cvt_pk_bf16_f32 v{P+(8 if P == T else 4)*u+i}, v{X+8*u+2*i}, v{X+8*u+2*i+1}', 4)
        for u in range(NU):
            for i in range(4):
                p = P + (8 if P == T else 4) * u + i
                k(f'v_lshlrev_b32 v{X+8*u+2*i}, 16, v{p}')
                k(f'v_and_b32 v{X+8*u+2*i+1}, s47, v{p}')
    k('s_mov_b32 s47, 0xffff0000')
    each(lambda u, i: f'v_cvt_pk_bf16_f32 v{T+8*u+i}, v{A+8*u+2*i}, v{A+8*u+2*i+1}', 4)
    each(lambda u, i: f'v_mov_b32 v{T+8*u+4+i}, v{T+8*u+2+i}', 2)
    each(lambda u, i: f'v_mov_b32_dpp v{T+8*u+2+i}, v{T+8*u+i} row_ror:8 row_mask:0xf bank_mask:0x3', 2)
    each(lambda u, i: f'v_mov_b32_dpp v{T+8*u+i}, v{T+8*u+4+i} row_ror:8 row_mask:0xf bank_mask:0xc', 2)
    for u in range(NU):
        for i in range(4):
            k(f'v_lshlrev_b32 v{A+8*u+2*i}, 16, v{T+8*u+i}')
            k(f'v_and_b32 v{A+8*u+2*i+1}, s47, v{T+8*u+i}')
    s_, m2 = 4, 5

    def pk(op, d, x, y, mod=''):
        for i in range(0, 24, 2):
            if y == 'lo':
                yy = f'v[4:5] op_sel_hi:[1,0]'
            elif y == 'hi':
                yy = f'v[4:5] op_sel:[0,1]'
            else:
                yy = f'v[{y+i}:{y+i+1}]'
            k(f'v_pk_{op}_f32 v[{d+i}:{d+i+1}], v[{x+i}:{x+i+1}], {yy}{mod}')
    NEG = ' neg_lo:[0,1] neg_hi:[0,1]'

    def fold(dst):
        k(f'v_pk_add_f32 v[{T}:{T+1}], v[{T}:{T+1}], v[{T+2}:{T+3}]')
        k(f'v_pk_add_f32 v[{T+4}:{T+5}], v[{T+4}:{T+5}], v[{T+6}:{T+7}]')
        k(f'v_pk_add_f32 v[{T}:{T+1}], v[{T}:{T+1}], v[{T+4}:{T+5}]')
        k(f'v_add_f32 v{dst}, v{T}, v{T+1}')

    def tree(src, dst):
        for i in range(0, 8, 2):
            k(f'v_pk_add_f32 v[{T+i}:{T+i+1}], v[{src+i}:{src+i+1}], v[{src+8+i}:{src+9+i}]')
        for i in range(0, 8, 2):
            k(f'v_pk_add_f32 v[{T+i}:{T+i+1}], v[{T+i}:{T+i+1}], v[{src+16+i}:{src+17+i}]')
        fold(dst)

    def dot(a, b, dst):
        for i in range(0, 8, 2):
            k(f'v_pk_mul_f32 v[{T+i}:{T+i+1}], v[{a+i}:{a+i+1}], v[{b+i}:{b+i+1}]')
        for i in range(8, 24, 2):
            t = T + i % 8
            k(f'v_pk_fma_f32 v[{t}:{t+1}], v[{a+i}:{a+i+1}], v[{b+i}:{b+i+1}], v[{t}:{t+1}]')
        fold(dst)
    pk('mul', A, A, GA)
    rnd(A, T)
    pk('add', X1, X0, A)
    rnd(X1, XL)
    tree(X1, s_)
    red_q8(k, [s_], T)
    k(f'v_mul_f32 v{s_}, {hx(f2u(1.0/192))}, v{s_}')
    pk('add', D, X1, 'lo', NEG)
    dot(D, D, m2)
    red_q8(k, [m2], T)
    k(f'ds_write_b64 v15, v[{s_}:{m2}]')
    k('s_waitcnt lgkmcnt(0)')
    k('s_barrier')
    ST = T + 8
    k(f'ds_read_b128 {q4("v", ST)}, v14')
    k(f'ds_read_b64 v[{ST+4}:{ST+5}], v14 offset:16')
    k('s_waitcnt lgkmcnt(0)')
    k(f'v_pk_add_f32 v[4:5], v[{ST}:{ST+1}], v[{ST+2}:{ST+3}]')
    k(f'v_pk_add_f32 v[4:5], v[4:5], v[{ST+4}:{ST+5}]')
    k(f'v_mul_f32 v{s_}, {hx(f2u(1.0/3))}, v{s_}')
    for i in range(3):
        k(f'v_sub_f32 v{ST+2*i}, v{ST+2*i}, v{s_}')
    k(f'v_mul_f32 v{T}, v{ST}, v{ST}')
    k(f'v_fmac_f32 v{T}, v{ST+2}, v{ST+2}')
    k(f'v_fmac_f32 v{T}, v{ST+4}, v{ST+4}')
    k(f'v_fmac_f32 v{m2}, {hx(f2u(192.0))}, v{T}')
    k(f'v_mul_f32 v{m2}, {hx(f2u(1.0/576))}, v{m2}')
    rnd_pair(k, s_, m2, T)
    k(f'v_add_f32 v6, {hx(f2u(1e-5))}, v{m2}')
    rnd_one(k, 6)
    k(f'v_sqrt_f32 v6, v6')
    pk('add', D, X1, 'lo', NEG)
    rnd_one(k, 6)
    k(f'v_rcp_f32 v{m2}, v6')
    rnd(D, T)
    pk('mul', D, D, 'hi')
    rnd(D, T)
    pk('mul', D, D, CB)
    rnd(D, T)
    pk('add', D, D, SB)
    rnd(D, WR)
    dot(D, W, s_)
    k('s_mov_b32 s3, 2359296')
    for u in range(NU):
        k(f'buffer_store_dwordx4 {q4("v", WR + 4*u)}, v10, s[24:27], s3 offen offset:{128*u} sc1')
    red_q8(k, [s_], T)
    k(f'ds_write_b32 v15, v{s_} offset:256')
    k('s_waitcnt lgkmcnt(0)')
    k('s_barrier')
    k(f'ds_read_b128 {q4("v", ST)}, v14 offset:256')
    k(f'ds_read_b32 v{ST+4}, v14 offset:272')
    k('v_lshlrev_b32 v6, 2, v9')
    k('s_mov_b32 s3, 0xfffff800')
    k('s_lshl_b32 s41, s33, 16')
    k(f's_add_u32 s41, s41, {WS_R}')
    k('s_waitcnt lgkmcnt(0)')
    k(f'v_add_f32 v{s_}, v{ST}, v{ST+2}')
    k(f'v_add_f32 v{s_}, v{s_}, v{ST+4}')
    k(f'v_ashrrev_i32 v{m2}, 31, v{s_}')
    k(f'v_or_b32 v{m2}, 0x80000000, v{m2}')
    k(f'v_xor_b32 v{s_}, v{s_}, v{m2}')
    k(f'v_max_u32 v{s_}, 0x800, v{s_}')
    k(f'v_and_or_b32 v{s_}, v{s_}, s3, v9')
    k(f'buffer_store_dword v{s_}, v6, s[8:11], s41 offen sc1')
    k('v_mov_b32 v100, v9')
    k('v_mov_b32 v101, v10')
    k('v_mov_b32 v102, v7')

    def out_math():
        pk('mul', A, D, GB)
        rnd(A, T)
        pk('add', A, A, X1)
        each(lambda u, i: f'v_cvt_pk_bf16_f32 v{88+4*u+i}, v{A+8*u+2*i}, v{A+8*u+2*i+1}', 4)

    def out_store(name):
        k('s_cmp_eq_u32 s33, 3')
        k(f's_cbranch_scc1 L_out_{name}')
        for u in range(NU):
            k(f'buffer_store_dwordx4 {q4("v", 88 + 4*u)}, v101, s[76:79], 0 offen offset:{128*u} sc1')
        k(f'L_out_{name}:')

    def out_mask(name):
        k('s_movk_i32 s3, 0x7ff')
        for i in range(8):
            k(f'v_bitop3_b32 v{104+i}, v{104+i}, s3, v100 bitop3:0x6a')
        for i in range(8):
            k(f'v_lshl_or_b32 v{104+i}, v{104+i}, 3, {i}')
        k('v_min3_u32 v104, v104, v105, v106')
        k('v_min3_u32 v107, v107, v108, v109')
        k('v_min3_u32 v104, v104, v110, v111')
        k('v_min_u32 v104, v104, v107')
        k('v_cmp_gt_u32 vcc, 8, v104')
        k('v_mov_b32 v105, 0x1000000')
        k('s_mov_b32 s47, 0xffff0000')
        k('v_cndmask_b32 v101, v101, v105, vcc')
        k('s_cmp_eq_u32 s33, 3')
        k('s_cselect_b64 s[52:53], 0, vcc')

    def sel_store(name):
        k('s_cmp_eq_u64 s[52:53], 0')
        k(f's_cbranch_scc1 L_nosel_{name}')
        k('v_mul_u32_u24 v104, 1152, v104')
        k('v_add_u32 v104, v104, v102')
        k('v_cndmask_b32 v104, v105, v104, s[52:53]')
        each(lambda u, i: f'v_cvt_pk_bf16_f32 v{232+4*u+i}, v{X1+8*u+2*i}, v{X1+8*u+2*i+1}', 4)
        for u in range(NU):
            k(f'buffer_store_dwordx4 {q4("v", 232 + 4*u)}, v104, s[24:27], 0 offen offset:{128*u} sc1')
        k(f'L_nosel_{name}:')
    k('s_branch L_tail_moe')
    k('L_tail_loader:')
    put(ws2)
    k('s_mul_i32 s3, s55, 18432')
    k('buffer_load_dword v13, v4, s[48:51], s3 offen sc1')
    k('s_waitcnt vmcnt(0) lgkmcnt(0)')
    if DIAG['on']:
        n = k.nstamp
        k(f's_memrealtime s[{78+2*n}:{79+2*n}]')
        k(f's_memrealtime s[{76+2*n}:{77+2*n}]')
        k('s_waitcnt lgkmcnt(0)')
    k('v_lshlrev_b32 v3, 7, v2')
    k('s_mov_b32 s3, L_part_done-L_attn_pc-0x3000')
    k('buffer_load_dword v103, v3, s[4:7], s3 offen')
    k('s_barrier')
    k('s_mov_b32 s3, L_tail_moe-L_attn_pc-0x3000')
    k('buffer_load_dword v103, v3, s[4:7], s3 offen sc1')
    k('s_barrier')
    k('L_tail_moe:')
    k('s_mov_b32 s32, s55')
    k.stamp()
    k('v_mov_b32 v1, s33')
    k('v_lshrrev_b32 v13, 4, v2')
    k('v_lshlrev_b32 v5, 4, v2')
    k('v_and_b32 v10, 7, v2')
    k.srd_off(24, 's30', 's31', WS_X1, 2 * 2359296)
    k('s_cmp_ge_u32 s32, 144')
    k('s_cbranch_scc1 L_tail_fprep')
    k('v_bfe_u32 v3, v2, 2, 2')
    k('v_lshl_add_u32 v3, v13, 3, v3')
    k('v_lshlrev_b32 v3, 6, v3')
    k('v_and_b32 v9, 3, v2')
    k('v_lshl_add_u32 v3, v9, 3, v3')
    k('v_xor_b32 v4, v13, v1')
    k('v_and_b32 v4, 1, v4')
    k('v_lshl_add_u32 v3, v4, 5, v3')
    k('s_lshr_b32 s3, s33, 1')
    k('s_lshl_b32 s41, s3, 12')
    k(f's_add_u32 s41, s41, {LG8}')
    k('v_add_u32 v8, s41, v3')
    k('s_lshl_b32 s3, s3, 15')
    k(f's_add_u32 s3, s3, {LG}')
    k('v_add_u32 v3, s3, v3')
    AF, DN = 0, 72
    lines = []
    for kk in range(18):
        a, o = (3, 2048 * kk) if kk < 16 else (8, 2048 * (kk - 16))
        lines.append(f'ds_read_b64_tr_b16 a[{AF+4*kk}:{AF+4*kk+1}], v{a} offset:{o}')
        lines.append(f'ds_read_b64_tr_b16 a[{AF+4*kk+2}:{AF+4*kk+3}], v{a} offset:{o+256}')
    for i in range(9):
        o = 4096 * i if i < 6 else LD2 - LD + 4096 * (i - 6)
        lines.append(f'ds_read_b64_tr_b16 a[{DN+4*i}:{DN+4*i+1}], v14 offset:{o}')
        lines.append(f'ds_read_b64_tr_b16 a[{DN+4*i+2}:{DN+4*i+3}], v14 offset:{o+2048}')
    k('v_lshrrev_b32 v14, 2, v2')
    k('v_lshlrev_b32 v14, 7, v14')
    k('v_lshl_add_u32 v14, v9, 3, v14')
    k('v_bfe_u32 v4, v2, 3, 2')
    k('v_xor_b32 v4, v4, v1')
    k('v_lshl_add_u32 v14, v4, 5, v14')
    k(f'v_add_u32 v14, {LD}, v14')
    k('s_mul_i32 s3, s32, 18432')
    k(f's_add_u32 s3, s3, {WS_Y}')
    k.srd_off(16, 's30', 's31', 's3', 18432)
    k('v_lshlrev_b32 v15, 4, v10')
    k('v_lshl_add_u32 v15, v13, 7, v15')
    k('v_lshl_add_u32 v15, v1, 9, v15')
    k('v_and_b32 v4, 8, v2')
    k('v_lshl_add_u32 v15, v4, 20, v15')
    k('v_lshlrev_b32 v12, 3, v4')
    k('v_lshl_add_u32 v12, v13, 4, v12')
    k('s_branch L_tail_select')
    k('L_tail_fprep:')
    yaddr(k, 'v0', 'v3', 'v2')
    k('v_and_b32 v12, 8, v2')
    k('v_lshlrev_b32 v15, 1, v12')
    k('v_and_b32 v14, 15, v2')
    k('v_lshlrev_b32 v14, 4, v14')
    k('v_lshl_add_u32 v13, v1, 8, v14')
    k('L_tail_select:')
    k('s_lshl_b32 s41, s33, 11')
    k(f's_add_u32 s41, s41, {WS_R}')
    k('v_lshlrev_b32 v6, 2, v10')
    k('v_lshl_add_u32 v61, v1, 6, v6')
    k(f'v_add_u32 v61, {LC + 128}, v61')
    k('v_lshl_add_u32 v6, v1, 5, v6')
    k(f'v_add_u32 v6, {LC}, v6')
    k('v_and_b32 v62, 31, v2')
    k('v_lshlrev_b32 v62, 2, v62')
    k(f'v_add_u32 v62, {LC}, v62')
    k(f'v_mov_b32 v63, {LC}')
    k('s_lshl_b32 s38, s33, 6')
    k(f's_add_u32 s38, s38, {LC + 128}')
    sp = ['s[40:41]', 's[42:43]', 's[44:45]', 's[46:47]']
    k('v_lshrrev_b32 v44, 4, v2')
    k('v_lshl_add_u32 v44, v1, 2, v44')
    k('v_lshlrev_b32 v44, 2, v44')
    k(f'v_add_u32 v44, {LC + 384}, v44')
    k('v_and_b32 v45, 15, v2')
    k('v_lshlrev_b32 v45, 2, v45')
    k(f'v_add_u32 v45, {LC + 384}, v45')
    k('v_lshlrev_b32 v46, 5, v1')
    k(f'v_add_u32 v46, {LC}, v46')
    k(f'v_mov_b32 v47, {LC + 448}')
    k('v_mov_b32 v11, 0')
    R = 16
    kl = [f'buffer_load_dwordx4 {q4("v", R)}, v5, s[8:11], s41 offen sc1',
          f'buffer_load_dwordx4 {q4("v", R+4)}, v5, s[8:11], s41 offen offset:1024 sc1']
    k(f's_mov_b32 s40, {SPIN}')
    k('v_mov_b32 v4, 0')
    k('v_mov_b32 v7, 1')
    k(kl[0])
    k(kl[1])
    k('s_waitcnt vmcnt(3)')
    k('s_cmp_eq_u32 s33, 0')
    k('s_cbranch_scc1 L_tail_rows')
    k('s_waitcnt vmcnt(2)')
    k('L_tail_rows:')
    k('buffer_store_dword v7, v4, s[8:11], s39 offen sc1')
    k('s_cmp_ge_u32 s32, 144')
    k('s_cbranch_scc1 L_tail_nofrag')
    for i, ln in enumerate(lines):
        k(ln)
        if i % 6 == 5 and i >= 11:
            k('s_waitcnt lgkmcnt(8)')
    k('L_tail_nofrag:')
    k('s_waitcnt vmcnt(1)')
    k('s_branch L_keys_chk')
    k('L_poll_keys:')
    k(kl[0])
    k(kl[1])
    k('s_waitcnt vmcnt(0)')
    k('L_keys_chk:')
    k(f'v_min3_u32 v3, v{R}, v{R+1}, v{R+2}')
    k(f'v_min3_u32 v4, v{R+3}, v{R+4}, v{R+5}')
    k(f'v_min3_u32 v3, v3, v{R+6}, v{R+7}')
    k('v_min_u32 v3, v3, v4')
    k('v_cmp_eq_u32 vcc, 0, v3')
    k('s_sub_u32 s40, s40, 1')
    k('s_cselect_b64 vcc, 0, vcc')
    k('s_cbranch_vccnz L_poll_keys')
    k.stamp()
    k('s_lshl_b32 s39, s33, 10')
    k(f's_add_u32 s39, s39, {WS_YFLAG}')
    k(f'v_max3_u32 v8, v{R}, v{R+1}, v{R+2}')
    k(f'v_max3_u32 v9, v{R+3}, v{R+4}, v{R+5}')
    k(f'v_max3_u32 v8, v8, v{R+6}, v{R+7}')
    k('v_max_u32 v8, v8, v9')
    for sh in (1, 2, 4, 8):
        k('s_nop 1')
        k(f'v_max_u32_dpp v8, v8, v8 row_ror:{sh} row_mask:0xf bank_mask:0xf')
    k('ds_write_b32 v44, v8')
    k('ds_write_b32 v6, v11')
    k('s_waitcnt lgkmcnt(0)')
    k('s_barrier')
    k('ds_read_b32 v9, v45')
    for i in range(4):
        k(f'ds_read_b128 {q4("v", 24 + 4*i)}, v63 offset:{384 + 16*i}')
    k('v_mov_b32 v7, 0')
    k('v_mov_b32 v8, 0')
    for i in range(0, 16, 4):
        k(f's_waitcnt lgkmcnt({3 - i//4})')
        for j in range(4):
            k(f'v_cmp_gt_u32 {sp[j]}, v{24+i+j}, v9')
        for j in range(4):
            k(f'v_addc_co_u32 v{7 + j % 2}, vcc, 0, v{7 + j % 2}, {sp[j]}')
    k('v_add_u32 v7, v7, v8')
    k('v_cmp_eq_u32 vcc, 7, v7')
    k('s_mov_b32 s52, 0')
    k('s_ff1_i32_b32 s3, vcc_lo')
    k('s_and_b32 s3, s3, 15')
    k('v_readlane_b32 s53, v9, s3')
    k('s_nop 1')
    for half in range(2):
        for j in range(4):
            k(f'v_cmp_le_u32 {sp[j]}, s53, v{R + 4*half + j}')
        for j in range(4):
            lo = 40 + 2 * j
            k(f'v_mbcnt_lo_u32_b32 v{24+j}, s{lo}, 0')
            k(f'v_mbcnt_hi_u32_b32 v{24+j}, s{lo+1}, v{24+j}')
            k(f'v_add_u32 v{24+j}, s52, v{24+j}')
            k(f's_bcnt1_i32_b64 s3, {sp[j]}')
            k(f'v_min_u32 v{24+j}, 7, v{24+j}')
            k('s_add_u32 s52, s52, s3')
            k(f'v_lshl_add_u32 v{24+j}, v{24+j}, 2, v46')
            k(f'v_cndmask_b32 v{24+j}, v47, v{24+j}, {sp[j]}')
            k(f'ds_write_b32 v{24+j}, v{R + 4*half + j}')
    k('s_cmp_le_u32 s52, 8')
    k('s_cbranch_scc1 L_top_done')
    k('v_mov_b32 v7, -1')
    k('s_mov_b32 s3, 0')
    k('L_top_round:')
    TT = 24
    for i in range(8):
        k(f'v_sub_u32 v{TT+i}, v7, v{R+i}')
    k(f'v_min3_u32 v8, v{TT}, v{TT+1}, v{TT+2}')
    k(f'v_min3_u32 v9, v{TT+3}, v{TT+4}, v{TT+5}')
    k(f'v_min3_u32 v8, v8, v{TT+6}, v{TT+7}')
    k('v_min_u32 v8, v8, v9')
    red32(k, 8, 9, 'v_min_u32')
    k('v_mov_b32 v9, v8')
    k('v_cmp_eq_u32 vcc, s3, v10')
    k('s_nop 0')
    k('v_permlane32_swap_b32 v8, v9')
    k('v_min_u32 v8, v8, v9')
    k('v_sub_u32 v8, v7, v8')
    k('v_subrev_u32 v7, 1, v8')
    k('v_cndmask_b32 v11, v11, v8, vcc')
    k('s_add_u32 s3, s3, 1')
    k('s_cmp_lt_u32 s3, 8')
    k('s_cbranch_scc1 L_top_round')
    k('ds_write_b32 v6, v11')
    k('L_top_done:')
    k('buffer_load_dwordx4 v[48:51], v5, s[8:11], s39 offen sc1')
    k('s_waitcnt lgkmcnt(0)')
    k('s_barrier')
    k('ds_read_b32 v11, v62')
    for i in range(8):
        k(f'ds_read_b128 {q4("v", 16 + 4*i)}, v63 offset:{16*i}')
    k('v_mov_b32 v7, 0')
    k('v_mov_b32 v8, 0')
    for i in range(0, 32, 4):
        k(f's_waitcnt lgkmcnt({7 - i//4})')
        for j in range(4):
            k(f'v_cmp_gt_u32 {sp[j]}, v{16+i+j}, v11')
        for j in range(4):
            k(f'v_addc_co_u32 v{7 + j % 2}, vcc, 0, v{7 + j % 2}, {sp[j]}')
    k('v_add_u32 v7, v7, v8')
    k('v_min_u32 v7, 8, v7')
    k('v_lshl_add_u32 v7, v7, 2, s38')
    k('ds_write_b32 v7, v11')
    k('ds_read_b32 v11, v61')
    k('v_mov_b32 v7, s38')
    k('ds_read_b128 v[104:107], v7')
    k('ds_read_b128 v[108:111], v7 offset:16')
    k(f's_mov_b32 s40, {SPIN}')
    k('s_branch L_rows_chk')
    k('L_rows_poll:')
    k('buffer_load_dwordx4 v[48:51], v5, s[8:11], s39 offen sc1')
    k('L_rows_chk:')
    k('s_waitcnt vmcnt(0)')
    k('v_min3_u32 v3, v48, v49, v50')
    k('v_cmp_eq_u32 vcc, 0, v3')
    k('s_sub_u32 s40, s40, 1')
    k('s_cselect_b64 vcc, 0, vcc')
    k('s_cbranch_vccnz L_rows_poll')
    k('s_barrier')
    k('s_waitcnt lgkmcnt(2)')
    k.stamp('t')
    k('v_and_b32 v7, 0x7ff, v11')
    k('v_mul_u32_u24 v7, 1152, v7')
    k('v_add_u32 v12, v12, v7')
    k('s_cmp_ge_u32 s32, 144')
    k('s_cbranch_scc1 L_tail_final')
    B = 16
    LH = 8192
    k('s_lshl_b32 s3, s33, 7')
    k('s_add_u32 s3, s3, 2359296')
    k('s_mov_b32 s38, 2359296')
    k(f'buffer_load_dwordx4 v[72:75], v12, s[24:27], s3 offen sc1')
    k(f'buffer_load_dwordx4 v[76:79], v12, s[24:27], s3 offen offset:512 sc1')
    k(f'buffer_load_dwordx4 {q4("v", B + 32)}, v12, s[24:27], s38 offen offset:1024 sc1')
    k('v_lshl_add_u32 v9, v1, 10, v5')
    k('v_and_b32 v4, 8, v2')
    k('v_lshlrev_b32 v8, 2, v10')
    k('v_lshl_add_u32 v10, v4, 7, v5')
    k('s_waitcnt lgkmcnt(0)')
    out_mask('moe')
    out_math()
    k('s_waitcnt vmcnt(1)')
    k(f'ds_write_b128 v9, v[72:75] offset:{LH}')
    k(f'ds_write_b128 v9, v[76:79] offset:{LH + 4096}')
    k('s_waitcnt vmcnt(0)')
    for h in range(2):
        k(f'{MF} {q4("v", 64 + 4*h)}, {q4("a", AF + 64 + 4*h)}, {q4("v", B + 32)}, 0')
    sel_store('moe')
    k('s_waitcnt lgkmcnt(0)')
    k('s_barrier')
    for p in range(8):
        k(f'ds_read_b128 {q4("v", B + 4*p)}, v5 offset:{LH + 1024*p}')
    for p in range(8):
        k(f's_waitcnt lgkmcnt({7 - p})')
        for h in range(2):
            k(f'{MF} {q4("v", 64 + 4*h)}, {q4("a", AF + 8*p + 4*h)}, {q4("v", B + 4*p)}, {q4("v", 64 + 4*h)}')
    k.stamp('t')
    k('s_nop 7')
    for i in range(4):
        k(f'v_mov_b32_dpp v{64+i}, v{68+i} quad_perm:[0,1,2,3] row_mask:0xf bank_mask:0xc')
    k('s_nop 0')
    for i in range(4):
        k(f'v_add_f32_dpp v{4+i}, v{64+i}, v{64+i} row_ror:8 row_mask:0xf bank_mask:0xf')
    k('ds_write_b128 v9, v[4:7]')
    k('s_waitcnt lgkmcnt(0)')
    k('s_barrier')
    k('ds_read_b128 v[16:19], v10')
    k('ds_read_b128 v[20:23], v10 offset:2048')
    k('s_waitcnt lgkmcnt(0)')
    rnd8(k, 16, 32)
    for i in range(4):
        k(f'v_mul_f32 v{32+i}, {hx(f2u(-LOG2E))}, v{16+i}')
    for i in range(4):
        k(f'v_exp_f32 v{32+i}, v{32+i}')
    for i in range(4):
        k(f'v_add_f32 v{32+i}, 1.0, v{32+i}')
    for i in range(4):
        k(f'v_rcp_f32 v{32+i}, v{32+i}')
    for i in range(4):
        k(f'v_mul_f32 v{16+i}, v{16+i}, v{32+i}')

    def r4():
        k('v_cvt_pk_bf16_f32 v24, v16, v17')
        k('v_cvt_pk_bf16_f32 v25, v18, v19')
        k('v_lshlrev_b32 v16, 16, v24')
        k('v_and_b32 v17, 0xffff0000, v24')
        k('v_lshlrev_b32 v18, 16, v25')
        k('v_and_b32 v19, 0xffff0000, v25')
    r4()
    for i in range(4):
        k(f'v_mul_f32 v{16+i}, v{16+i}, v{20+i}')
    k('v_cvt_pk_bf16_f32 v40, v16, v17')
    k('v_cvt_pk_bf16_f32 v41, v18, v19')
    k('s_nop 0')
    k('v_mov_b32_dpp v42, v40 row_ror:8 row_mask:0xf bank_mask:0xf')
    k('v_mov_b32_dpp v43, v41 row_ror:8 row_mask:0xf bank_mask:0xf')
    k('s_nop 1')
    Y = 48
    for i in range(9):
        k(f'{MF} {q4("v", Y + 4*i)}, {q4("a", DN + 4*i)}, v[40:43], 0')
    for i in range(9):
        if i % 2 == 0:
            k(f's_movk_i32 s3, {2048*i}')
        k(f'buffer_store_dwordx4 {q4("v", Y + 4*i)}, v15, s[16:19], s3 offen offset:{2048*(i % 2)} sc1')
    k.stamp('t')
    out_store('moe')
    k(f's_movk_i32 s38, {WS_IDX}')
    k('s_or_b32 s3, s32, s33')
    k('s_cselect_b32 s3, 0x10000, s38')
    k('buffer_store_dword v11, v8, s[8:11], s3 offen')
    k('s_branch L_attn_end')
    k('L_tail_final:')
    k('s_lshl_b32 s42, s37, 4')
    k(f's_add_u32 s43, s42, 2359296')
    k('buffer_load_dwordx2 v[56:57], v12, s[24:27], s43 offen sc1')
    k('s_lshl_b32 s41, s37, 5')
    k(f's_add_u32 s41, s41, {5*2304}')
    k('buffer_load_dwordx4 v[52:55], v15, s[8:11], s41 offen')
    k('s_waitcnt lgkmcnt(0)')
    out_mask('fin')
    sel_store('fin')
    out_math()
    out_store('fin')
    k('s_cmp_ge_u32 s32, 216')
    k('s_cbranch_scc1 L_attn_end')
    k('v_not_b32 v7, v11')
    k('v_ashrrev_i32 v7, 31, v7')
    k('v_or_b32 v7, 0x80000000, v7')
    k('v_xor_b32 v8, v11, v7')
    rnd_one(k, 8)
    k(f'v_mul_f32 v8, {hx(f2u(-LOG2E))}, v8')
    k('v_exp_f32 v8, v8')
    k('s_nop 0')
    k('v_add_f32 v8, 1.0, v8')
    k('v_rcp_f32 v8, v8')
    k('s_nop 0')
    rnd_one(k, 8)
    k('v_mul_u32_u24 v9, 1152, v10')
    k('v_and_b32 v7, 8, v2')
    k('v_add_u32 v9, v9, v7')
    k(f's_mov_b32 s40, {SPIN}')
    k('L_poll_x1:')
    k('buffer_load_dwordx2 v[58:59], v9, s[24:27], s42 offen sc1')
    k('s_waitcnt vmcnt(0)')
    k('v_max_u32 v3, v58, v59')
    k('v_cmp_eq_u32 vcc, -1, v3')
    k('s_sub_u32 s40, s40, 1')
    k('s_cselect_b64 vcc, 0, vcc')
    k('s_cbranch_vccnz L_poll_x1')
    for j in range(2):
        k(f'v_lshlrev_b32 v{64+2*j}, 16, v{56+j}')
        k(f'v_and_b32 v{65+2*j}, 0xffff0000, v{56+j}')
        k(f'v_lshlrev_b32 v{68+2*j}, 16, v{58+j}')
        k(f'v_and_b32 v{69+2*j}, 0xffff0000, v{58+j}')
    k(f's_mov_b32 s40, {SPIN}')
    k('L_poll_y:')
    k('s_mov_b32 s3, 0')
    for i in range(9):
        k(f'buffer_load_dwordx4 v[{16+4*i}:{19+4*i}], v0, s[48:51], s3 offen sc1')
        k('s_add_u32 s3, s3, 18432')
    for i in range(9):
        k(f's_waitcnt vmcnt({8-i})')
        if i == 0:
            k('v_max_u32 v3, v16, v17')
            k('v_max_u32 v4, v18, v19')
        else:
            k(f'v_max3_u32 v3, v3, v{16+4*i}, v{17+4*i}')
            k(f'v_max3_u32 v4, v4, v{18+4*i}, v{19+4*i}')
    k('v_max_u32 v3, v3, v4')
    k('v_cmp_eq_u32 vcc, -1, v3')
    k('s_sub_u32 s40, s40, 1')
    k('s_cselect_b64 vcc, 0, vcc')
    k('s_cbranch_vccnz L_poll_y')
    if DIAG['on']:
        n = k.nstamp
        k(f's_memrealtime s[{78+2*n}:{79+2*n}]')
        k('s_waitcnt lgkmcnt(0)')
    for a, b in ((0, 1), (2, 3), (4, 5), (6, 7), (0, 2), (4, 6), (0, 8), (0, 4)):
        for j in range(0, 4, 2):
            k(f'v_pk_add_f32 v[{16+4*a+j}:{17+4*a+j}], v[{16+4*a+j}:{17+4*a+j}], v[{16+4*b+j}:{17+4*b+j}]')
    for sw in ('v_permlane16_swap_b32', 'v_permlane32_swap_b32'):
        for j in range(4):
            k(f'v_mov_b32 v{20+j}, v{16+j}')
        k('s_nop 0')
        for j in range(4):
            k(f'{sw} v{16+j}, v{20+j}')
        for j in range(4):
            k(f'v_add_f32 v{16+j}, v{16+j}, v{20+j}')
    k('ds_write_b128 v13, v[16:19]')
    k('s_waitcnt lgkmcnt(0)')
    k('s_barrier')
    k('s_cmp_lg_u32 s33, 0')
    k('s_cbranch_scc1 L_attn_end')
    for w in range(1, 4):
        k(f'ds_read_b128 v[{28+4*w}:{31+4*w}], v14 offset:{256*w}')
    k('s_waitcnt lgkmcnt(0)')
    for j in range(4):
        k(f'v_add_f32 v{16+j}, v{16+j}, v{32+j}')
        k(f'v_add_f32 v{36+j}, v{36+j}, v{40+j}')
    for j in range(4):
        k(f'v_add_f32 v{16+j}, v{16+j}, v{36+j}')
    r4()
    for j in range(4):
        k(f'v_mul_f32 v{16+j}, v{16+j}, v8')
    r4()
    for j in range(4):
        k(f'v_add_f32 v{16+j}, v{16+j}, v{64+j}')
    r4()
    for j in range(4):
        k(f'v_mul_f32 v{16+j}, v{16+j}, v{52+j}')
    r4()
    for j in range(4):
        k(f'v_add_f32 v{16+j}, v{16+j}, v{68+j}')
    k('v_cvt_pk_bf16_f32 v20, v16, v17')
    k('v_cvt_pk_bf16_f32 v21, v18, v19')
    k('buffer_store_dwordx2 v[20:21], v12, s[76:79], s42 offen sc1')
    k('s_branch L_attn_end')
```

```python
from lib import *
from small import *
from tail import LOWN, yclear_setup, emit_tail, wdma, wload, wstore, LDS_TOTAL

MF = 'v_mfma_f32_16x16x32_bf16'
SCALE = 128 ** -0.5


def q4(t, r):
    return f'{t}[{r}:{r+3}]'


def q2(t, r):
    return f'{t}[{r}:{r+1}]'


def gen_attn(opt=None):
    opt = opt or {}
    dbl = opt.get('dbl', True)
    CSB = 131072 + 256
    k = K('attn_kernel', 256, 256, LDS_TOTAL, nvgpr=256, nagpr=256)
    O, KF, VF = 0, 128, 160
    KA, VA, DK, DV = 8, 12, 20, 24
    OST = 26
    MX = 28
    TMP = 32
    ONE = 40
    NM = 44
    L = 60
    P = 76
    S = 108
    QA = 44
    WA, DW, PF = 172, 180, 184
    Q = HR = 188
    WA2 = TMP
    TMP2 = 0
    stats = []
    E = k

    def emit(lines):
        for ln in lines:
            k(ln)

    k('s_cmp_ge_u32 s2, 256')
    k('s_cbranch_scc1 L_attn_exit')
    k.stamp()
    k(f's_load_dwordx4 s[52:55], s[0:1], {ARG["wq"]}')
    k(f's_load_dwordx2 s[30:31], s[0:1], {ARG["ws"]}')
    k(f's_load_dwordx4 s[4:7], s[0:1], {ARG["k"]}')
    k(f's_load_dwordx4 s[44:47], s[0:1], {ARG["wg"]}')
    k(f's_load_dwordx2 s[72:73], s[0:1], {ARG["x"]}')
    k(f's_load_dwordx2 s[76:77], s[0:1], {ARG["out"]}')
    k(f's_load_dwordx2 s[68:69], s[0:1], {ARG["wd"]}')
    k('v_lshrrev_b32 v1, 6, v0')
    k('v_and_b32 v2, 63, v0')
    k('v_readfirstlane_b32 s33, v1')
    hx_ = opt.get('hx', 1)
    k(f's_bfe_u32 s34, s2, {hx((4 - hx_) << 16)}')
    k(f's_lshl_b32 s34, s34, {hx_}')
    k(f's_bfe_u32 s3, s2, {hx((hx_ << 16) | 3)}')
    k('s_add_u32 s34, s34, s3')
    k(f's_lshr_b32 s35, s2, {3 + hx_}')
    if hx_ > 1:
        k(f's_bfe_u32 s3, s2, {hx(((hx_ - 1) << 16) | (4 - hx_))}')
        k(f's_lshl_b32 s3, s3, {5 - hx_}')
        k('s_add_u32 s35, s35, s3')
    k('v_lshrrev_b32 v3, 5, v2')
    k('v_and_b32 v4, 1, v1')
    k('v_lshl_add_u32 v4, v4, 2, v3')
    k('v_lshlrev_b32 v4, 1, v4')
    k('v_and_b32 v5, 31, v2')
    k('v_xor_b32 v4, v4, v5')
    k('v_lshl_add_u32 v3, v1, 3, v3')
    k('v_lshlrev_b32 v3, 13, v3')
    k(f'v_lshl_add_u32 v{DW}, v4, 4, v3')
    k(f'v_xor_b32 v{DW+1}, 64, v{DW}')
    k(f'v_add_u32 v{DW+1}, {2*8192-1024}, v{DW+1}')
    k(f'v_add_u32 v{DW+2}, {4*8192-2048}, v{DW}')
    k(f'v_add_u32 v{DW+3}, {4*8192-2048}, v{DW+1}')
    k(f'v_lshlrev_b32 v{OST}, 4, v2')
    k(f'v_add_u32 v{OST+1}, 18432, v{OST}')
    k('s_lshl_b32 s3, s34, 9')
    k(f's_sub_u32 s18, {hx(576*8192)}, s3')
    k('s_lshl_b32 s37, s35, 3')
    k('s_lshl_b32 s36, s33, 1')
    k('s_add_u32 s37, s37, s36')
    k('s_mul_i32 s36, s37, 18432')
    k(f's_add_u32 s36, s36, {hx(WS_H)}')
    k('s_lshl_b32 s38, s33, 12')
    k('v_bfe_u32 v3, v2, 2, 2')
    k('v_lshrrev_b32 v5, 4, v2')
    k('v_lshl_add_u32 v6, v5, 3, v3')
    k('v_lshlrev_b32 v6, 9, v6')
    k('v_and_b32 v4, 3, v2')
    k('v_lshl_add_u32 v6, v4, 3, v6')
    k('v_and_b32 v5, 1, v5')
    k('v_lshl_add_u32 v5, v5, 2, v3')
    k(f'v_lshl_add_u32 v{WA}, v5, 5, v6')
    for u in range(8):
        if u:
            k(f'v_xor_b32 v{WA+u}, {u*32}, v{WA}')
        k(f'v_xor_b32 v{WA2+u}, {hx(0x10000 + u*32)}, v{WA}')
    M0, M1 = PF, PF + 1
    ID, QS = 248, 216
    k('v_and_b32 v3, 1, v2')
    k('v_lshlrev_b32 v3, 4, v3')
    k('v_mov_b32 v4, 0xffff')
    k('v_lshlrev_b32 v3, v3, v4')
    k('v_lshrrev_b32 v4, 4, v2')
    k('v_bfe_u32 v5, v2, 1, 3')
    k('v_lshlrev_b32 v6, 1, v4')
    k('v_or_b32 v7, 1, v6')
    k('v_cmp_eq_u32 vcc, v5, v6')
    k('v_cmp_eq_u32 s[40:41], v5, v7')
    k('v_mov_b32 v254, v2')
    k(f'v_cndmask_b32 v{M0}, 0, v3, vcc')
    k(f'v_cndmask_b32 v{M1}, 0, v3, s[40:41]')
    k(f'v_and_b32 v6, 0x3f803f80, v{M0}')
    k(f'v_and_b32 v7, 0x3f803f80, v{M1}')
    for i, r in enumerate(('v6', 'v7', '0', '0', 'v6', 'v7')):
        k(f'v_accvgpr_write_b32 a{ID+i}, {r}')
    k('v_lshlrev_b32 v1, 4, v4')
    if DIAG['on']:
        k('v_accvgpr_write_b32 a254, v0')
    k(f'v_add_u32 v{TMP2}, {CSB + 2304}, v1')
    k('v_lshlrev_b32 v1, 1, v1')
    k(f'v_add_u32 v1, {CSB}, v1')
    k('v_mov_b32 v4, 0')
    k('v_mov_b32 v5, 0')
    k('s_waitcnt lgkmcnt(0)')
    k.stamp('r')
    k.srd_off(16, 's52', 's53', 's3', 's18')
    k.srd_off(20, 's30', 's31', 's36', 2 * 18432)

    def wslot(t):
        return ((t + 3) % 4) * 32768

    def pgroup(t):
        g = [f's_mov_b32 s43, {hx(t*2048)}']
        for h in range(2):
            for rb in range(2):
                r = HR + (t % 4) * 16 + h * 8 + rb * 4
                g.append(f'buffer_load_dwordx4 {q4("v", r)}, v{OST+rb}, s[20:23], s43 offen offset:{1024*h} ;@X{t}')
        for h in range(2):
            kk = 2 * t + h
            g.append(f's_add_u32 m0, s38, {wslot(t) + h*16384}')
            g.append(f's_mov_b32 s42, {hx(kk*262144)}')
            for i in range(4):
                g.append(f'buffer_load_dwordx4 v{DW+i}, s[16:19], s42 offen offset:{1024*i} nt lds ;@W{t}')
        return g
    k('s_lshl_b32 s3, s33, 10')
    k(f's_add_u32 m0, s3, {CSB}')
    k.srd(24, 's30', 's31', 3456)
    k(f'buffer_load_dwordx4 v{OST}, s[24:27], s3 offen lds')
    lines, vq = resolve_vm(pgroup(0))
    emit(lines)
    k.stamp('r')
    lines, vq = resolve_vm(pgroup(1), vq)
    emit(lines)
    k('s_getpc_b64 s[28:29]')
    k('L_attn_pc:')
    later = []
    d = later.append
    t3, t4, t5, t6, t7 = 'v255', f'v{PF+2}', f'v{PF+3}', 'v252', 'v253'

    def dsrd(r, lo, hi, off, n):
        o = off if isinstance(off, str) else hx(off)
        d(f's_add_u32 s{r}, {lo}, {o}\ns_addc_u32 s{r+1}, {hi}, 0')
        d(f's_mov_b32 s{r+2}, {n if isinstance(n, str) else hx(n)}')
        d(f's_mov_b32 s{r+3}, 0x20000')
    d('s_lshl_b32 s3, s34, 19')
    dsrd(8, 's4', 's5', 's3', 524288)
    dsrd(12, 's6', 's7', 's3', 524288)
    d(f'v_and_b32 {t3}, 15, v254')
    d(f'v_lshrrev_b32 {t4}, 4, v254')
    d(f'v_xor_b32 {t5}, {t3}, {t4}')
    d(f'v_lshlrev_b32 {t6}, 8, {t3}')
    d(f'v_lshl_add_u32 {t7}, {t5}, 4, {t6}')
    d(f'v_accvgpr_write_b32 a192, {t7}')
    d(f'v_lshlrev_b32 {t6}, 8, {t4}')
    d(f'v_add_u32 {t6}, s38, {t6}')
    d(f'v_lshl_add_u32 v{DK}, {t5}, 4, {t6}')
    for i in range(1, 4):
        d(f'v_xor_b32 v{DK+i}, {64*i}, v{DK}')
    d(f'v_lshlrev_b32 {t7}, 1, {t4}')
    d(f'v_xor_b32 {t7}, {t7}, {t3}')
    d(f'v_lshl_add_u32 v{DV}, {t7}, 4, {t6}')
    d(f'v_xor_b32 v{DV+1}, 0x80, v{DV}')
    d(f'v_lshrrev_b32 {t3}, 2, v254')
    d(f'v_and_b32 {t4}, 3, v254')
    d(f'v_lshlrev_b32 {t5}, 8, {t3}')
    d(f'v_lshl_add_u32 {t5}, {t4}, 3, {t5}')
    d(f'v_add_u32 {t5}, 0x10000, {t5}')
    d(f'v_and_b32 {t6}, 7, {t3}')
    d(f'v_lshl_add_u32 {t5}, {t6}, 5, {t5}')
    d(f'v_accvgpr_write_b32 a193, {t5}')
    d(f'v_cmp_eq_u32 vcc, 0, {t4}')
    d(f'v_lshlrev_b32 {t3}, 7, {t3}')
    d(f'v_lshl_add_u32 {t3}, {t4}, 3, {t3}')
    d(f'v_mov_b32 {t7}, 0x3f803f80')
    d(f'v_cndmask_b32 {t7}, 0, {t7}, vcc')
    d(f'v_accvgpr_write_b32 a207, {t7}')
    d(f'v_bfe_u32 {t4}, v254, 3, 2')
    d(f'v_lshl_add_u32 {t3}, {t4}, 5, {t3}')
    d(f'v_accvgpr_write_b32 a209, {t3}')
    d('s_lshl_b32 s3, s34, 7')
    d('s_add_u32 s3, s3, s37')
    d('s_mul_i32 s3, s3, 18432')
    d(f's_add_u32 s3, s3, {hx(WS_PART)}')
    dsrd(24, 's30', 's31', 's3', 2 * 18432)
    d(f's_mul_i32 s3, s34, {256*1152}')
    dsrd(56, 's54', 's55', 's3', 256 * 1152)
    d('s_mov_b32 s54, s34')
    d('s_and_b32 s3, s2, 7')
    d('s_lshl_b32 s3, s3, 1')
    d('s_bfe_u32 s36, s2, 0x10003')
    d('s_add_u32 s3, s3, s36')
    d('s_and_b32 s36, s2, 0xf0')
    d('s_add_u32 s55, s3, s36')
    d('s_lshl_b32 s40, s55, 6')
    d(f's_mul_i32 s3, s33, {16*9216}')
    d('s_add_u32 s40, s40, s3')
    d('s_cmp_lt_u32 s55, 144\ns_cselect_b32 s40, s40, 0x1000000')
    d('s_mul_i32 s41, s55, 36864')
    d(f's_mul_i32 s3, s33, {8*1152}')
    d('s_add_u32 s41, s41, s3')
    d(f's_mul_i32 s36, s33, {32*1152}')
    d(f'v_lshrrev_b32 {t3}, 2, v254')
    d(f'v_mul_u32_u24 {t3}, 9216, {t3}')
    d(f'v_lshrrev_b32 {t6}, 4, v254')
    d(f'v_and_b32 {t7}, 2, {t6}')
    d(f'v_and_b32 {t4}, 3, v254')
    d(f'v_xor_b32 {t4}, {t4}, {t7}')
    d(f'v_lshl_add_u32 {t3}, {t4}, 4, {t3}')
    d(f'v_add_u32 {t3}, s40, {t3}')
    d(f'v_accvgpr_write_b32 a205, {t3}')
    d(f'v_lshrrev_b32 {t4}, 3, v254')
    d(f'v_mul_u32_u24 {t4}, 1152, {t4}')
    d(f'v_lshlrev_b32 {t6}, 1, {t6}')
    d(f'v_and_b32 {t7}, 7, v254')
    d(f'v_xor_b32 {t6}, {t6}, {t7}')
    d(f'v_lshl_add_u32 {t4}, {t6}, 4, {t4}')
    d(f'v_add_u32 {t3}, s41, {t4}')
    d(f'v_accvgpr_write_b32 a206, {t3}')
    d(f'v_add_u32 {t3}, s36, {t4}')
    d(f'v_accvgpr_write_b32 a208, {t3}')
    d('s_lshl_b32 s36, s33, 10')
    c = SCALE * LOG2E
    chi = (f2u(c) + 0x8000) >> 16
    clo = (f2u(c - struct.unpack('<f', struct.pack('<I', chi << 16))[0]) + 0x8000) >> 16
    d(f'v_lshrrev_b32 {t4}, 4, v254')
    d(f'v_bfe_u32 {t6}, v254, 2, 1')
    d(f'v_lshlrev_b32 {t6}, 1, {t6}')
    d(f'v_sub_u32 {t4}, {t4}, {t6}')
    d(f'v_bfe_u32 {t6}, v254, 3, 1')
    d(f'v_bfe_u32 {t5}, v254, 1, 1')
    d(f'v_lshl_add_u32 {t5}, {t6}, 1, {t5}')
    d(f'v_lshl_add_u32 {t5}, {t4}, 2, {t5}')
    d(f'v_and_b32 {t3}, 1, v254')
    d(f'v_lshlrev_b32 {t3}, 4, {t3}')
    d(f'v_mov_b32 {t6}, {hx(chi)}')
    d(f'v_mov_b32 {t7}, {hx(clo)}')
    d(f'v_lshlrev_b32 {t6}, {t3}, {t6}')
    d(f'v_lshlrev_b32 {t7}, {t3}, {t7}')
    d(f'v_cmp_eq_u32 vcc, 0, {t5}')
    d('s_mov_b32 s60, s44')
    d('s_mov_b32 s61, s45')
    for code in range(8):
        d(f'v_cndmask_b32 {t3}, 0, {t6}, vcc')
        d(f'v_cndmask_b32 {t4}, 0, {t7}, vcc')
        d(f'v_cmp_eq_u32 vcc, {code + 1}, {t5}')
        d(f'v_accvgpr_write_b32 a{QS+code}, {t3}')
        d(f'v_accvgpr_write_b32 a{QS+8+code}, {t4}')
    d('s_mov_b64 s[64:65], s[46:47]')
    for r, n in ((60, 576 * 9216), (64, 576 * 9216), (68, 4608 * 1152), (72, 2359296), (76, 2359296)):
        d(f's_mov_b32 s{r+2}, {n}')
        d(f's_mov_b32 s{r+3}, 0x20000')
    PFS = {0: 60, 1: 64, 2: 68}
    dsrd(4, 's28', 's29', 0x3000, 'L_code_end-L_attn_pc-0x3000')
    d('s_sub_u32 s53, s55, 144')
    d(f's_cmp_lt_u32 s53, 72\ns_cselect_b32 s40, {144*18432}, 0')
    dsrd(48, 's30', 's31', WS_Y, 's40')
    d('s_lshl_b32 s53, s53, 8')
    d('s_lshl_b32 s28, s33, 2')
    d('s_bfe_u32 s3, s2, 0x10003')
    d('s_lshl_b32 s3, s3, 2')
    d('s_add_u32 s3, s3, s33')
    d('s_lshl_b32 s52, s3, 13')
    d('s_add_u32 s52, s52, L_attn_tail-L_attn_pc-0x3000')
    d('s_lshl_b32 s37, s35, 4')
    d('s_add_u32 s37, s37, s54')
    d('s_lshl_b32 s37, s37, 2')
    d('s_add_u32 s37, s37, s33')
    d('s_mul_i32 s37, s37, 2304')
    d('s_lshr_b32 s3, s2, 3')
    d('s_lshl_b32 s3, s3, 2')
    d('s_add_u32 s3, s3, s33')
    d('s_min_u32 s3, s3, 95')
    d('s_and_b32 s40, s2, 7')
    d('s_mul_i32 s39, s3, 9216')
    d('s_lshl_b32 s34, s40, 7')
    d('s_add_u32 s39, s39, s34')
    d('s_mul_i32 s34, s40, 73728')
    d('s_lshl_b32 s3, s3, 7')
    d('s_add_u32 s34, s34, s3')
    d('v_min_u32 v255, 8, v254')
    d(f'v_lshlrev_b32 v{PF+2}, 10, v255')
    d(f'v_mul_u32_u24 v{PF+3}, {8*73728}, v255')
    d('v_lshlrev_b32 v255, 3, v254')
    d('v_lshlrev_b32 v254, 7, v254')
    d('s_lshl_b32 s32, s35, 2')
    d('s_add_u32 s32, s32, s33')
    d('s_mul_i32 s32, s32, 4608')
    d('s_mov_b32 s45, 0')

    def kdma(T, tag=None):
        g = [f's_add_u32 m0, s38, {(T % 4)*16384}', f's_mov_b32 s42, {hx(T*16384)}']
        for i in range(4):
            g.append(f'buffer_load_dwordx4 v{DK+i}, s[8:11], s42 offen offset:{1024*i} nt lds ;@K{T % 4}')
        return g

    def vdma(T):
        g = [f's_add_u32 m0, s38, {65536 + (T % 4)*16384}', f's_mov_b32 s42, {hx(T*16384)}']
        for i in range(4):
            g.append(f'buffer_load_dwordx4 v{DV + i % 2}, s[12:15], s42 offen offset:{1024*i} nt lds ;@V{T % 4}')
        return g

    def gemm(nf, rd, mf_of, at_bar, extra=None, first_bar_items=None, LA=6, chain=False):
        pre = []
        for f in range(LA):
            pre += rd(f)
        mf = []
        G = []
        for f in range(nf):
            G.append(len(mf))
            mf += mf_of(f)
        if chain:
            for f in range(0, nf, 2):
                mf[G[f] + 1], mf[G[f + 1]] = mf[G[f + 1]], mf[G[f] + 1]
        rs, ns, ds = [], [], []
        if first_bar_items:
            n = len(first_bar_items)
            for i, x in enumerate(first_bar_items):
                ds.append(It(x, 1, lo=(i * 60) // n - 2, hi=2 + (i * 60) // n, sep=x.startswith('buffer')))
        for f in range(nf):
            g = G[f]
            if (f + LA) % 32 == 0:
                ab = at_bar(f // 32)
                if ab:
                    tags, dm, span = ab
                    rs.append(It(f'VWAIT {tags}', 1, lo=g - 2, hi=g))
                    b = It('s_barrier', 1, lo=g - 2, hi=g)
                    rs.append(b)
                    n = len(dm)
                    nb = sum(x.startswith('buffer') for x in dm)
                    ib = 0
                    for i, x in enumerate(dm):
                        p = g + 3 + (ib * span) // nb
                        isb = x.startswith('buffer')
                        ds.append(It(x, 1, lo=p - 2 if isb else g, hi=p + 3 if isb else p + 1, sep=isb, after=[b]))
                        ib += isb
            if f + LA < nf:
                for i, x in enumerate(rd(f + LA)):
                    rs.append(It(x, 1, lo=g - 2 + i, hi=g + i + 2, sep=True))
            nw = opt.get('qwait', 4)
            if f % nw == 0 and f > 0:
                r = KF + 4 * (f % 16)
                ns.append(It(f'NEED a[{r}:{r+4*nw-1}]', 1, lo=g - 1, hi=g - 1))
        streams = [ns, rs, ds] + (extra(G) if extra else [])
        return pre + sched(mf, streams, stats=stats)

    k.stamp('r')
    lines, vq = resolve_vm(['VWAIT W0', 's_barrier'], vq)
    emit(lines)
    k.stamp('h')

    def prd(f):
        kk, u = f // 16, f % 16
        t = kk // 2
        base = wslot(t) + (kk % 2) * 16384 + (u // 8) * 256
        a = (WA if base < 65536 else WA2) + u % 8
        base %= 65536
        r = KF + 4 * (f % 16)
        return [f'ds_read_b64_tr_b16 {q2("a", r)}, v{a} offset:{base}',
                f'ds_read_b64_tr_b16 {q2("a", r+2)}, v{a} offset:{base + 2048}']

    def pmf(f):
        kk, u = f // 16, f % 16
        t = kk // 2
        out = []
        for rb in range(2):
            acc = QA + ((u // 8) * 2 + rb) * 32 + (u % 8) * 4
            b = HR + (t % 4) * 16 + (kk % 2) * 8 + rb * 4
            c = '0' if kk == 0 else q4('v', acc)
            out.append(f'{MF} {q4("v", acc)}, {q4("a", KF + 4*(f % 16))}, {q4("v", b)}, {c}')
        return out

    def pbar(t):
        if t + 3 <= 8:
            return f'W{t+1}', pgroup(t + 3), opt.get('qspan', 76)
        if t == 6:
            return 'W7', kdma(0) + kdma(1), 50
        if t == 7:
            return 'W8', kdma(2), 30
        return 'K0', vdma(0) + vdma(1), 9
    CQ, SQ, DG = 8, 12, 2
    OUT = [28, 40]

    def xreg(kk, rb):
        return HR + ((kk // 2) % 4) * 16 + (kk % 2) * 8 + rb * 4

    def m1(kk, rb):
        return [f'{MF} {q4("v", OUT[T])}, {q4("v", DG + 2*T)}, {q4("v", xreg(kk, rb))}, 0' for T in range(2)]

    def m2(kk, rb):
        return [f'{MF} {q4("v", OUT[T])}, {q4("a", ID + 2*T)}, {q4("v", xreg(kk, rb))}, {q4("v", SQ + 4*T)}' for T in range(2)]

    def mcvt(kk, rb):
        return [f'v_cvt_pk_bf16_f32 v{xreg(kk, rb) + d}, v{OUT[d // 2] + 2*(d % 2)}, v{OUT[d // 2] + 2*(d % 2) + 1}' for d in range(4)]

    def cread(kk):
        return [f'ds_read_b128 {q4("v", CQ)}, v{TMP2} offset:{kk*64}']

    def sread(kk):
        return [f'ds_read_b128 {q4("v", SQ + 4*T)}, v1 offset:{kk*128 + T*16}' for T in range(2)]

    def diag():
        return [f'v_and_b32 v{DG + (0, 1, 4, 5)[d]}, v{CQ + d}, v{(M0, M1)[d % 2]}' for d in range(4)]
    MPOS = {0: (m1, 0), 4: (m2, 0), 8: (m1, 1), 12: (m2, 1)}

    def pmf2(f):
        kk, u = f // 16, f % 16
        out = pmf(f)
        if u in MPOS and kk + 1 < 18:
            fn, rb = MPOS[u]
            out += fn(kk + 1, rb)
        return out

    def mstreams(G):
        cv, tb = [], []
        for kk in range(1, 18):
            f0 = 16 * (kk - 1)
            for u in (0, 4, 8, 12):
                for i, x in enumerate(mcvt(kk, MPOS[u][1])):
                    cv.append(It(x, 1, lo=G[f0 + u + 2] + 1, hi=G[f0 + u + 3] + (i // 2) - (1 if u == 12 else 0)))
            if kk + 1 < 18:
                tb.append(It(cread(kk + 1)[0], 1, lo=G[f0 + 2], hi=G[f0 + 6]))
                for i, x in enumerate(diag()):
                    tb.append(It(x, 1, lo=G[f0 + 9], hi=G[f0 + 13] + i // 2))
                if (kk + 1) % 2 == 0:
                    tb.append(It(f'VWAIT X{(kk+1)//2}', 1, lo=G[f0 + 13], hi=G[f0 + 16]))
                for x in sread(kk + 1):
                    tb.append(It(x, 1, lo=G[f0 + 14] + 1, hi=G[f0 + 17] + 1))
        n = len(later)
        lt = [It(x, 1, lo=0, hi=160 + (i * 530) // n) for i, x in enumerate(later)]
        return [cv, tb, lt]
    body = gemm(288, prd, pmf2, pbar, extra=mstreams, first_bar_items=pgroup(2), LA=opt.get('qla', 6))
    OUT2 = [QA, QA + 4]
    NP = 2 * opt.get('qla', 6)
    first = cread(0) + sread(0) + body[:NP-2] + diag() + body[NP-2:NP] + cread(1) + ['s_nop 0'] + m1(0, 0)
    sw = lambda L: [x.replace(q4('v', OUT[0]), q4('v', OUT2[0])).replace(q4('v', OUT[1]), q4('v', OUT2[1])) for x in L]
    cv2 = [f'v_cvt_pk_bf16_f32 v{xreg(0, 1) + d}, v{QA + 2*d}, v{QA + 2*d + 1}' for d in range(4)]
    first += sw(m1(0, 1)) + ['s_nop 5'] + mcvt(0, 0) + cv2 + m2(0, 0) + sw(m2(0, 1)) + diag() + ['s_nop 1'] + mcvt(0, 0) + cv2
    first += sread(1)
    lines = sum((x.split('\n') for x in first + body[NP:]), [])
    lines, vq = resolve_vm(lines, vq)
    lines, _ = insert_lgkm(lines)
    emit(lines)
    k.stamp('h')

    def sreg(buf, qb, kb):
        return S + buf * 32 + qb * 8 + kb * 4

    ORD = opt.get('order', 'pC')

    def kmap(u):
        return (u % 2, u // 2) if ORD in ('qB', 'pB') else (u // 4, u % 4)

    def kread(j, u):
        T, ht = j // 2, j % 2
        kb, s = kmap(u)
        off = (T % 4) * 16384 + (ht * 2 + kb) * 4096
        return [f'ds_read_b128 {q4("a", KF + 4*u)}, v{KA + s} offset:{off}']

    def vread(j, u):
        T, ht = j // 2, j % 2
        off = (T % 4) * 16384 + ht * 8192
        return [f'ds_read_b64_tr_b16 {q2("a", VF + 4*u)}, v{VA + u} offset:{off}',
                f'ds_read_b64_tr_b16 {q2("a", VF + 4*u + 2)}, v{VA + u} offset:{off + 4096}']

    def qk1(j, u, qb, czero=False):
        kb, s = kmap(u)
        d = sreg(j % 2, qb, kb)
        if s == 0:
            c = '0' if czero else q4('v', NM + 4 * qb)
        else:
            c = q4('v', d)
        return f'{MF} {q4("v", d)}, {q4("a", KF + 4*u)}, {q4("v", Q + qb*16 + s*4)}, {c}'

    USLOT = [0, 1, 4, 2, 5, 3, 6, 7]

    def wodma(U):
        src = (U % 2) * 128 * 1152 + (U // 2) * 128
        g = [f's_add_u32 m0, s38, {USLOT[U % 8]*16384}', f's_mov_b32 s42, {hx(src)}']
        for i in range(4):
            g.append(f'buffer_load_dwordx4 v{DW+i}, s[56:59], s42 offen offset:{1024*i} {opt.get("wof", "")} lds ;@U{U}')
        return g

    def localmax(buf, qb):
        r = sreg(buf, qb, 0)
        out = [f'v_max3_f32 v{TMP+qb}, v{r}, v{r+1}, v{MX+qb}']
        for i in range(2, 8, 2):
            out.append(f'v_max3_f32 v{TMP+qb}, v{r+i}, v{r+i+1}, v{TMP+qb}')
        return out

    def crossmax():
        out = []
        for op in ('v_permlane16_swap_b32', 'v_permlane32_swap_b32'):
            for qb in range(4):
                out.append(f'v_mov_b32 v{TMP+4+qb}, v{TMP+qb}')
            out.append('s_nop 0')
            for qb in range(4):
                out.append(f'{op} v{TMP+qb}, v{TMP+4+qb}')
            for qb in range(4):
                out.append(f'v_max_f32 v{TMP+qb}, v{TMP+qb}, v{TMP+4+qb}')
        return out
    order = [2, 0, 1, 3]
    misc = [f'v_accvgpr_read_b32 v{KA}, a192', f'v_accvgpr_read_b32 v{VA}, a193']
    misc += [f'v_xor_b32 v{KA+i}, {64*i}, v{KA}' for i in range(1, 4)] + [f'v_xor_b32 v{VA+i}, {32*i}, v{VA}' for i in range(1, 8)]
    for u in range(8):
        misc += kread(0, u)
    misc2 = []
    for i in range(4):
        misc2 += [f'v_accvgpr_read_b32 v{ONE+i}, a207', f'v_mov_b32 v{MX+i}, 0xff800000']
    misc2 += yclear_setup() + ['v_accvgpr_read_b32 v0, a205', 'v_accvgpr_read_b32 v2, a206']
    misc2 += [f'v_accvgpr_read_b32 v{DW}, a208', f'v_accvgpr_read_b32 v{WA}, a209']
    for i in range(1, 4):
        misc2.append(f'v_add_u32 v{DW+i}, {i*(8*1152-1024)}, v{DW}')
        misc2.append(f'v_xor_b32 v{WA+i}, {i*32}, v{WA}')

    def ucvt(qb, s):
        a, d = QA + qb * 32 + s * 8, Q + qb * 16 + s * 4
        return [f'v_cvt_pk_bf16_f32 v{d+j}, v{a+2*j}, v{a+2*j+1}' for j in range(4)]

    def umf(qb, s):
        a, d = QA + qb * 32 + s * 8, Q + qb * 16 + s * 4
        return [f'{MF} {q4("v", a + 4*(j % 2))}, {q4("a", QS + 4*j)}, {q4("v", d)}, {"0" if j < 2 else q4("v", a + 4*(j % 2))}'
                for j in range(4)]
    mf, upos, qpos = [], {}, {}
    for i, qb in enumerate(order):
        for s_ in range(4):
            upos[qb, s_] = len(mf)
            mf += umf(qb, s_)
        if i >= 1:
            qpos[order[i - 1]] = len(mf)
            mf += [qk1(0, u, order[i - 1], True) for u in range(8)]
    qpos[3] = len(mf)
    mf += [qk1(0, u, 3, True) for u in range(8)]
    pre_s, post_s = [], []
    units = [(qb, s_) for qb in order for s_ in range(4)]
    for n, (qb, s_) in enumerate(units):
        p = upos[qb, s_]
        if n >= 1:
            pre_s += [It(x, 1, lo=p - 8, hi=p - 3) for x in ucvt(qb, s_)]
        post_s += [It(x, 1, lo=p + 7, hi=min(p + 12, qpos[qb] - 3 if qb == 2 else qpos[qb] + s_ - 3)) for x in ucvt(qb, s_)]
    fin = localmax(0, 2) + localmax(0, 0) + localmax(0, 1)
    oth = [It(x, 1, lo=0, hi=10 + i) for i, x in enumerate(misc[8:])] + [It(x, 1, lo=0, hi=70) for x in misc2]
    oth += [It(x, 1, lo=qpos[1], hi=200) for x in fin[:8]] + [It(x, 1, lo=qpos[3] + 5, hi=200) for x in fin[8:]]
    lines = misc[:8] + ucvt(*units[0]) + ['s_nop 1'] + sched(mf, [pre_s, post_s, oth], stats=stats)
    lines, _ = insert_lgkm(lines)
    emit(lines)
    k('s_branch L_attn_go')
    k('L_attn_entry:')
    lines = []
    for u in range(8):
        lines += kread(0, u)
    for qb in order:
        for u in range(8):
            lines.append(qk1(0, u, qb, True))
    lines += fin
    lines, _ = insert_lgkm(lines)
    emit(lines)
    k('L_attn_go:')
    lines = []
    for u in range(4):
        lines += kread(1, u)
    lines.append('s_nop 3')
    lines += localmax(0, 3) + crossmax()
    for qb in range(4):
        for i in range(4):
            lines.append(f'v_sub_f32 v{NM+4*qb+i}, 0, v{TMP+qb}')
    for kb in range(2):
        for qb in range(4):
            for i in range(4):
                r = sreg(0, qb, kb) + i
                lines.append(f'v_sub_f32 v{r}, v{r}, v{TMP+qb}')
    lines, q = insert_lgkm(lines)
    emit(lines)
    k.stamp('h')
    k.stamp('l')
    k(f's_mov_b32 s40, {opt.get("iters", 7)}')
    k(f's_mov_b32 s41, {hx(2*16384)}')

    def step(j, extra=None):
        do_qk = j + 1 <= 63
        do_sm = j <= 63
        do_pv = j >= 1
        T = j // 2
        mf = []
        gs = []
        for u in range(8):
            gs.append(len(mf))
            pb = P + ((j - 1) % 2) * 16
            if do_qk:
                mf += [qk1(j + 1, u, qb) for qb in range(4)]
            if do_pv and j == 64 and u == 0:
                for qb in range(4):
                    mf.append(f'{MF} {q4("v", L + 4*qb)}, {q4("v", ONE)}, {q4("v", pb + qb*4)}, {q4("v", L + 4*qb)}')
            if do_pv:
                for qb in range(4):
                    o = O + qb * 32 + u * 4
                    mf.append(f'{MF} {q4("a", o)}, {q4("a", VF + 4*u)}, {q4("v", pb + qb*4)}, {"0" if j == 1 else q4("a", o)}')
                if u % 2 == 0 and j != 64:
                    qb = u // 2
                    mf.append(f'{MF} {q4("v", L + 4*qb)}, {q4("v", ONE)}, {q4("v", pb + qb*4)}, {"0" if j == 1 else q4("v", L + 4*qb)}')
        n = len(mf)
        gs.append(n)
        quad = ORD[0] == 'q' and do_qk and do_pv
        if ORD[0] == 'p' and do_qk and do_pv:
            for u in range(0, 8, 2):
                blk = mf[gs[u]:gs[u + 2]]
                qa, pa, one, qb_, pb_ = blk[0:4], blk[4:8], blk[8:9], blk[9:13], blk[13:17]
                qq = qa + qb_ if ORD == 'pair' else [x for t in zip(qa, qb_) for x in t]
                pp = [x for t in zip(pa, pb_) for x in t]
                pp[u:u] = one
                mf[gs[u]:gs[u + 2]] = qq + pp
        mix = ORD == 'mC' and do_qk and do_pv
        if mix:
            for h in range(2):
                g4 = [mf[gs[u]:gs[u + 1]] for u in range(4 * h, 4 * h + 4)]
                out = []
                for p in range(2):
                    out += [g[qb] for qb in (2 * p, 2 * p + 1) for g in g4]
                    pp = [x for t in zip(g4[2 * p][4:8], g4[2 * p + 1][4:8]) for x in t]
                    pp[4 * h + 2 * p:4 * h + 2 * p] = [g4[2 * p][8]]
                    out += pp
                mf[gs[4 * h]:gs[4 * h + 4]] = out
        if quad:
            for h in range(2):
                g4 = [mf[gs[u]:gs[u + 1]] for u in range(4 * h, 4 * h + 4)]
                qq = sum((g[:4] for g in g4), []) if ORD == 'qA' else [g[qb] for qb in range(4) for g in g4]
                pp = []
                for qb in range(4):
                    pp += [g[4 + qb] for g in g4]
                    if qb // 2 == h:
                        pp.append(g4[2 * (qb % 2)][8])
                mf[gs[4 * h]:gs[4 * h + 4]] = qq + pp
        es, cs, rs, ns, ds = [], [], [], [], []
        if do_sm:
            b = j % 2
            e = 0
            for kb in range(2):
                for qb in range(4):
                    for h in range(2):
                        s0 = sreg(b, qb, kb) + 2 * h
                        t0 = TMP + 2 * ((e // 2) % 4)
                        pair = []
                        for i in range(2):
                            tg = (e * (n - 2)) // 32
                            it = It(f'v_exp_f32 v{t0+i}, v{s0+i}', 2, lo=tg - 1, hi=tg + 1,
                                    after=[cs[e // 2 - 4]] if e >= 8 else None)
                            es.append(it)
                            pair.append(it)
                            e += 1
                        cs.append(It(f'v_cvt_pk_bf16_f32 v{P + b*16 + qb*4 + kb*2 + h}, v{t0}, v{t0+1}', 1,
                                     hi=tg + 6, after=pair))
        bar = None
        late_v = []
        for u in range(8):
            if u == 4 and j % 2 == 0 and j <= 62:
                rs.append(It(f'VWAIT K{(T+1) % 4},V{T % 4}', 1, lo=gs[4] - 1, hi=gs[4] + 1))
                bar = It('s_barrier', 1, lo=gs[4] - 1, hi=gs[4] + 1)
                rs.append(bar)
            rd = []
            if u < 4:
                if do_qk:
                    rd += kread(j + 1, u + 4)
                if do_pv:
                    rd += vread(j - 1, u + 4)
            else:
                if j + 2 <= 63:
                    rd += kread(j + 2, u - 4)
                if j <= 63:
                    rd += vread(j, u - 4)
            w = gs[u + 1] - gs[u]
            if mix:
                late_v += rd
                if u % 4 == 3:
                    g0 = gs[u - 3]
                    kr = [x for x in late_v if 'b128' in x]
                    vr = [x for x in late_v if 'b128' not in x]
                    seq = kr[:2] + vr[:2] + kr[2:] + vr[2:]
                    for i, x in enumerate(seq):
                        tg = g0 + (i * 32) // len(seq)
                        rs.append(It(x, 1, lo=tg, hi=tg + 3))
                    late_v = []
                    f = u - 3
                    ns.append(It(f'NEED a[{VF+4*f}:{VF+4*f+15}]', 1, lo=g0 + 6, hi=g0 + 7))
                    f = (u + 1) % 8
                    ns.append(It(f'NEED a[{KF+4*f}:{KF+4*f+15}]', 1, lo=gs[u + 1] - 2, hi=gs[u + 1] - 1))
                continue
            if quad:
                g0 = gs[u - u % 4]
                for x in rd:
                    if 'b128' in x:
                        rs.append(It(x, 1, lo=g0 + 3 * (u % 4), hi=g0 + 3 * (u % 4) + 4))
                    else:
                        late_v.append(x)
                if u % 4 == 3:
                    f = u - 3
                    rs.append(It(f'NEED a[{VF+4*f}:{VF+4*f+15}]', 1, lo=g0 + 14, hi=g0 + 15))
                    for i, x in enumerate(late_v):
                        rs.append(It(x, 1, lo=g0 + 15 + 2 * i, hi=g0 + 17 + 2 * i))
                    late_v = []
                    f = (u + 1) % 8
                    ns.append(It(f'NEED a[{KF+4*f}:{KF+4*f+15}]', 1, lo=gs[u + 1] - 2, hi=gs[u + 1] - 1))
                continue
            for i, x in enumerate(rd):
                rs.append(It(x, 1, lo=gs[u] - (2 if u else 0), hi=gs[u] + ((i + 1) * w) // len(rd) - 1, sep=True))
            if u % 2 == 1:
                f = (u + 1) % 8
                ns.append(It(f'NEED a[{KF+4*f}:{KF+4*f+7}], a[{VF+4*f}:{VF+4*f+7}]', 1, lo=gs[u + 1] - 2, hi=gs[u + 1] - 1))
        special = {58: 0, 60: 1, 61: 2, 62: 3}
        dm = []
        if j in special:
            dm = wodma(special[j])
        elif j < 63:
            if j % 2 == 0:
                dm = [f's_add_u32 m0, s38, {((T+3) % 4)*16384}', 's_add_u32 s41, s41, 16384']
                if 2 <= j <= 56 and j % 4 == 2:
                    dm += ['buffer_store_dwordx4 v[4:7], v3, s[48:51], s53 offen sc1 ;@-', 's_add_u32 s53, s53, 18432']
                dm += [f'buffer_load_dwordx4 v{DK+i}, s[8:11], s41 offen offset:{1024*i} nt lds ;@K{(T+3) % 4}' for i in range(4)]
            else:
                dm = [f's_add_u32 m0, s38, {65536 + ((T+2) % 4)*16384}', f's_sub_u32 s42, s41, {16384 if j < 58 else 0}']
                dm += [f'buffer_load_dwordx4 v{DV + i % 2}, s[12:15], s42 offen offset:{1024*i} nt lds ;@V{(T+2) % 4}' for i in range(4)]
                if 1 <= j <= 57 and opt.get('pf_moe', True):
                    w = ((j - 2) % 8) // 2
                    if w < 2:
                        dm.append(f'buffer_load_dword v{PF}, v{PF+2}, s[{PFS[w]}:{PFS[w]+3}], s39 offen')
                    elif w == 2:
                        dm.append(f'buffer_load_dword v{PF}, v{PF+3}, s[{PFS[w]}:{PFS[w]+3}], s34 offen')
                        dm.append(f's_add_u32 s39, s39, {96*9216}')
                        dm.append(f's_add_u32 s34, s34, {96*128}')
                    else:
                        dm.append(f'buffer_load_dwordx2 {q2("v", PF)}, v255, s[56:59], s32 offen')
                        dm.append(f'buffer_load_dwordx2 {q2("v", PF)}, v255, s[56:59], s32 offen offset:512')
                        dm.append('s_add_u32 s32, s32, 768')
        if j % 2 == 0 and 2 <= j <= 56:
            w = (j % 8) // 2
            pf = []
            if w == 0 and opt.get('pf_code', True):
                pf = [f'buffer_load_dword v{PF}, v254, s[4:7], s52 offen']
            elif w == 2 and opt.get('pf_x', True):
                pf = [f'buffer_load_dwordx2 {q2("v", PF)}, v255, s[72:75], s37 offen']
            elif w == 3:
                pf = ([f'buffer_load_dwordx2 {q2("v", PF)}, v255, s[76:79], s37 offen'] if opt.get('pf_out', True) else []) + ['s_add_u32 s37, s37, 384']
            for i, x in enumerate(pf):
                ds.append(It(x, 2 if x.startswith(('buffer', 'global')) else 1, lo=4 + 6 * i, hi=12 + 6 * i))
        ws_ = []
        if 58 <= j <= 62:
            if j % 2 == 0:
                items = {58: wdma('gu', 8), 60: wdma('d', 6) + wdma('d', 7), 62: wdma('d', 8)}[j]
                for i, x in enumerate(items):
                    tg = 2 + (i * 28) // len(items)
                    ds.append(It(x, 2 if x.startswith('buffer') else 1, lo=tg - 2, hi=tg + 3, sep=x.startswith('buffer')))
                items = wload('gu', {58: 0, 60: 3, 62: 6}[j])
            else:
                items = {59: wload('gu', 1) + wload('gu', 2), 61: wload('gu', 4) + wload('gu', 5)}[j]
            for i, x in enumerate(items):
                tg = 4 + (i * 58) // len(items)
                ws_.append(It(x, 2 if x.startswith('buffer') else 1, lo=tg - 3, hi=tg + 4))
        if dm:
            lo0 = gs[4] + 2 if j % 2 == 0 else 0
            nb = sum(x.startswith('buffer') for x in dm)
            ib = 0
            for x in dm:
                tg = lo0 + ((n - 1 - lo0) * (ib + 0.6)) // nb
                isb = x.startswith('buffer')
                ds.append(It(x, 2 if isb else 1, lo=(tg - 3 if isb else lo0), hi=min(n - 1, tg + 3), sep=isb,
                             after=[bar] if (bar and isb) else None))
                ib += isb
        return sched(mf, [ns, es, rs, cs, ds, ws_] + (extra or []), stats=stats)

    l0, vq = resolve_vm(step(0) + step(1), vq)
    l0, q = insert_lgkm(l0, q)
    emit(l0)
    loopctl = [It('s_sub_u32 s40, s40, 1', 1, lo=40, hi=66)]
    body = []
    for j in range(2, 10):
        body += step(j)
    res = []
    for rep in range(2):
        o, vq = resolve_vm(body, vq)
        o, q = insert_lgkm(o, q)
        res.append(o)
    assert len(res[0]) == len(res[1]), 'loop not in steady state'
    for i, (a, b) in enumerate(zip(*res)):
        if a != b:
            ma, mb = re.match(r's_waitcnt (\w+)\((\d+)\)', a), re.match(r's_waitcnt (\w+)\((\d+)\)', b)
            assert ma and mb and ma.group(1) == mb.group(1), (a, b)
            res[0][i] = f's_waitcnt {ma.group(1)}({min(int(ma.group(2)), int(mb.group(2)))})'
    k.stamp('l')
    k('.p2align 6')
    k('L_attn_loop:')
    emit(res[0])
    k('s_sub_u32 s40, s40, 1')
    k('s_cmp_lg_u32 s40, 0')
    k('s_cbranch_scc1 L_attn_loop')
    k('L_attn_tail:')
    k.stamp('l')
    tail = []
    for j in range(58, 64):
        tail += step(j)
    tail.append('s_nop 1')
    OF = S
    ACC = P
    PK = NM
    RI = TMP
    norm = []
    for qb in range(4):
        norm.append(It(f'v_rcp_f32 v{RI+qb}, v{L+4*qb}', 2, lo=12))
    norm.append(It(f'v_max3_f32 v{TMP+4}, v{L}, v{L+4}, v{L+8}', 1))
    norm.append(It(f'v_max_f32 v{TMP+4}, v{TMP+4}, v{L+12}', 1))
    tv = [4, 5, 6, 7, 252, 253, PF, PF + 1]
    late = []
    for db in range(8):
        blk = []
        for half in range(2):
            for qb in (2 * half, 2 * half + 1):
                for i in range(4):
                    blk.append(f'v_accvgpr_read_b32 v{tv[(qb % 2)*4 + i]}, a{O + qb*32 + db*4 + i}')
            for qb in (2 * half, 2 * half + 1):
                for i in range(4):
                    t = tv[(qb % 2)*4 + i]
                    if db < 1:
                        blk.append(f'v_mul_f32 v{t}, v{t}, v{RI+qb}')
                    elif i % 2 == 0:
                        sel = 'op_sel_hi:[1,0]' if qb % 2 == 0 else 'op_sel:[0,1]'
                        blk.append(f'v_pk_mul_f32 v[{t}:{t+1}], v[{t}:{t+1}], v[{RI + qb - qb % 2}:{RI + qb - qb % 2 + 1}] {sel}')
            for qb in (2 * half, 2 * half + 1):
                for i in range(2):
                    blk.append(f'v_cvt_pk_bf16_f32 v{OF + qb*16 + db*2 + i}, v{tv[(qb % 2)*4 + 2*i]}, v{tv[(qb % 2)*4 + 2*i + 1]}')
        if db < 1:
            norm += [It(x, 1, lo=4 + 4 * (db + 1) + 7) for x in blk]
        else:
            late += blk
    tail += step(64, extra=[norm])
    tail += late
    A1, A2 = WA + 4, L + 8
    OS, OA = L + 12, L + 14
    LA = opt.get('ola', 7)

    def ord_(f):
        nbl, ks = (f // 8) % 4, f % 8
        r = KF + 4 * (f % 16)
        a = (A1 if ks < 4 else A2) + nbl
        return [f'ds_read_b64_tr_b16 {q2("a", r)}, v{a} offset:{(ks % 4)*4096}',
                f'ds_read_b64_tr_b16 {q2("a", r+2)}, v{a} offset:{(ks % 4)*4096 + 2048}']

    def omf(f):
        nb, ks = f // 8, f % 8
        out = []
        for rb in range(2):
            acc = ACC + ((nb // 2) % 2) * 16 + (nb % 2) * 8 + rb * 4
            b = OF + ((ks // 4) * 2 + rb) * 16 + (ks % 4) * 4
            c = '0' if ks == 0 else q4('v', acc)
            out.append(f'{MF} {q4("v", acc)}, {q4("a", KF + 4*(f % 16))}, {q4("v", b)}, {c}')
        return out

    def flush_pair(par, so):
        out = []
        for rb in range(2):
            for h in range(2):
                a = ACC + par * 16 + h * 8 + rb * 4
                for i in range(2):
                    out.append(f'v_cvt_pk_bf16_f32 v{PK + par*8 + rb*4 + h*2 + i}, v{a+2*i}, v{a+2*i+1}')
            out.append(f'buffer_store_dwordx4 {q4("v", PK + par*8 + rb*4)}, v{OS+rb}, s[24:27], {so} offen sc1')
            out.append(f'ds_write_b128 v{OA+rb}, {q4("v", PK + par*8 + rb*4)} offset:{512*(1-par)}')
        return out
    tail += ['s_lshl_b32 s3, s33, 2', 's_sub_u32 s3, s54, s3', f'v_bfe_u32 v4, v{OST}, 7, 1', 'v_or_b32 v5, 2, v4',
             'v_cmp_eq_u32 vcc, s3, v4', 'v_cmp_eq_u32 s[28:29], s3, v5', f'v_lshrrev_b32 v4, 8, v{OST}', f'v_and_b32 v5, 0x70, v{OST}',
             'v_lshl_add_u32 v4, v4, 7, v5', f'v_add_u32 v4, {LOWN - 512}, v4', 'v_mov_b32 v5, 0x1000000',
             f'v_cndmask_b32 v{OS}, v{OST}, v5, vcc', f'v_cndmask_b32 v{OS+1}, v{OST+1}, v5, s[28:29]',
             'v_mov_b32 v5, 0x30000', f'v_cndmask_b32 v{OA}, v5, v4, vcc', f'v_cndmask_b32 v{OA+1}, v5, v4, s[28:29]']
    ZR = L
    tail += [f'v_mov_b32 v{ZR+i}, 0' for i in range(4)]
    for nbl in range(4):
        tail += [f'v_mov_b32 v{A1+nbl}, v{WA+nbl}', f'v_add_u32 v{A2+nbl}, 0x4000, v{WA+nbl}']
    nanmf = [f'{MF} {q4("v", L+4)}, {q4("v", ZR)}, {q4("v", OF + 4*i)}, {"0" if i == 0 else q4("v", L+4)}' for i in range(16)]
    pk = sum(USLOT[(2 * (t + 2) + h) % 8] << (8 * t + 4 * h) for t in range(4) for h in range(2))
    st1 = [It('VWAIT U0,U1', 1), It('s_barrier', 1)] + [It(x, 1, lo=2 + i, sep=True) for i, x in enumerate(sum((ord_(f) for f in range(LA)), []))]
    st2 = [It(x, 1, lo=1) for x in wload('gu', 7) + sum((wload('d', b) for b in range(6)), [])]
    st2 += [It(x, 1) for x in (f's_mov_b32 s50, {hx(pk)}', f's_mov_b32 s51, {hx(pk)}', 's_movk_i32 s41, 0x100',
                               's_mov_b32 s43, 0x100000', 's_mov_b32 s46, 0', 's_mov_b32 s48, s38',
                               f's_mov_b32 s52, {USLOT[2]*16384}', f's_mov_b32 s53, {USLOT[3]*16384}')]
    tail += sched(nanmf, [st1, st2], stats=stats)
    tail += [f's_mov_b32 s3, {hx(f2u(2.0**100))}', f'v_cmp_ngt_f32 vcc, s3, v{TMP+4}', 's_lshl_b32 s3, s33, 2',
             's_add_u32 s3, s3, 0x20000', 'v_mov_b32 v3, s3', 's_add_u32 s3, s36, 0x8000', f'v_add_u32 v252, s3, v{OST}',
             'v_add_u32 v253, 0x10000, v252', 's_nop 0', f'v_cmp_u_f32 s[28:29], v{L+4}, v{L+4}', 's_nop 0',
             's_or_b64 s[28:29], s[28:29], vcc', 's_cselect_b32 s3, 1, 0', 'v_mov_b32 v4, s3', 'ds_write_b32 v3, v4',
             'v_mov_b32 v3, 0x20000', 'RETAG U2,U3 A', f'NEED a[{KF}:{KF+15}]']
    o, vq = resolve_vm(tail, vq)
    o, q = insert_lgkm(o, q)
    emit(o)
    k.stamp()
    mf = []
    for f in range(0, 32, 2):
        x, y = omf(f), omf(f + 1)
        mf += [x[0], y[0], x[1], y[1]]
    rs, ns = [], []
    for f in range(32):
        if f + LA == 32:
            rs += [It('VWAIT B', 1, lo=2*f - 2, hi=2*f - 1), It('s_barrier', 1, lo=2*f - 2, hi=2*f)]
        for i, x in enumerate(ord_(f + LA)):
            rs.append(It(x, 1, lo=2*f + i - 1, hi=2*f + i, sep=not (f + LA == 32 and i == 0)))
        if f % 4 == 3:
            r = KF + 4 * ((f + 1) % 16)
            ns.append(It(f'NEED a[{r}:{r+15}]', 1, lo=2*f + 1, hi=2*f + 1))
    dm = []
    for h in range(2):
        dm += [f's_bfe_u32 s{28+h}, s50, {hx((3 << 16) | (4*h))}', f's_lshl_b32 s{28+h}, s{28+h}, 14', f's_add_u32 m0, s{28+h}, s48']
        so = 's41' if h == 0 else 's42'
        if h:
            dm.append(f's_add_u32 s42, s41, {128*1152}')
        dm += [f'buffer_load_dwordx4 v{DW+i}, s[56:59], {so} offen offset:{1024*i} lds ;@A' for i in range(4)]
    vp = [3 + (16 * i) // 3 for i in range(12)]
    dpos, spos = [p for i, p in enumerate(vp) if i % 3 != 2], vp[2::3]
    ds = []
    for x in dm:
        if x.startswith('buffer'):
            p = dpos.pop(0)
            ds.append(It(x, 1, lo=p, hi=p + 1, sep=True))
        else:
            ds.append(It(x, 1, lo=0, hi=dpos[0] - 1))
    fl = []
    for par, so, g0 in ((1, 's43', 5), (0, 's46', 37)):
        for x in flush_pair(par, so):
            if x.startswith('buffer'):
                p = spos.pop(0)
                fl.append(It(x, 1, lo=p, hi=p + 1))
            elif x.startswith('ds_'):
                fl.append(It(x, 1, lo=g0, hi=min(63, p + 3)))
                if not par:
                    r = x.split()[1].rstrip(',')
                    fl.append(It(f'v_add_u32 {r}, 1024, {r}', 1, hi=min(63, p + 5)))
            else:
                fl.append(It(x, 1, lo=g0, hi=spos[0] - 1))
        if par:
            fl.append(It('s_add_u32 s43, s46, 1024', 1, hi=36))
    fl.append(It('s_add_u32 s46, s46, 2048', 1, hi=63))
    up = []
    for nbl in range(4):
        for h in range(2):
            lastf = 8 * nbl + 4 * h + 3 - LA
            up.append(It(f'v_add_u32 v{(A1, A2)[h] + nbl}, s{52+h}, v{WA+nbl}', 1, lo=2 * lastf + 2, hi=min(60, 34 + 8 * nbl + 4 * h)))
    up.append(It('s_mov_b64 s[52:53], s[28:29]', 1, hi=63))
    end = ['s_lshr_b64 s[50:51], s[50:51], 8', 's_mov_b32 s51, s50', 's_add_u32 s41, s41, 128', 's_cmp_ge_u32 s41, 1152',
           's_cselect_b32 s48, 0x28000, s48', 's_cselect_b32 s41, 0x1000000, s41']
    en = [It(x, 1, lo=30, hi=48 + 2 * i, after=[ds[-4]]) for i, x in enumerate(end)]
    body = sched(mf, [ns, rs, ds, fl, up, en], stats=stats)
    i0, i1 = body.index(end[3]), body.index(end[5])
    assert not any(x.startswith(('s_add', 's_lsh', 's_bfe', 's_sub')) for x in body[i0:i1]), 'scc clobbered'
    body, vq, q = steady(['RETAG A B'] + body, vq, q)
    k('.p2align 6')
    k('L_oproj_loop:')
    emit(body)
    k(f's_cmp_lt_u32 s46, {9*2048}')
    k('s_cbranch_scc1 L_oproj_loop')
    k.stamp('o')
    k('s_waitcnt lgkmcnt(4)')
    k('ds_read_b128 v[4:7], v3')
    k('s_nop 2')
    emit(flush_pair(1, 's43'))
    k('s_waitcnt lgkmcnt(0)')
    k('v_or3_b32 v4, v4, v5, v6')
    k('v_or_b32 v4, v4, v7')
    k('s_nop 0')
    k('v_readfirstlane_b32 s47, v4')
    fuse = opt.get('fuse', True)
    k('s_andn2_b32 s47, s47, s45')
    if fuse:
        k('s_cbranch_scc1 L_attn_retry')
        emit_tail(k, ID, opt)
    else:
        k('s_cbranch_scc0 L_attn_end')
    k('L_attn_retry:')
    k('s_mov_b32 s45, 1')
    k.srd(48, 's30', 's31', 0)
    k('s_mov_b32 s41, 0')
    k('L_attn_maxloop:')
    k('s_barrier')
    k('s_mov_b32 m0, s38')
    k('s_nop 0')
    for i in range(4):
        k(f'buffer_load_dwordx4 v{DK+i}, s[8:11], s41 offen offset:{1024*i} lds')
    k('s_waitcnt vmcnt(0)')
    k('s_barrier')
    for ht in range(2):
        lines = []
        for u in range(8):
            lines += kread(ht, u)
        for u in range(8):
            lines += [qk1(0, u, qb, True) for qb in range(4)]
        lines.append('s_nop 7')
        for qb in range(4):
            lines += localmax(0, qb)
        for qb in range(4):
            lines.append(f'v_mov_b32 v{MX+qb}, v{TMP+qb}')
        lines, _ = insert_lgkm(lines)
        emit(lines)
    k('s_add_u32 s41, s41, 16384')
    k(f's_cmp_lt_u32 s41, {hx(524288)}')
    k('s_cbranch_scc1 L_attn_maxloop')
    k('s_barrier')
    lines, _ = resolve_vm(kdma(0) + kdma(1) + kdma(2) + vdma(0) + vdma(1) + ['VWAIT K0', 's_barrier'])
    emit(lines)
    k('s_branch L_attn_entry')
    k('L_attn_end:')
    if DIAG['on']:
        k('v_accvgpr_read_b32 v0, a254')
    k.stamp_end(2)
    k('L_attn_exit:')
    k('s_endpgm')
    k.stats = stats
    return k
```

```python
from lib import *
from small import *

MF = 'v_mfma_f32_16x16x32_bf16'
WS_PFLAG = 24576
WS_YFLAG = 28672
SPIN = 1 << 20


def wreg(kind, b):
    if kind == 'd':
        return 8 + 4 * b
    m = 0 if kind == 'g' else 1
    return 192 + 8 * b + 4 * m if b < 7 else 4 * m


def wload(kind, b):
    if kind == 'gu':
        return [f's_mov_b32 s39, {b*589824}',
                f'buffer_load_dwordx4 a[{wreg("g", b)}:{wreg("g", b)+3}], v0, s[60:63], s39 offen ;@E',
                f'buffer_load_dwordx4 a[{wreg("u", b)}:{wreg("u", b)+3}], v0, s[64:67], s39 offen ;@E']
    return [f'buffer_load_dwordx4 a[{wreg("d", b)}:{wreg("d", b)+3}], v2, s[68:71], 0 offen offset:{b*128} ;@E']


def wstore(kind, b, va):
    if kind == 'd':
        return [f'ds_write_b128 v{va+1}, a[{wreg("d", b)}:{wreg("d", b)+3}] offset:{4096*b}']
    return [f'ds_write_b128 v{va}, a[{wreg(x, b)}:{wreg(x, b)+3}] offset:{4096*b + 32768*m}' for m, x in enumerate('gu')]


def yaddr(k, d, t, lane):
    k(f'v_lshrrev_b32 {t}, 4, {lane}')
    k('s_lshl_b32 s3, s33, 2')
    k(f'v_add_u32 {t}, s3, {t}')
    k(f'v_mul_u32_u24 {d}, {9*18432}, {t}')
    k(f'v_and_b32 {t}, 15, {lane}')
    k(f'v_lshl_add_u32 {d}, {t}, 4, {d}')
    k('s_lshl_b32 s3, s37, 8')
    k(f'v_add_u32 {d}, s3, {d}')


def yclear_setup():
    out = []
    k = out.append
    k('v_lshrrev_b32 v4, 3, v255')
    k('v_lshrrev_b32 v5, 4, v4')
    k('v_add_u32 v5, s28, v5')
    k(f'v_mul_u32_u24 v3, {9*18432}, v5')
    k('v_and_b32 v5, 15, v4')
    k('v_lshl_add_u32 v3, v5, 4, v3')
    for i in range(4):
        k(f'v_mov_b32 v{4+i}, -1')
    return out


def q4(t, r):
    return f'{t}[{r}:{r+3}]'


def poll(k, name, loads, regs):
    k(f's_mov_b32 s40, {SPIN}')
    k(f'L_poll_{name}:')
    for ln in loads:
        k(ln)
    k('s_waitcnt vmcnt(0)')
    t = regs[0]
    if len(regs) > 1:
        t = 3
        k(f'v_min_u32 v3, v{regs[0]}, v{regs[1]}')
        for i in range(2, len(regs), 2):
            k(f'v_min3_u32 v3, v3, v{regs[i]}, v{regs[min(i+1, len(regs)-1)]}')
    k(f'v_cmp_eq_u32 vcc, 0, v{t}')
    k('s_sub_u32 s40, s40, 1')
    k('s_cselect_b64 vcc, 0, vcc')
    k(f's_cbranch_vccnz L_poll_{name}')


def emit_tail(k, ID, opt):
    NU = 3
    XL, WR, GA, SB, CB, GB = 16, 28, 40, 64, 88, 112
    A, X1, D, T = 136, 160, 184, 208
    X0, W = D, 232
    k(f's_load_dwordx2 s[20:21], s[0:1], {ARG["wr"]}')
    k('s_barrier')
    for ln in wstore('gu', 7, 252) + [wstore('d', b, 252)[0] for b in range(6)]:
        k(ln)
    ws2 = sum((wstore('gu', b, 252) for b in range(7)), [])
    k('s_mov_b32 s34, s54')
    k('s_lshl_b32 s32, s35, 4')
    k('s_add_u32 s32, s32, s34')
    k.srd(8, 's30', 's31', 32768)
    k('s_lshl_b32 s43, s35, 2')
    k('s_add_u32 s43, s43, s33')
    k('s_lshl_b32 s43, s43, 4')
    k('s_add_u32 s43, s43, s34')
    k('s_lshl_b32 s43, s43, 2')
    k(f's_add_u32 s43, s43, {WS_PFLAG}')
    k('s_lshl_b32 s39, s32, 2')
    k('s_add_u32 s39, s39, s33')
    k('s_lshl_b32 s39, s39, 2')
    k(f's_add_u32 s39, s39, {WS_YFLAG}')
    k('v_mov_b32 v4, 0')
    k('v_mov_b32 v5, 1')
    k('v_mbcnt_lo_u32_b32 v2, -1, 0')
    k('v_mbcnt_hi_u32_b32 v2, -1, v2')
    k.srd_off(48, 's30', 's31', WS_Y, 144 * 18432)
    k('s_sub_u32 s37, s55, 144')
    k('v_and_b32 v1, 7, v2')
    k('v_lshrrev_b32 v3, 3, v2')
    k('v_lshlrev_b32 v6, 8, v3')
    k('v_lshl_add_u32 v6, v1, 4, v6')
    k('v_lshrrev_b32 v7, 5, v2')
    k('v_lshlrev_b32 v7, 6, v7')
    k('v_and_b32 v8, 1, v3')
    k('v_lshl_add_u32 v7, v8, 5, v7')
    k('v_and_b32 v8, 2, v3')
    k('v_lshl_add_u32 v7, v8, 3, v7')
    k('s_mul_i32 s3, s33, 384')
    k('v_add_u32 v7, s3, v7')
    k('v_lshlrev_b32 v8, 1, v7')
    k('s_lshl_b32 s3, s32, 3')
    k('v_add_u32 v9, s3, v1')
    k('v_mul_u32_u24 v10, 1152, v9')
    k('v_add_u32 v10, v10, v7')
    k.srd_off(16, 's30', 's31', WS_PART, 16 * 2359296)
    k.srd_off(24, 's30', 's31', WS_X1, 2 * 2359296)
    k('s_lshr_b32 s41, s32, 1')
    k('s_mul_i32 s41, s41, 18432')
    k('s_and_b32 s3, s32, 1')
    k('s_lshl_b32 s3, s3, 7')
    k('s_add_u32 s41, s41, s3')
    k('s_mul_i32 s3, s33, 6144')
    k('s_add_u32 s41, s41, s3')
    k('v_add_u32 v11, 4096, v6')
    k('s_lshr_b32 s3, s32, 2')
    k('s_lshl_b32 s3, s3, 6')
    k(f's_add_u32 s42, s3, {WS_PFLAG}')
    k('v_and_b32 v12, 15, v2')
    k('v_lshlrev_b32 v12, 2, v12')
    k('v_mul_u32_u24 v14, 32, v1')
    k(f'v_add_u32 v14, {LS}, v14')
    k('s_lshl_b32 s3, s33, 3')
    k('v_add_u32 v15, s3, v14')
    k('s_mul_i32 s3, s33, 3072')
    k(f's_add_u32 s3, s3, {LOWN}')
    k('v_lshl_add_u32 v3, v2, 4, s3')
    for u in range(NU):
        k(f'ds_read_b128 {q4("v", X1 + 4*u)}, v3 offset:{1024*u}')
    k('s_lshl_b32 s44, 1, s34')
    k('s_mov_b32 s45, 0')
    k(f's_mov_b32 s40, {SPIN}')
    k('s_mov_b32 s22, 1152')
    k('s_mov_b32 s23, 0x20000')
    k('buffer_load_dword v13, v12, s[8:11], s42 offen sc1')
    k('s_waitcnt lgkmcnt(0)')
    for u in range(NU):
        for t in range(2):
            k(f'{MF} {q4("v", A + 8*u + 4*t)}, {q4("a", ID + 2*t)}, {q4("v", X1 + 4*u)}, 0')
    k('s_waitcnt vmcnt(0)')
    k('buffer_store_dword v5, v4, s[8:11], s43 offen sc1')
    k.stamp()
    k('s_cmp_eq_u32 s33, 3')
    k('s_cbranch_scc1 L_tail_loader')

    def aux():
        out = [f'buffer_load_dwordx4 {q4("v", XL + 4*u)}, v10, s[72:75], 0 offen offset:{128*u}' for u in range(NU)]
        out += [f'buffer_load_dwordx4 {q4("v", WR + 4*u)}, v7, s[20:23], 0 offen offset:{128*u}' for u in range(NU)]
        for j, b in enumerate((GA, SB, CB, GB)):
            for u in range(NU):
                for h in range(2):
                    pre = f's_movk_i32 s38, {2304*(j+2)}\n' if u == 0 and h == 0 else ''
                    out.append(pre + f'buffer_load_dwordx4 {q4("v", b + 8*u + 4*h)}, v8, s[8:11], s38 offen offset:{256*u + 16*h}')
        return out

    def loads(j):
        return [f's_add_u32 s3, s41, {j*2359296}'] + [
            f'buffer_load_dwordx4 {q4("a", 12*j + 4*u)}, v{6 if u < 2 else 11}, s[16:19], s3 offen offset:{2048*(u % 2)} sc1 ;@P{j}'
            for u in range(NU)]

    def sums(j):
        return [f'{MF} {q4("v", A + 8*u + 4*t)}, {q4("a", ID + 2*t)}, {q4("a", 12*j + 4*u)}, {q4("v", A + 8*u + 4*t)}'
                for u in range(NU) for t in range(2)]

    def put(lines):
        for ln in lines:
            k(ln.split(' ;@')[0])

    def unpack():
        for src, dst in ((XL, X0), (WR, W)):
            for u in range(NU):
                for i in range(4):
                    k(f'v_lshlrev_b32 v{dst+8*u+2*i}, 16, v{src+4*u+i}')
                    k(f'v_and_b32 v{dst+8*u+2*i+1}, 0xffff0000, v{src+4*u+i}')
    k('v_cmp_ne_u32 vcc, 0, v13')
    k('s_nop 0')
    k('s_or_b32 s46, s44, vcc_lo')
    k('s_and_b32 s46, s46, 0xffff')
    k('s_cmp_eq_u32 s46, 0xffff')
    k('s_cbranch_scc1 L_part_all')
    k('s_andn2_b32 s46, s46, s44')
    put(aux())
    put(ws2)
    k('s_branch L_part_new')
    k('L_poll_part:')
    k('buffer_load_dword v13, v12, s[8:11], s42 offen sc1')
    k('s_waitcnt vmcnt(0)')
    k('v_cmp_ne_u32 vcc, 0, v13')
    k('s_sub_u32 s40, s40, 1')
    k('s_cselect_b32 s46, -1, vcc_lo')
    k('s_and_b32 s46, s46, 0xffff')
    k('s_andn2_b32 s46, s46, s44')
    k('L_part_new:')
    k('s_mov_b32 s52, s46')
    for i in range(opt.get('batch', 5)):
        k('s_sub_u32 s3, s52, 1')
        k('s_and_b32 s52, s52, s3')
    k('s_or_b32 s3, s46, s44')
    k('s_cmp_eq_u32 s3, 0xffff')
    k('s_cselect_b32 s52, 0, s52')
    k('s_xor_b32 s46, s46, s52')
    for j in range(16):
        k(f's_bitcmp1_b32 s46, {j}')
        k(f's_cbranch_scc0 L_part_l{j}')
        put(loads(j))
        k(f'L_part_l{j}:')
    k('L_part_sum:')
    k('s_cmp_eq_u32 s45, 0')
    k('s_cbranch_scc1 L_part_nosum')
    for j in range(16):
        k(f's_bitcmp1_b32 s45, {j}')
        k(f's_cbranch_scc0 L_part_s{j}')
        put(sums(j))
        k(f'L_part_s{j}:')
    k('L_part_nosum:')
    k('s_cmp_eq_u32 s44, 0xffff')
    k('s_cbranch_scc1 L_part_done')
    k('s_mov_b32 s45, s46')
    k('s_or_b32 s44, s44, s46')
    k('s_cmp_lg_u32 s44, 0xffff')
    k('s_cbranch_scc1 L_poll_part')
    k.stamp()
    k('s_waitcnt lgkmcnt(0)')
    unpack()
    k('s_waitcnt vmcnt(0)')
    k('s_branch L_part_sum')
    k('L_part_all:')
    if DIAG['on']:
        k.nstamp -= 1
    k.stamp()
    ax = aux()
    seq = []
    for j in range(15):
        seq += [f's_add_u32 s3, s34, {j + 1}', 's_and_b32 s3, s3, 15', 's_mul_i32 s3, s3, 2359296', 's_add_u32 s3, s3, s41'] + loads(j)[1:]
    seq += ax[:15] + ws2
    ax = ax[15:]
    for j in range(15):
        seq += [f'VWAIT P{j}'] + sums(j) + ax[3*j:3*j + 3]
    seq = sum((x.split('\n') for x in seq), [])
    seq, _ = resolve_vm(seq, ['F'])
    put(seq)
    k('s_waitcnt vmcnt(0) lgkmcnt(0)')
    unpack()
    k('L_part_done:')
    k.stamp()
    k('s_nop 7')

    def each(fmt, n=8):
        for u in range(NU):
            for i in range(n):
                k(fmt(u, i))

    def rnd(X, P):
        each(lambda u, i: f'v_cvt_pk_bf16_f32 v{P+(8 if P == T else 4)*u+i}, v{X+8*u+2*i}, v{X+8*u+2*i+1}', 4)
        for u in range(NU):
            for i in range(4):
                p = P + (8 if P == T else 4) * u + i
                k(f'v_lshlrev_b32 v{X+8*u+2*i}, 16, v{p}')
                k(f'v_and_b32 v{X+8*u+2*i+1}, s47, v{p}')
    k('s_mov_b32 s47, 0xffff0000')
    each(lambda u, i: f'v_cvt_pk_bf16_f32 v{T+8*u+i}, v{A+8*u+2*i}, v{A+8*u+2*i+1}', 4)
    each(lambda u, i: f'v_mov_b32 v{T+8*u+4+i}, v{T+8*u+2+i}', 2)
    each(lambda u, i: f'v_mov_b32_dpp v{T+8*u+2+i}, v{T+8*u+i} row_ror:8 row_mask:0xf bank_mask:0x3', 2)
    each(lambda u, i: f'v_mov_b32_dpp v{T+8*u+i}, v{T+8*u+4+i} row_ror:8 row_mask:0xf bank_mask:0xc', 2)
    for u in range(NU):
        for i in range(4):
            k(f'v_lshlrev_b32 v{A+8*u+2*i}, 16, v{T+8*u+i}')
            k(f'v_and_b32 v{A+8*u+2*i+1}, s47, v{T+8*u+i}')
    s_, m2 = 4, 5

    def pk(op, d, x, y, mod=''):
        for i in range(0, 24, 2):
            if y == 'lo':
                yy = f'v[4:5] op_sel_hi:[1,0]'
            elif y == 'hi':
                yy = f'v[4:5] op_sel:[0,1]'
            else:
                yy = f'v[{y+i}:{y+i+1}]'
            k(f'v_pk_{op}_f32 v[{d+i}:{d+i+1}], v[{x+i}:{x+i+1}], {yy}{mod}')
    NEG = ' neg_lo:[0,1] neg_hi:[0,1]'

    def fold(dst):
        k(f'v_pk_add_f32 v[{T}:{T+1}], v[{T}:{T+1}], v[{T+2}:{T+3}]')
        k(f'v_pk_add_f32 v[{T+4}:{T+5}], v[{T+4}:{T+5}], v[{T+6}:{T+7}]')
        k(f'v_pk_add_f32 v[{T}:{T+1}], v[{T}:{T+1}], v[{T+4}:{T+5}]')
        k(f'v_add_f32 v{dst}, v{T}, v{T+1}')

    def tree(src, dst):
        for i in range(0, 8, 2):
            k(f'v_pk_add_f32 v[{T+i}:{T+i+1}], v[{src+i}:{src+i+1}], v[{src+8+i}:{src+9+i}]')
        for i in range(0, 8, 2):
            k(f'v_pk_add_f32 v[{T+i}:{T+i+1}], v[{T+i}:{T+i+1}], v[{src+16+i}:{src+17+i}]')
        fold(dst)

    def dot(a, b, dst):
        for i in range(0, 8, 2):
            k(f'v_pk_mul_f32 v[{T+i}:{T+i+1}], v[{a+i}:{a+i+1}], v[{b+i}:{b+i+1}]')
        for i in range(8, 24, 2):
            t = T + i % 8
            k(f'v_pk_fma_f32 v[{t}:{t+1}], v[{a+i}:{a+i+1}], v[{b+i}:{b+i+1}], v[{t}:{t+1}]')
        fold(dst)
    pk('mul', A, A, GA)
    rnd(A, T)
    pk('add', X1, X0, A)
    rnd(X1, XL)
    tree(X1, s_)
    red_q8(k, [s_], T)
    k(f'v_mul_f32 v{s_}, {hx(f2u(1.0/192))}, v{s_}')
    pk('add', D, X1, 'lo', NEG)
    dot(D, D, m2)
    red_q8(k, [m2], T)
    k(f'ds_write_b64 v15, v[{s_}:{m2}]')
    k('s_waitcnt lgkmcnt(0)')
    k('s_barrier')
    ST = T + 8
    k(f'ds_read_b128 {q4("v", ST)}, v14')
    k(f'ds_read_b64 v[{ST+4}:{ST+5}], v14 offset:16')
    k('s_waitcnt lgkmcnt(0)')
    k(f'v_pk_add_f32 v[4:5], v[{ST}:{ST+1}], v[{ST+2}:{ST+3}]')
    k(f'v_pk_add_f32 v[4:5], v[4:5], v[{ST+4}:{ST+5}]')
    k(f'v_mul_f32 v{s_}, {hx(f2u(1.0/3))}, v{s_}')
    for i in range(3):
        k(f'v_sub_f32 v{ST+2*i}, v{ST+2*i}, v{s_}')
    k(f'v_mul_f32 v{T}, v{ST}, v{ST}')
    k(f'v_fmac_f32 v{T}, v{ST+2}, v{ST+2}')
    k(f'v_fmac_f32 v{T}, v{ST+4}, v{ST+4}')
    k(f'v_fmac_f32 v{m2}, {hx(f2u(192.0))}, v{T}')
    k(f'v_mul_f32 v{m2}, {hx(f2u(1.0/576))}, v{m2}')
    rnd_pair(k, s_, m2, T)
    k(f'v_add_f32 v6, {hx(f2u(1e-5))}, v{m2}')
    rnd_one(k, 6)
    k(f'v_sqrt_f32 v6, v6')
    pk('add', D, X1, 'lo', NEG)
    rnd_one(k, 6)
    k(f'v_rcp_f32 v{m2}, v6')
    rnd(D, T)
    pk('mul', D, D, 'hi')
    rnd(D, T)
    pk('mul', D, D, CB)
    rnd(D, T)
    pk('add', D, D, SB)
    rnd(D, WR)
    dot(D, W, s_)
    k('s_mov_b32 s3, 2359296')
    for u in range(NU):
        k(f'buffer_store_dwordx4 {q4("v", WR + 4*u)}, v10, s[24:27], s3 offen offset:{128*u} sc1')
    red_q8(k, [s_], T)
    k(f'ds_write_b32 v15, v{s_} offset:256')
    k('s_waitcnt lgkmcnt(0)')
    k('s_barrier')
    k(f'ds_read_b128 {q4("v", ST)}, v14 offset:256')
    k(f'ds_read_b32 v{ST+4}, v14 offset:272')
    k('v_lshlrev_b32 v6, 2, v9')
    k('s_mov_b32 s3, 0xfffff800')
    k('s_lshl_b32 s41, s33, 16')
    k(f's_add_u32 s41, s41, {WS_R}')
    k('s_waitcnt lgkmcnt(0)')
    k(f'v_add_f32 v{s_}, v{ST}, v{ST+2}')
    k(f'v_add_f32 v{s_}, v{s_}, v{ST+4}')
    k(f'v_ashrrev_i32 v{m2}, 31, v{s_}')
    k(f'v_or_b32 v{m2}, 0x80000000, v{m2}')
    k(f'v_xor_b32 v{s_}, v{s_}, v{m2}')
    k(f'v_max_u32 v{s_}, 0x800, v{s_}')
    k(f'v_and_or_b32 v{s_}, v{s_}, s3, v9')
    k(f'buffer_store_dword v{s_}, v6, s[8:11], s41 offen sc1')
    k('v_mov_b32 v100, v9')
    k('v_mov_b32 v101, v10')
    k('v_mov_b32 v102, v7')

    def out_math():
        pk('mul', A, D, GB)
        rnd(A, T)
        pk('add', A, A, X1)
        each(lambda u, i: f'v_cvt_pk_bf16_f32 v{88+4*u+i}, v{A+8*u+2*i}, v{A+8*u+2*i+1}', 4)

    def out_store(name):
        k('s_cmp_eq_u32 s33, 3')
        k(f's_cbranch_scc1 L_out_{name}')
        for u in range(NU):
            k(f'buffer_store_dwordx4 {q4("v", 88 + 4*u)}, v101, s[76:79], 0 offen offset:{128*u} sc1')
        k(f'L_out_{name}:')

    def out_mask(name):
        k('s_movk_i32 s3, 0x7ff')
        for i in range(8):
            k(f'v_bitop3_b32 v{104+i}, v{104+i}, s3, v100 bitop3:0x6a')
        for i in range(8):
            k(f'v_lshl_or_b32 v{104+i}, v{104+i}, 3, {i}')
        k('v_min3_u32 v104, v104, v105, v106')
        k('v_min3_u32 v107, v107, v108, v109')
        k('v_min3_u32 v104, v104, v110, v111')
        k('v_min_u32 v104, v104, v107')
        k('v_cmp_gt_u32 vcc, 8, v104')
        k('v_mov_b32 v105, 0x1000000')
        k('s_mov_b32 s47, 0xffff0000')
        k('v_cndmask_b32 v101, v101, v105, vcc')
        k('s_cmp_eq_u32 s33, 3')
        k('s_cselect_b64 s[52:53], 0, vcc')

    def sel_store(name):
        k('s_cmp_eq_u64 s[52:53], 0')
        k(f's_cbranch_scc1 L_nosel_{name}')
        k('v_mul_u32_u24 v104, 1152, v104')
        k('v_add_u32 v104, v104, v102')
        k('v_cndmask_b32 v104, v105, v104, s[52:53]')
        each(lambda u, i: f'v_cvt_pk_bf16_f32 v{232+4*u+i}, v{X1+8*u+2*i}, v{X1+8*u+2*i+1}', 4)
        for u in range(NU):
            k(f'buffer_store_dwordx4 {q4("v", 232 + 4*u)}, v104, s[24:27], 0 offen offset:{128*u} sc1')
        k(f'L_nosel_{name}:')
    k('s_branch L_tail_moe')
    k('L_tail_loader:')
    put(ws2)
    k('s_mul_i32 s3, s55, 18432')
    k('buffer_load_dword v13, v4, s[48:51], s3 offen sc1')
    k('s_waitcnt vmcnt(0) lgkmcnt(0)')
    if DIAG['on']:
        n = k.nstamp
        k(f's_memrealtime s[{78+2*n}:{79+2*n}]')
        k(f's_memrealtime s[{76+2*n}:{77+2*n}]')
        k('s_waitcnt lgkmcnt(0)')
    k('v_lshlrev_b32 v3, 7, v2')
    k('s_mov_b32 s3, L_part_done-L_attn_pc-0x3000')
    k('buffer_load_dword v103, v3, s[4:7], s3 offen')
    k('s_barrier')
    k('s_mov_b32 s3, L_tail_moe-L_attn_pc-0x3000')
    k('buffer_load_dword v103, v3, s[4:7], s3 offen sc1')
    k('s_barrier')
    k('L_tail_moe:')
    k('s_mov_b32 s32, s55')
    k.stamp()
    k('v_mov_b32 v1, s33')
    k('v_lshrrev_b32 v13, 4, v2')
    k('v_lshlrev_b32 v5, 4, v2')
    k('v_and_b32 v10, 7, v2')
    k.srd_off(24, 's30', 's31', WS_X1, 2 * 2359296)
    k('s_cmp_ge_u32 s32, 144')
    k('s_cbranch_scc1 L_tail_fprep')
    k('v_bfe_u32 v3, v2, 2, 2')
    k('v_lshl_add_u32 v3, v13, 3, v3')
    k('v_lshlrev_b32 v3, 6, v3')
    k('v_and_b32 v9, 3, v2')
    k('v_lshl_add_u32 v3, v9, 3, v3')
    k('v_xor_b32 v4, v13, v1')
    k('v_and_b32 v4, 1, v4')
    k('v_lshl_add_u32 v3, v4, 5, v3')
    k('s_lshr_b32 s3, s33, 1')
    k('s_lshl_b32 s41, s3, 12')
    k(f's_add_u32 s41, s41, {LG8}')
    k('v_add_u32 v8, s41, v3')
    k('s_lshl_b32 s3, s3, 15')
    k(f's_add_u32 s3, s3, {LG}')
    k('v_add_u32 v3, s3, v3')
    AF, DN = 0, 72
    lines = []
    for kk in range(18):
        a, o = (3, 2048 * kk) if kk < 16 else (8, 2048 * (kk - 16))
        lines.append(f'ds_read_b64_tr_b16 a[{AF+4*kk}:{AF+4*kk+1}], v{a} offset:{o}')
        lines.append(f'ds_read_b64_tr_b16 a[{AF+4*kk+2}:{AF+4*kk+3}], v{a} offset:{o+256}')
    for i in range(9):
        o = 4096 * i if i < 6 else LD2 - LD + 4096 * (i - 6)
        lines.append(f'ds_read_b64_tr_b16 a[{DN+4*i}:{DN+4*i+1}], v14 offset:{o}')
        lines.append(f'ds_read_b64_tr_b16 a[{DN+4*i+2}:{DN+4*i+3}], v14 offset:{o+2048}')
    k('v_lshrrev_b32 v14, 2, v2')
    k('v_lshlrev_b32 v14, 7, v14')
    k('v_lshl_add_u32 v14, v9, 3, v14')
    k('v_bfe_u32 v4, v2, 3, 2')
    k('v_xor_b32 v4, v4, v1')
    k('v_lshl_add_u32 v14, v4, 5, v14')
    k(f'v_add_u32 v14, {LD}, v14')
    k('s_mul_i32 s3, s32, 18432')
    k(f's_add_u32 s3, s3, {WS_Y}')
    k.srd_off(16, 's30', 's31', 's3', 18432)
    k('v_lshlrev_b32 v15, 4, v10')
    k('v_lshl_add_u32 v15, v13, 7, v15')
    k('v_lshl_add_u32 v15, v1, 9, v15')
    k('v_and_b32 v4, 8, v2')
    k('v_lshl_add_u32 v15, v4, 20, v15')
    k('v_lshlrev_b32 v12, 3, v4')
    k('v_lshl_add_u32 v12, v13, 4, v12')
    k('s_branch L_tail_select')
    k('L_tail_fprep:')
    yaddr(k, 'v0', 'v3', 'v2')
    k('v_and_b32 v12, 8, v2')
    k('v_lshlrev_b32 v15, 1, v12')
    k('v_and_b32 v14, 15, v2')
    k('v_lshlrev_b32 v14, 4, v14')
    k('v_lshl_add_u32 v13, v1, 8, v14')
    k('L_tail_select:')
    k('s_lshl_b32 s41, s33, 11')
    k(f's_add_u32 s41, s41, {WS_R}')
    k('v_lshlrev_b32 v6, 2, v10')
    k('v_lshl_add_u32 v61, v1, 6, v6')
    k(f'v_add_u32 v61, {LC + 128}, v61')
    k('v_lshl_add_u32 v6, v1, 5, v6')
    k(f'v_add_u32 v6, {LC}, v6')
    k('v_and_b32 v62, 31, v2')
    k('v_lshlrev_b32 v62, 2, v62')
    k(f'v_add_u32 v62, {LC}, v62')
    k(f'v_mov_b32 v63, {LC}')
    k('s_lshl_b32 s38, s33, 6')
    k(f's_add_u32 s38, s38, {LC + 128}')
    sp = ['s[40:41]', 's[42:43]', 's[44:45]', 's[46:47]']
    k('v_lshrrev_b32 v44, 4, v2')
    k('v_lshl_add_u32 v44, v1, 2, v44')
    k('v_lshlrev_b32 v44, 2, v44')
    k(f'v_add_u32 v44, {LC + 384}, v44')
    k('v_and_b32 v45, 15, v2')
    k('v_lshlrev_b32 v45, 2, v45')
    k(f'v_add_u32 v45, {LC + 384}, v45')
    k('v_lshlrev_b32 v46, 5, v1')
    k(f'v_add_u32 v46, {LC}, v46')
    k(f'v_mov_b32 v47, {LC + 448}')
    k('v_mov_b32 v11, 0')
    R = 16
    kl = [f'buffer_load_dwordx4 {q4("v", R)}, v5, s[8:11], s41 offen sc1',
          f'buffer_load_dwordx4 {q4("v", R+4)}, v5, s[8:11], s41 offen offset:1024 sc1']
    k(f's_mov_b32 s40, {SPIN}')
    k('v_mov_b32 v4, 0')
    k('v_mov_b32 v7, 1')
    k(kl[0])
    k(kl[1])
    k('s_waitcnt vmcnt(3)')
    k('s_cmp_eq_u32 s33, 0')
    k('s_cbranch_scc1 L_tail_rows')
    k('s_waitcnt vmcnt(2)')
    k('L_tail_rows:')
    k('buffer_store_dword v7, v4, s[8:11], s39 offen sc1')
    k('s_cmp_ge_u32 s32, 144')
    k('s_cbranch_scc1 L_tail_nofrag')
    for i, ln in enumerate(lines):
        k(ln)
        if i % 6 == 5 and i >= 11:
            k('s_waitcnt lgkmcnt(8)')
    k('L_tail_nofrag:')
    k('s_waitcnt vmcnt(1)')
    k('s_branch L_keys_chk')
    k('L_poll_keys:')
    k(kl[0])
    k(kl[1])
    k('s_waitcnt vmcnt(0)')
    k('L_keys_chk:')
    k(f'v_min3_u32 v3, v{R}, v{R+1}, v{R+2}')
    k(f'v_min3_u32 v4, v{R+3}, v{R+4}, v{R+5}')
    k(f'v_min3_u32 v3, v3, v{R+6}, v{R+7}')
    k('v_min_u32 v3, v3, v4')
    k('v_cmp_eq_u32 vcc, 0, v3')
    k('s_sub_u32 s40, s40, 1')
    k('s_cselect_b64 vcc, 0, vcc')
    k('s_cbranch_vccnz L_poll_keys')
    k.stamp()
    k('s_lshl_b32 s39, s33, 10')
    k(f's_add_u32 s39, s39, {WS_YFLAG}')
    k(f'v_max3_u32 v8, v{R}, v{R+1}, v{R+2}')
    k(f'v_max3_u32 v9, v{R+3}, v{R+4}, v{R+5}')
    k(f'v_max3_u32 v8, v8, v{R+6}, v{R+7}')
    k('v_max_u32 v8, v8, v9')
    for sh in (1, 2, 4, 8):
        k('s_nop 1')
        k(f'v_max_u32_dpp v8, v8, v8 row_ror:{sh} row_mask:0xf bank_mask:0xf')
    k('ds_write_b32 v44, v8')
    k('ds_write_b32 v6, v11')
    k('s_waitcnt lgkmcnt(0)')
    k('s_barrier')
    k('ds_read_b32 v9, v45')
    for i in range(4):
        k(f'ds_read_b128 {q4("v", 24 + 4*i)}, v63 offset:{384 + 16*i}')
    k('v_mov_b32 v7, 0')
    k('v_mov_b32 v8, 0')
    for i in range(0, 16, 4):
        k(f's_waitcnt lgkmcnt({3 - i//4})')
        for j in range(4):
            k(f'v_cmp_gt_u32 {sp[j]}, v{24+i+j}, v9')
        for j in range(4):
            k(f'v_addc_co_u32 v{7 + j % 2}, vcc, 0, v{7 + j % 2}, {sp[j]}')
    k('v_add_u32 v7, v7, v8')
    k('v_cmp_eq_u32 vcc, 7, v7')
    k('s_mov_b32 s52, 0')
    k('s_ff1_i32_b32 s3, vcc_lo')
    k('s_and_b32 s3, s3, 15')
    k('v_readlane_b32 s53, v9, s3')
    k('s_nop 1')
    for half in range(2):
        for j in range(4):
            k(f'v_cmp_le_u32 {sp[j]}, s53, v{R + 4*half + j}')
        for j in range(4):
            lo = 40 + 2 * j
            k(f'v_mbcnt_lo_u32_b32 v{24+j}, s{lo}, 0')
            k(f'v_mbcnt_hi_u32_b32 v{24+j}, s{lo+1}, v{24+j}')
            k(f'v_add_u32 v{24+j}, s52, v{24+j}')
            k(f's_bcnt1_i32_b64 s3, {sp[j]}')
            k(f'v_min_u32 v{24+j}, 7, v{24+j}')
            k('s_add_u32 s52, s52, s3')
            k(f'v_lshl_add_u32 v{24+j}, v{24+j}, 2, v46')
            k(f'v_cndmask_b32 v{24+j}, v47, v{24+j}, {sp[j]}')
            k(f'ds_write_b32 v{24+j}, v{R + 4*half + j}')
    k('s_cmp_le_u32 s52, 8')
    k('s_cbranch_scc1 L_top_done')
    k('v_mov_b32 v7, -1')
    k('s_mov_b32 s3, 0')
    k('L_top_round:')
    TT = 24
    for i in range(8):
        k(f'v_sub_u32 v{TT+i}, v7, v{R+i}')
    k(f'v_min3_u32 v8, v{TT}, v{TT+1}, v{TT+2}')
    k(f'v_min3_u32 v9, v{TT+3}, v{TT+4}, v{TT+5}')
    k(f'v_min3_u32 v8, v8, v{TT+6}, v{TT+7}')
    k('v_min_u32 v8, v8, v9')
    red32(k, 8, 9, 'v_min_u32')
    k('v_mov_b32 v9, v8')
    k('v_cmp_eq_u32 vcc, s3, v10')
    k('s_nop 0')
    k('v_permlane32_swap_b32 v8, v9')
    k('v_min_u32 v8, v8, v9')
    k('v_sub_u32 v8, v7, v8')
    k('v_subrev_u32 v7, 1, v8')
    k('v_cndmask_b32 v11, v11, v8, vcc')
    k('s_add_u32 s3, s3, 1')
    k('s_cmp_lt_u32 s3, 8')
    k('s_cbranch_scc1 L_top_round')
    k('ds_write_b32 v6, v11')
    k('L_top_done:')
    k('buffer_load_dwordx4 v[48:51], v5, s[8:11], s39 offen sc1')
    k('s_waitcnt lgkmcnt(0)')
    k('s_barrier')
    k('ds_read_b32 v11, v62')
    for i in range(8):
        k(f'ds_read_b128 {q4("v", 16 + 4*i)}, v63 offset:{16*i}')
    k('v_mov_b32 v7, 0')
    k('v_mov_b32 v8, 0')
    for i in range(0, 32, 4):
        k(f's_waitcnt lgkmcnt({7 - i//4})')
        for j in range(4):
            k(f'v_cmp_gt_u32 {sp[j]}, v{16+i+j}, v11')
        for j in range(4):
            k(f'v_addc_co_u32 v{7 + j % 2}, vcc, 0, v{7 + j % 2}, {sp[j]}')
    k('v_add_u32 v7, v7, v8')
    k('v_min_u32 v7, 8, v7')
    k('v_lshl_add_u32 v7, v7, 2, s38')
    k('ds_write_b32 v7, v11')
    k('ds_read_b32 v11, v61')
    k('v_mov_b32 v7, s38')
    k('ds_read_b128 v[104:107], v7')
    k('ds_read_b128 v[108:111], v7 offset:16')
    k(f's_mov_b32 s40, {SPIN}')
    k('s_branch L_rows_chk')
    k('L_rows_poll:')
    k('buffer_load_dwordx4 v[48:51], v5, s[8:11], s39 offen sc1')
    k('L_rows_chk:')
    k('s_waitcnt vmcnt(0)')
    k('v_min3_u32 v3, v48, v49, v50')
    k('v_cmp_eq_u32 vcc, 0, v3')
    k('s_sub_u32 s40, s40, 1')
    k('s_cselect_b64 vcc, 0, vcc')
    k('s_cbranch_vccnz L_rows_poll')
    k('s_barrier')
    k('s_waitcnt lgkmcnt(2)')
    k.stamp('t')
    k('v_and_b32 v7, 0x7ff, v11')
    k('v_mul_u32_u24 v7, 1152, v7')
    k('v_add_u32 v12, v12, v7')
    k('s_cmp_ge_u32 s32, 144')
    k('s_cbranch_scc1 L_tail_final')
    B = 16
    LH = 8192
    k('s_lshl_b32 s3, s33, 7')
    k('s_add_u32 s3, s3, 2359296')
    k('s_mov_b32 s38, 2359296')
    k(f'buffer_load_dwordx4 v[72:75], v12, s[24:27], s3 offen sc1')
    k(f'buffer_load_dwordx4 v[76:79], v12, s[24:27], s3 offen offset:512 sc1')
    k(f'buffer_load_dwordx4 {q4("v", B + 32)}, v12, s[24:27], s38 offen offset:1024 sc1')
    k('v_lshl_add_u32 v9, v1, 10, v5')
    k('v_and_b32 v4, 8, v2')
    k('v_lshlrev_b32 v8, 2, v10')
    k('v_lshl_add_u32 v10, v4, 7, v5')
    k('s_waitcnt lgkmcnt(0)')
    out_mask('moe')
    out_math()
    k('s_waitcnt vmcnt(1)')
    k(f'ds_write_b128 v9, v[72:75] offset:{LH}')
    k(f'ds_write_b128 v9, v[76:79] offset:{LH + 4096}')
    k('s_waitcnt vmcnt(0)')
    for h in range(2):
        k(f'{MF} {q4("v", 64 + 4*h)}, {q4("a", AF + 64 + 4*h)}, {q4("v", B + 32)}, 0')
    sel_store('moe')
    if opt.get('outearly', False):
        out_store('moe')
    k('s_waitcnt lgkmcnt(0)')
    k('s_barrier')
    for p in range(8):
        k(f'ds_read_b128 {q4("v", B + 4*p)}, v5 offset:{LH + 1024*p}')
    for p in range(8):
        k(f's_waitcnt lgkmcnt({7 - p})')
        for h in range(2):
            k(f'{MF} {q4("v", 64 + 4*h)}, {q4("a", AF + 8*p + 4*h)}, {q4("v", B + 4*p)}, {q4("v", 64 + 4*h)}')
    k.stamp('t')
    k('s_nop 7')
    for i in range(4):
        k(f'v_mov_b32_dpp v{64+i}, v{68+i} quad_perm:[0,1,2,3] row_mask:0xf bank_mask:0xc')
    k('s_nop 0')
    for i in range(4):
        k(f'v_add_f32_dpp v{4+i}, v{64+i}, v{64+i} row_ror:8 row_mask:0xf bank_mask:0xf')
    k('ds_write_b128 v9, v[4:7]')
    k('s_waitcnt lgkmcnt(0)')
    k('s_barrier')
    k('ds_read_b128 v[16:19], v10')
    k('ds_read_b128 v[20:23], v10 offset:2048')
    k('s_waitcnt lgkmcnt(0)')
    rnd8(k, 16, 32)
    for i in range(4):
        k(f'v_mul_f32 v{32+i}, {hx(f2u(-LOG2E))}, v{16+i}')
    for i in range(4):
        k(f'v_exp_f32 v{32+i}, v{32+i}')
    for i in range(4):
        k(f'v_add_f32 v{32+i}, 1.0, v{32+i}')
    for i in range(4):
        k(f'v_rcp_f32 v{32+i}, v{32+i}')
    for i in range(4):
        k(f'v_mul_f32 v{16+i}, v{16+i}, v{32+i}')

    def r4():
        k('v_cvt_pk_bf16_f32 v24, v16, v17')
        k('v_cvt_pk_bf16_f32 v25, v18, v19')
        k('v_lshlrev_b32 v16, 16, v24')
        k('v_and_b32 v17, 0xffff0000, v24')
        k('v_lshlrev_b32 v18, 16, v25')
        k('v_and_b32 v19, 0xffff0000, v25')
    r4()
    for i in range(4):
        k(f'v_mul_f32 v{16+i}, v{16+i}, v{20+i}')
    k('v_cvt_pk_bf16_f32 v40, v16, v17')
    k('v_cvt_pk_bf16_f32 v41, v18, v19')
    k('s_nop 0')
    k('v_mov_b32_dpp v42, v40 row_ror:8 row_mask:0xf bank_mask:0xf')
    k('v_mov_b32_dpp v43, v41 row_ror:8 row_mask:0xf bank_mask:0xf')
    k('s_nop 1')
    Y = 48
    for i in range(9):
        k(f'{MF} {q4("v", Y + 4*i)}, {q4("a", DN + 4*i)}, v[40:43], 0')
    for i in range(9):
        if i % 2 == 0:
            k(f's_movk_i32 s3, {2048*i}')
        k(f'buffer_store_dwordx4 {q4("v", Y + 4*i)}, v15, s[16:19], s3 offen offset:{2048*(i % 2)} sc1')
    k.stamp('t')
    if not opt.get('outearly', False):
        if opt.get('outlate', False):
            k('s_waitcnt vmcnt(0)')
        out_store('moe')
    k(f's_movk_i32 s38, {WS_IDX}')
    k('s_or_b32 s3, s32, s33')
    k('s_cselect_b32 s3, 0x10000, s38')
    k('buffer_store_dword v11, v8, s[8:11], s3 offen')
    k('s_branch L_attn_end')
    k('L_tail_final:')
    k('s_lshl_b32 s42, s37, 4')
    k(f's_add_u32 s43, s42, 2359296')
    k('buffer_load_dwordx2 v[56:57], v12, s[24:27], s43 offen sc1')
    k('s_lshl_b32 s41, s37, 5')
    k(f's_add_u32 s41, s41, {5*2304}')
    k('buffer_load_dwordx4 v[52:55], v15, s[8:11], s41 offen')
    k('s_waitcnt lgkmcnt(0)')
    out_mask('fin')
    sel_store('fin')
    out_math()
    out_store('fin')
    k('s_cmp_ge_u32 s32, 216')
    k('s_cbranch_scc1 L_attn_end')
    k('v_not_b32 v7, v11')
    k('v_ashrrev_i32 v7, 31, v7')
    k('v_or_b32 v7, 0x80000000, v7')
    k('v_xor_b32 v8, v11, v7')
    rnd_one(k, 8)
    k(f'v_mul_f32 v8, {hx(f2u(-LOG2E))}, v8')
    k('v_exp_f32 v8, v8')
    k('s_nop 0')
    k('v_add_f32 v8, 1.0, v8')
    k('v_rcp_f32 v8, v8')
    k('s_nop 0')
    rnd_one(k, 8)
    k('v_mul_u32_u24 v9, 1152, v10')
    k('v_and_b32 v7, 8, v2')
    k('v_add_u32 v9, v9, v7')
    k(f's_mov_b32 s40, {SPIN}')
    k('L_poll_x1:')
    k('buffer_load_dwordx2 v[58:59], v9, s[24:27], s42 offen sc1')
    k('s_waitcnt vmcnt(0)')
    k('v_max_u32 v3, v58, v59')
    k('v_cmp_eq_u32 vcc, -1, v3')
    k('s_sub_u32 s40, s40, 1')
    k('s_cselect_b64 vcc, 0, vcc')
    k('s_cbranch_vccnz L_poll_x1')
    for j in range(2):
        k(f'v_lshlrev_b32 v{64+2*j}, 16, v{56+j}')
        k(f'v_and_b32 v{65+2*j}, 0xffff0000, v{56+j}')
        k(f'v_lshlrev_b32 v{68+2*j}, 16, v{58+j}')
        k(f'v_and_b32 v{69+2*j}, 0xffff0000, v{58+j}')
    k(f's_mov_b32 s40, {SPIN}')
    k('L_poll_y:')
    k('s_mov_b32 s3, 0')
    for i in range(9):
        k(f'buffer_load_dwordx4 v[{16+4*i}:{19+4*i}], v0, s[48:51], s3 offen sc1')
        k('s_add_u32 s3, s3, 18432')
    for i in range(9):
        k(f's_waitcnt vmcnt({8-i})')
        if i == 0:
            k('v_max_u32 v3, v16, v17')
            k('v_max_u32 v4, v18, v19')
        else:
            k(f'v_max3_u32 v3, v3, v{16+4*i}, v{17+4*i}')
            k(f'v_max3_u32 v4, v4, v{18+4*i}, v{19+4*i}')
    k('v_max_u32 v3, v3, v4')
    k('v_cmp_eq_u32 vcc, -1, v3')
    k('s_sub_u32 s40, s40, 1')
    k('s_cselect_b64 vcc, 0, vcc')
    k('s_cbranch_vccnz L_poll_y')
    if DIAG['on']:
        n = k.nstamp
        k(f's_memrealtime s[{78+2*n}:{79+2*n}]')
        k('s_waitcnt lgkmcnt(0)')
    for a, b in ((0, 1), (2, 3), (4, 5), (6, 7), (0, 2), (4, 6), (0, 8), (0, 4)):
        for j in range(0, 4, 2):
            k(f'v_pk_add_f32 v[{16+4*a+j}:{17+4*a+j}], v[{16+4*a+j}:{17+4*a+j}], v[{16+4*b+j}:{17+4*b+j}]')
    for sw in ('v_permlane16_swap_b32', 'v_permlane32_swap_b32'):
        for j in range(4):
            k(f'v_mov_b32 v{20+j}, v{16+j}')
        k('s_nop 0')
        for j in range(4):
            k(f'{sw} v{16+j}, v{20+j}')
        for j in range(4):
            k(f'v_add_f32 v{16+j}, v{16+j}, v{20+j}')
    k('ds_write_b128 v13, v[16:19]')
    k('s_waitcnt lgkmcnt(0)')
    k('s_barrier')
    k('s_cmp_lg_u32 s33, 0')
    k('s_cbranch_scc1 L_attn_end')
    for w in range(1, 4):
        k(f'ds_read_b128 v[{28+4*w}:{31+4*w}], v14 offset:{256*w}')
    k('s_waitcnt lgkmcnt(0)')
    for j in range(4):
        k(f'v_add_f32 v{16+j}, v{16+j}, v{32+j}')
        k(f'v_add_f32 v{36+j}, v{36+j}, v{40+j}')
    for j in range(4):
        k(f'v_add_f32 v{16+j}, v{16+j}, v{36+j}')
    r4()
    for j in range(4):
        k(f'v_mul_f32 v{16+j}, v{16+j}, v8')
    r4()
    for j in range(4):
        k(f'v_add_f32 v{16+j}, v{16+j}, v{64+j}')
    r4()
    for j in range(4):
        k(f'v_mul_f32 v{16+j}, v{16+j}, v{52+j}')
    r4()
    for j in range(4):
        k(f'v_add_f32 v{16+j}, v{16+j}, v{68+j}')
    k('v_cvt_pk_bf16_f32 v20, v16, v17')
    k('v_cvt_pk_bf16_f32 v21, v18, v19')
    k('buffer_store_dwordx2 v[20:21], v12, s[76:79], s42 offen sc1')
    k('s_branch L_attn_end')
```
